```python
import torch

def _softmax(x, axis=-1):
    return torch.softmax(x, dim=axis)
def _gelu(x):
    return torch.nn.functional.gelu(x, approximate="tanh")
def _silu(x):
    return torch.nn.functional.silu(x)
def _sigmoid(x):
    return torch.sigmoid(x)
def _layernorm(x, axis=-1, eps=1e-5):
    m = x.mean(dim=axis, keepdim=True)
    v = x.var(dim=axis, keepdim=True, unbiased=False)
    return (x - m) / torch.sqrt(v + eps)
def _scatter_add(tgt, idx, src, axis=0):
    return tgt.clone().index_add_(axis, idx, src)
def _segment_sum(src, seg, n):
    out = torch.zeros((n,) + src.shape[1:], dtype=src.dtype)
    return out.index_add_(0, seg, src)
def _pad(x, pw):
    flat = tuple(v for pair in reversed(pw) for v in pair)
    return torch.nn.functional.pad(x, flat)

kernel_name = 'parallel_sum__ssm_conv_h3__glu_gated_bilinear__prompt'

def setup_inputs():

    _w = (lambda a: (lambda t: t.to(torch.bfloat16) if t.is_floating_point() else t)(torch.as_tensor(a)))
    def _A_setup():
        B, S, D = 1, 2048, 576
        ks = 4
        return {
            "q": _w((lambda *s: torch.randn(*s, dtype=torch.bfloat16) * 0.05)(B, S, D)),
            "k": _w((lambda *s: torch.randn(*s, dtype=torch.bfloat16) * 0.2)(B, S, D)),
            "v": _w((lambda *s: torch.randn(*s, dtype=torch.bfloat16) * 0.2)(B, S, D)),
            "shift_k": _w((lambda *s: torch.randn(*s, dtype=torch.bfloat16) * 0.2)(D, ks) * 0.5),
            "ssm_k": _w((lambda *s: torch.randn(*s, dtype=torch.bfloat16) * 0.4)(D, S) * (1.0 / S ** 0.5)),
            "ssm_D": _w((lambda *s: torch.randn(*s, dtype=torch.bfloat16) * 0.2)(D)),
        }
    _A_in = _A_setup()

    def _B_setup():
        B, S, D, F = 1, 2048, 576, 4608
        return {
            "x": _w((lambda *s: torch.randn(*s, dtype=torch.bfloat16) * 0.05)(B, S, D)),
            "w_gate": _w((lambda *s: torch.randn(*s, dtype=torch.bfloat16) * 0.2)(D, F) * (D ** -0.5)),
            "w_up": _w((lambda *s: torch.randn(*s, dtype=torch.bfloat16) * 0.2)(D, F) * (D ** -0.5)),
            "w_down": _w((lambda *s: torch.randn(*s, dtype=torch.bfloat16) * 0.2)(F, D) * (F ** -0.5)),
        }
    _B_in = _B_setup()

    return {
        "A_q": _A_in["q"],
        "A_k": _A_in["k"],
        "A_v": _A_in["v"],
        "A_shift_k": _A_in["shift_k"],
        "A_ssm_k": _A_in["ssm_k"],
        "A_ssm_D": _A_in["ssm_D"],
        "B_x": _B_in["x"],
        "B_w_gate": _B_in["w_gate"],
        "B_w_up": _B_in["w_up"],
        "B_w_down": _B_in["w_down"],
    }

def reference(A_q, A_k, A_v, A_shift_k, A_ssm_k, A_ssm_D, B_x, B_w_gate, B_w_up, B_w_down):
    def _A_ref(q, k, v, shift_k, ssm_k, ssm_D):
        B, S, D = q.shape
        ks = shift_k.shape[-1]
        k_pad = _pad(k, ((0, 0), (ks - 1, 0), (0, 0)))
        k_shift = torch.zeros_like(k)
        for t in range(ks):
            k_shift = k_shift + k_pad[:, t:t + S, :] * shift_k[:, ks - 1 - t][None, None, :]
        kv = k_shift * v
        L = 2 * S
        kv_pad = _pad(kv, ((0, 0), (0, S), (0, 0)))
        kf_pad = _pad(ssm_k, ((0, 0), (0, S)))
        kv_f = (lambda x, axes=(-2,-1): torch.fft.rfft2(x.float(), dim=axes))(kv_pad[:, None, :, :], axes=(1, 2))
        kf_f = (lambda x, axes=(-2,-1): torch.fft.rfft2(x.float(), dim=axes))(kf_pad[:, None, :], axes=(1, 2))
        kf_f = (lambda x, *d: x.permute(*d))(kf_f, 1, 2, 0)
        y_f = kv_f * kf_f[None, :, :, :]
        y = (lambda x, s, axes=(-2,-1): torch.fft.irfft2(x, s=s, dim=axes).to(torch.bfloat16))(y_f, (1, L), axes=(1, 2))[:, 0, :S, :]
        y = y + kv * ssm_D[None, None, :]
        return q * y

    def _B_ref(x, w_gate, w_up, w_down):
        g = torch.einsum("bsd,df->bsf", x, w_gate)
        u = torch.einsum("bsd,df->bsf", x, w_up)
        h = g * u
        return torch.einsum("bsf,fd->bsd", h, w_down)

    x = A_q
    xn = _layernorm(x, axis=-1)
    return x + _A_ref(xn, A_k, A_v, A_shift_k, A_ssm_k, A_ssm_D) + _B_ref(xn, B_w_gate, B_w_up, B_w_down)
```

```python
def add(a, launches, kds, G):
    gen_gemm1(a, G); launches.append(("gemm1_kernel", 256, 512, 4*G1_STG)); kds.append(G["kd"]("gemm1_kernel", 256, 64))
    try:
        import gen3
        gen3.add(a, launches, kds, G)
    except ImportError:
        pass

G1_STG = 16384 + 18432

def gen_gemm1(a, G):
    srd = G["srd"]; WS_XN = G["WS_XN"]; WS_H = G["WS_H"]; SZ_ACT = G["SZ_ACT"]; SZ_H = G["SZ_H"]; SZ_W = G["SZ_W"]
    G["kernel_header"](a, "gemm1_kernel")
    STG = G1_STG
    NST = 18
    a(f"""
    s_load_dwordx2 s[4:5], s[0:1], 96
    s_load_dwordx2 s[6:7], s[0:1], 56
    s_load_dwordx2 s[8:9], s[0:1], 64
    s_cmp_ge_u32 s2, 256
    s_cbranch_scc1 g1_done
    v_lshrrev_b32 v1, 6, v0
    s_nop 0
    v_readfirstlane_b32 s24, v1              ; wave
    v_and_b32 v1, 63, v0                     ; lane
    s_and_b32 s25, s24, 3                    ; mw
    s_lshr_b32 s26, s24, 2                   ; gu
    s_and_b32 s28, s2, 7
    s_lshl_b32 s28, s28, 2
    s_lshr_b32 s27, s2, 3                    ; idx
    s_and_b32 s29, s27, 3
    s_add_u32 s28, s28, s29                  ; nblk
    s_lshr_b32 s27, s27, 2                   ; mblk
    s_waitcnt lgkmcnt(0)
    s_cmp_eq_u32 s26, 0
    s_cselect_b32 s6, s6, s8
    s_cselect_b32 s7, s7, s9
    """)
    srd(a, 12, 4, 5, SZ_ACT, WS_XN)
    srd(a, 16, 6, 7, SZ_W)
    srd(a, 20, 4, 5, SZ_H, WS_H)
    a(f"""
    s_lshl_b32 s32, s27, 4                   ; mblk*16
    s_lshl_b32 s33, s24, 1                   ; 2w
    s_add_u32 s32, s32, s33
    s_mul_i32 s32, s32, {18*1024}
    v_lshlrev_b32 v2, 4, v1
    v_add_u32 v2, s32, v2                    ; voffA0
    v_add_u32 v3, {18*1024}, v2              ; voffA1
    s_lshl_b32 s33, s25, 3                   ; 8*mw
    s_mul_i32 s33, s33, 9216
    s_mul_i32 s34, s28, 288
    s_add_u32 s33, s33, s34
    """)
    for i in range(3):
        a(f"""
        v_add_u32 v20, {64*i}, v1            ; q
        v_mul_u32_u24 v21, 3641, v20
        v_lshrrev_b32 v21, 16, v21           ; row = q/18
        v_mul_u32_u24 v22, 18, v21
        v_sub_u32 v22, v20, v22              ; c
        v_mul_u32_u24 v21, 9216, v21
        v_lshl_add_u32 v21, v22, 4, v21
        v_add_u32 v{4+i}, s33, v21
        """)
    a(f"""
    s_lshl_b32 s30, s24, 11                  ; w*2048
    s_mul_i32 s31, s26, 9216
    s_mul_i32 s34, s25, 2304
    s_add_u32 s31, s31, s34
    s_add_u32 s31, s31, 16384
    s_lshl_b32 s34, s25, 12                  ; mw*4096
    v_lshlrev_b32 v8, 4, v1
    v_add_u32 v8, s34, v8                    ; vA[0]
    v_lshrrev_b32 v12, 2, v1
    v_mul_u32_u24 v12, 288, v12
    v_and_b32 v13, 3, v1
    v_lshl_add_u32 v12, v13, 3, v12
    s_mul_i32 s34, s26, 9216
    s_add_u32 s34, s34, 16384
    v_add_u32 v12, s34, v12                  ; vB[0]
    """)
    for b in range(1, 4):
        a(f"v_add_u32 v{8+b}, {b*STG}, v8")
        a(f"v_add_u32 v{12+b}, {b*STG}, v12")
    a(f"""
    s_lshl_b32 s34, s27, 4
    s_lshl_b32 s35, s25, 2
    s_add_u32 s34, s34, s35                  ; mblk*16+4mw
    s_mul_i32 s34, s34, {288*512}
    s_mul_i32 s35, s28, {9*512}
    s_add_u32 s34, s34, s35
    v_lshlrev_b32 v16, 3, v1
    v_add_u32 v16, s34, v16                  ; voffH
    s_mul_i32 s34, s24, 9216
    v_lshlrev_b32 v17, 3, v1
    v_add_u32 v17, s34, v17
    s_xor_b32 s35, s24, 4
    s_mul_i32 s35, s35, 9216
    v_lshlrev_b32 v18, 3, v1
    v_add_u32 v18, s35, v18
    """)
    AF = [44, 60]
    BF = 76
    ACC = 112
    def acc(mt, ft): return ACC + 4*(mt*9 + ft)

    def dma(t):
        b = t % 4
        a(f"s_mov_b32 s36, {t*1024}")
        a(f"s_mov_b32 s37, {t*294912}")
        a(f"s_add_u32 m0, s30, {b*STG}")
        a("s_nop 0")
        a("buffer_load_dwordx4 v2, s[12:15], s36 offen lds")
        a(f"s_add_u32 m0, s30, {b*STG + 1024}")
        a("s_nop 0")
        a("buffer_load_dwordx4 v3, s[12:15], s36 offen lds")
        a(f"s_add_u32 m0, s31, {b*STG}")
        a("s_nop 0")
        a("buffer_load_dwordx4 v4, s[16:19], s37 offen lds")
        a(f"s_add_u32 m0, s31, {b*STG + 1024}")
        a("s_nop 0")
        a("buffer_load_dwordx4 v5, s[16:19], s37 offen lds")
        a(f"s_add_u32 m0, s31, {b*STG + 2048}")
        a("s_mov_b64 exec, 0xffff")
        a("buffer_load_dwordx4 v6, s[16:19], s37 offen lds")
        a("s_mov_b64 exec, -1")

    def readA(t):
        b = t % 4; r = AF[t % 2]
        for mt in range(4):
            a(f"ds_read_b128 v[{r+4*mt}:{r+4*mt+3}], v{8+b} offset:{mt*1024}")
    def readB(t, ft):
        b = t % 4; r = BF + 4*ft
        a(f"ds_read_b64_tr_b16 v[{r}:{r+1}], v{12+b} offset:{ft*32}")
        a(f"ds_read_b64_tr_b16 v[{r+2}:{r+3}], v{12+b} offset:{4608 + ft*32}")

    dma(0); dma(1); dma(2)
    a("s_waitcnt vmcnt(10)")
    a("s_barrier")
    readA(0)
    for ft in range(9): readB(0, ft)
    for t in range(NST):
        last = (t == NST-1)
        if not last:
            a(f"s_waitcnt vmcnt({5 if t+2 < NST else 0})")
            a("s_barrier")
            if t + 3 < NST: dma(t+3)
            readA(t+1)
        if t == 0: a("s_waitcnt lgkmcnt(4)")
        for ft in range(9):
            if t > 0:
                a(f"s_waitcnt lgkmcnt({12 if not last else min(15, 2*(8-ft))})")
            for mt in range(4):
                c = f"v[{acc(mt,ft)}:{acc(mt,ft)+3}]"
                src_c = c if t > 0 else "0"
                a(f"v_mfma_f32_16x16x32_bf16 {c}, v[{BF+4*ft}:{BF+4*ft+3}], v[{AF[t%2]+4*mt}:{AF[t%2]+4*mt+3}], {src_c}")
            if not last: readB(t+1, ft)
    a("s_nop 7")
    a("s_nop 7")
    a("s_barrier")
    for mt in range(4):
        for ft in range(9):
            c = acc(mt, ft)
            a(f"v_cvt_pk_bf16_f32 v{c}, v{c}, v{c+1}")
            a(f"v_cvt_pk_bf16_f32 v{c+1}, v{c+2}, v{c+3}")
    a("s_cmp_eq_u32 s26, 0")
    a("s_cbranch_scc0 g1_ep_up")
    for gu in range(2):
        if gu == 1: a.label("g1_ep_up")
        send = [2, 3] if gu == 0 else [0, 1]
        keep = [0, 1] if gu == 0 else [2, 3]
        for i, mt in enumerate(send):
            for ft in range(9):
                c = acc(mt, ft)
                a(f"ds_write_b64 v17, v[{c}:{c+1}] offset:{(i*9+ft)*512}")
        a("s_waitcnt lgkmcnt(0)")
        a("s_barrier")
        for i, mt in enumerate(keep):
            for ft in range(9):
                c = acc(mt, ft)
                a(f"ds_read_b64 v[{c+2}:{c+3}], v18 offset:{(i*9+ft)*512}")
        n = 0
        for i, mt in enumerate(keep):
            for ft in range(9):
                c = acc(mt, ft)
                a(f"s_waitcnt lgkmcnt({min(15, 17-n)})")
                n += 1
                a(f"""
                v_lshlrev_b32 v20, 16, v{c}
                v_and_b32 v21, 0xffff0000, v{c}
                v_lshlrev_b32 v22, 16, v{c+1}
                v_and_b32 v23, 0xffff0000, v{c+1}
                v_lshlrev_b32 v24, 16, v{c+2}
                v_and_b32 v25, 0xffff0000, v{c+2}
                v_lshlrev_b32 v26, 16, v{c+3}
                v_and_b32 v27, 0xffff0000, v{c+3}
                v_mul_f32 v20, v20, v24
                v_mul_f32 v21, v21, v25
                v_mul_f32 v22, v22, v26
                v_mul_f32 v23, v23, v27
                v_cvt_pk_bf16_f32 v{c}, v20, v21
                v_cvt_pk_bf16_f32 v{c+1}, v22, v23
                s_mov_b32 s36, {mt*147456 + ft*512}
                buffer_store_dwordx2 v[{c}:{c+1}], v16, s[20:23], s36 offen
                """)
        a("s_endpgm")
    a.label("g1_done")
    a("s_endpgm")
```

```python
G2_STG = 18432
K3_LDS = 81920
def add(a, launches, kds, G):
    gen_k3(a, G); launches.append(("gemm2_kernel", 256 + 72, 512, K3_LDS)); kds.append(G["kd"]("gemm2_kernel", 128, 64))
    gen_k4(a, G); launches.append(("final_kernel", 288, 256, 10240)); kds.append(G["kd"]("final_kernel", 64, 64))

def gen_k3(a, G):
    srd = G["srd"]
    WS_H = G["WS_H"]; WS_PART = G["WS_PART"]; WS_KVT = G["WS_KVT"]; WS_Y2T = G["WS_Y2T"]
    SZ_ACT = G["SZ_ACT"]; SZ_H = G["SZ_H"]; SZ_W = G["SZ_W"]; SZ_PART = G["SZ_PART"]
    G["kernel_header"](a, "gemm2_kernel")
    STG = G2_STG
    NST = 18
    a(f"""
    s_load_dwordx2 s[4:5], s[0:1], 96        ; ws
    s_load_dwordx2 s[6:7], s[0:1], 72        ; w_down
    s_load_dwordx2 s[8:9], s[0:1], 32        ; ssm_k
    s_load_dwordx2 s[10:11], s[0:1], 40      ; ssm_D
    s_cmp_ge_u32 s2, {256+72}
    s_cbranch_scc1 g2_done
    v_lshrrev_b32 v1, 6, v0
    s_nop 0
    v_readfirstlane_b32 s24, v1              ; wave
    v_and_b32 v1, 63, v0                     ; lane
    s_waitcnt lgkmcnt(0)
    s_cmp_ge_u32 s2, 256
    s_cbranch_scc1 conv_start
    s_and_b32 s25, s24, 3                    ; mw
    s_lshr_b32 s26, s24, 2                   ; kg
    s_and_b32 s29, s2, 7                     ; xcd
    s_and_b32 s38, s29, 3                    ; ks
    s_lshr_b32 s29, s29, 2                   ; mhalf
    s_lshr_b32 s27, s2, 3                    ; idx
    s_and_b32 s28, s27, 3                    ; nblk
    s_lshr_b32 s27, s27, 2
    s_lshl_b32 s29, s29, 3
    s_add_u32 s27, s27, s29                  ; mblk (0..15)
    """)
    srd(a, 12, 4, 5, SZ_H, WS_H)
    srd(a, 16, 6, 7, SZ_W)
    srd(a, 20, 4, 5, SZ_PART, WS_PART)
    a(f"""
    s_lshl_b32 s32, s27, 3
    s_lshl_b32 s33, s25, 1
    s_add_u32 s32, s32, s33
    s_mul_i32 s33, s32, {288*512}
    s_mul_i32 s34, s38, {36*1024}
    s_add_u32 s33, s33, s34
    s_lshl_b32 s34, s26, 10
    s_add_u32 s33, s33, s34
    v_lshlrev_b32 v2, 3, v1
    v_add_u32 v2, s33, v2
    v_add_u32 v3, {288*512}, v2
    s_mul_i32 s33, s38, 1152
    s_lshl_b32 s34, s24, 3
    s_add_u32 s33, s33, s34
    s_mul_i32 s33, s33, 1152
    s_mul_i32 s34, s28, 288
    s_add_u32 s33, s33, s34
    """)
    for i in range(3):
        a(f"""
        v_add_u32 v20, {64*i}, v1
        v_mul_u32_u24 v21, 3641, v20
        v_lshrrev_b32 v21, 16, v21
        v_mul_u32_u24 v22, 18, v21
        v_sub_u32 v22, v20, v22
        v_mul_u32_u24 v21, 1152, v21
        v_lshl_add_u32 v21, v22, 4, v21
        v_add_u32 v{4+i}, s33, v21
        """)
    a(f"""
    s_mul_i32 s31, s24, 2304
    v_lshrrev_b32 v8, 2, v1
    v_mul_u32_u24 v8, 288, v8
    v_and_b32 v9, 3, v1
    v_lshl_add_u32 v8, v9, 3, v8
    s_mul_i32 s34, s26, 9216
    v_add_u32 v8, s34, v8                    ; vB[0]
    """)
    for b in range(1, 4):
        a(f"v_add_u32 v{8+b}, {b*STG}, v8")
    a(f"""
    s_lshl_b32 s34, s38, 7
    s_add_u32 s34, s34, s32
    s_add_u32 s34, s34, s26
    s_mul_i32 s34, s34, 36
    s_mul_i32 s35, s28, 9
    s_add_u32 s34, s34, s35
    s_lshl_b32 s34, s34, 10
    v_lshlrev_b32 v12, 4, v1
    v_add_u32 v12, s34, v12
    s_mul_i32 s34, s24, 9216
    v_lshlrev_b32 v13, 4, v1
    v_add_u32 v13, s34, v13
    s_xor_b32 s35, s24, 4
    s_mul_i32 s35, s35, 9216
    v_lshlrev_b32 v14, 4, v1
    v_add_u32 v14, s35, v14
    """)
    AS = [16, 24, 32]
    RB = 4
    BR = 40
    ACC = 56
    def acc(mt, dt): return ACC + 4*(mt*9 + dt)
    def dma(t):
        b = t % 4
        a(f"s_mov_b32 s37, {t*64*1152}")
        a(f"s_add_u32 m0, s31, {b*STG}")
        a("s_nop 0")
        a("buffer_load_dwordx4 v4, s[16:19], s37 offen lds")
        a(f"s_add_u32 m0, s31, {b*STG + 1024}")
        a("s_nop 0")
        a("buffer_load_dwordx4 v5, s[16:19], s37 offen lds")
        a(f"s_add_u32 m0, s31, {b*STG + 2048}")
        a("s_mov_b64 exec, 0xffff")
        a("buffer_load_dwordx4 v6, s[16:19], s37 offen lds")
        a("s_mov_b64 exec, -1")
    def loadA(t):
        r = AS[t % 3]
        a(f"s_mov_b32 s36, {t*2048}")
        a(f"buffer_load_dwordx2 v[{r}:{r+1}], v2, s[12:15], s36 offen")
        a(f"buffer_load_dwordx2 v[{r+2}:{r+3}], v2, s[12:15], s36 offen offset:512")
        a(f"buffer_load_dwordx2 v[{r+4}:{r+5}], v3, s[12:15], s36 offen")
        a(f"buffer_load_dwordx2 v[{r+6}:{r+7}], v3, s[12:15], s36 offen offset:512")
    def readB(n):
        t = n // 9; dt = n % 9; b = t % 4; r = BR + 4*(n % RB)
        a(f"ds_read_b64_tr_b16 v[{r}:{r+1}], v{8+b} offset:{dt*32}")
        a(f"ds_read_b64_tr_b16 v[{r+2}:{r+3}], v{8+b} offset:{4608 + dt*32}")
    dma(0); loadA(0); dma(1); loadA(1); dma(2)
    a("s_waitcnt vmcnt(14)")
    a("s_barrier")
    for n in range(RB): readB(n)
    NT = 9*NST
    for t in range(NST):
        N = (3 if t+2 <= NST-1 else 0) + (4 if t+1 <= NST-1 else 0)
        a(f"s_waitcnt vmcnt({N})")
        if t < NST-1:
            a("s_barrier")
        if t+3 < NST: dma(t+3)
        if t+2 < NST: loadA(t+2)
        for dt in range(9):
            n = 9*t + dt
            younger = min(RB-1, NT-1-n)
            a(f"s_waitcnt lgkmcnt({2*younger})")
            br = BR + 4*(n % RB)
            for mt in range(2):
                c = f"v[{acc(mt,dt)}:{acc(mt,dt)+3}]"
                src_c = c if t > 0 else "0"
                ar = AS[t % 3] + 4*mt
                a(f"v_mfma_f32_16x16x32_bf16 {c}, v[{br}:{br+3}], v[{ar}:{ar+3}], {src_c}")
            if n + RB < NT: readB(n + RB)
    a("s_nop 7")
    a("s_nop 7")
    a("s_barrier")
    a("s_cmp_eq_u32 s26, 0")
    a("s_cbranch_scc0 g2_ep1")
    for kg in range(2):
        if kg == 1: a.label("g2_ep1")
        send = 1 - kg; keep = kg
        for dt in range(9):
            c = acc(send, dt)
            a(f"ds_write_b128 v13, v[{c}:{c+3}] offset:{dt*1024}")
        a("s_waitcnt lgkmcnt(0)")
        a("s_barrier")
        for dt in range(9):
            c = acc(send, dt)
            a(f"ds_read_b128 v[{c}:{c+3}], v14 offset:{dt*1024}")
        for dt in range(9):
            c = acc(send, dt); k = acc(keep, dt)
            a(f"s_waitcnt lgkmcnt({8-dt})")
            for i in range(4):
                a(f"v_add_f32 v{k+i}, v{k+i}, v{c+i}")
            a(f"s_mov_b32 s36, {dt*1024}")
            a(f"buffer_store_dwordx4 v[{k}:{k+3}], v12, s[20:23], s36 offen")
        a("s_endpgm")

    a.label("conv_start")
    srd(a, 12, 4, 5, SZ_ACT, WS_KVT)
    srd(a, 16, 8, 9, SZ_ACT)
    srd(a, 20, 4, 5, SZ_ACT, WS_Y2T)
    srd(a, 40, 10, 11, 576*2)
    a(f"""
    s_sub_u32 s25, s2, 256
    s_lshl_b32 s25, s25, 3
    s_add_u32 s25, s25, s24                  ; channel d
    s_mul_i32 s30, s24, 10240
    s_lshl_b32 s31, s25, 12                  ; d*4096
    v_lshlrev_b32 v2, 4, v1                  ; lane*16
    v_add_u32 v3, s30, v2
    v_mov_b32 v4, 0
    v_mov_b32 v5, 0
    v_mov_b32 v6, 0
    v_mov_b32 v7, 0
    ds_write_b128 v3, v[4:7]
    ds_write_b128 v3, v[4:7] offset:4160
    ds_write_b128 v3, v[4:7] offset:5184
    s_lshl_b32 s32, s25, 1
    v_mov_b32 v8, s32
    buffer_load_ushort v9, v8, s[40:43], 0 offen
    s_waitcnt lgkmcnt(0)
    """)
    for i in range(4):
        a(f"s_add_u32 s33, s31, {i*1024}")
        a(f"s_add_u32 m0, s30, {64 + i*1024}")
        a("s_nop 0")
        a("buffer_load_dwordx4 v2, s[16:19], s33 offen lds")
        a(f"s_add_u32 m0, s30, {6144 + i*1024}")
        a("s_nop 0")
        a("buffer_load_dwordx4 v2, s[12:15], s33 offen lds")
    a(f"""
    v_and_b32 v10, 31, v1                    ; r / n
    v_lshrrev_b32 v11, 5, v1                 ; kh
    v_lshlrev_b32 v12, 3, v11
    v_sub_u32 v12, v10, v12
    v_add_u32 v12, 9, v12
    v_lshlrev_b32 v12, 1, v12
    v_add_u32 v12, s30, v12
    v_lshlrev_b32 v13, 6, v10
    v_lshl_add_u32 v13, v11, 4, v13
    v_add_u32 v13, 2112, v13
    v_add_u32 v13, s30, v13
    v_add_u32 v14, 2048, v13
    s_waitcnt vmcnt(0)
    v_lshlrev_b32 v9, 16, v9                 ; D as f32
    """)
    P = 4
    CA = 16; CB0 = 32; CB1 = 48; C0 = 64; C1 = 80
    def nreads(i): return 3 if i <= 63 else 2
    def cread(i):
        o = i - 1; sl = i % P
        a(f"ds_read_b128 v[{CA+4*sl}:{CA+4*sl+3}], v12 offset:{32*i}")
        a(f"ds_read_b128 v[{CB1+4*sl}:{CB1+4*sl+3}], v14 offset:{32*(126-o)}")
        if i <= 63:
            a(f"ds_read_b128 v[{CB0+4*sl}:{CB0+4*sl+3}], v13 offset:{32*(126-o)}")
    for i in range(P): cread(i)
    for i in range(128):
        sl = i % P
        younger = sum(nreads(j) for j in range(i+1, min(128, i+P)))
        a(f"s_waitcnt lgkmcnt({younger})")
        c1 = f"v[{C1}:{C1+15}]"; c0 = f"v[{C0}:{C0+15}]"
        a(f"v_mfma_f32_32x32x16_bf16 {c1}, v[{CA+4*sl}:{CA+4*sl+3}], v[{CB1+4*sl}:{CB1+4*sl+3}], {c1 if i>0 else '0'}")
        if i <= 63:
            a(f"v_mfma_f32_32x32x16_bf16 {c0}, v[{CA+4*sl}:{CA+4*sl+3}], v[{CB0+4*sl}:{CB0+4*sl+3}], {c0 if i>0 else '0'}")
        if i + P < 128: cread(i + P)
    a(f"""
    v_lshlrev_b32 v15, 6, v10
    v_lshlrev_b32 v16, 3, v11
    v_sub_u32 v16, 8, v16
    v_add_u32 v15, v15, v16
    v_add_u32 v15, 6144, v15
    v_add_u32 v15, s30, v15
    v_lshlrev_b32 v16, 6, v10
    v_lshl_add_u32 v16, v11, 3, v16
    v_add_u32 v16, s31, v16
    """)
    for T in range(2):
        for q in range(4):
            r = 100 + 2*(T*4+q)
            a(f"ds_read_b64 v[{r}:{r+1}], v15 offset:{2048*T + 16*q}")
    a("s_nop 7")
    a("s_nop 3")
    a("s_waitcnt lgkmcnt(0)")
    for T in range(2):
        C = C0 if T == 0 else C1
        for q in range(4):
            r = 100 + 2*(T*4+q); c = C + 4*q
            a(f"""
            v_and_b32 v20, 0xffff0000, v{r+1}
            v_lshlrev_b32 v21, 16, v{r+1}
            v_and_b32 v22, 0xffff0000, v{r}
            v_lshlrev_b32 v23, 16, v{r}
            v_mul_f32 v20, v20, v9
            v_mul_f32 v21, v21, v9
            v_mul_f32 v22, v22, v9
            v_mul_f32 v23, v23, v9
            v_cvt_pk_bf16_f32 v24, v20, v21
            v_cvt_pk_bf16_f32 v25, v22, v23
            v_cvt_pk_bf16_f32 v26, v{c}, v{c+1}
            v_cvt_pk_bf16_f32 v27, v{c+2}, v{c+3}
            v_lshlrev_b32 v20, 16, v24
            v_and_b32 v21, 0xffff0000, v24
            v_lshlrev_b32 v22, 16, v25
            v_and_b32 v23, 0xffff0000, v25
            v_lshlrev_b32 v28, 16, v26
            v_and_b32 v29, 0xffff0000, v26
            v_lshlrev_b32 v30, 16, v27
            v_and_b32 v31, 0xffff0000, v27
            v_add_f32 v20, v20, v28
            v_add_f32 v21, v21, v29
            v_add_f32 v22, v22, v30
            v_add_f32 v23, v23, v31
            v_cvt_pk_bf16_f32 v{r}, v20, v21
            v_cvt_pk_bf16_f32 v{r+1}, v22, v23
            buffer_store_dwordx2 v[{r}:{r+1}], v16, s[20:23], 0 offen offset:{2048*T + 16*q}
            """)
    a.label("g2_done")
    a("s_endpgm")

def gen_k4(a, G):
    srd = G["srd"]
    WS_XN = G["WS_XN"]; WS_PART = G["WS_PART"]; WS_Y2T = G["WS_Y2T"]
    SZ_ACT = G["SZ_ACT"]; SZ_PART = G["SZ_PART"]
    G["kernel_header"](a, "final_kernel")
    a(f"""
    s_load_dwordx2 s[4:5], s[0:1], 96        ; ws
    s_load_dwordx2 s[6:7], s[0:1], 0         ; q (x)
    s_load_dwordx2 s[8:9], s[0:1], 80        ; out
    s_cmp_ge_u32 s2, 288
    s_cbranch_scc1 k4_done
    s_mov_b32 s34, 0x1c71c71d
    s_mul_hi_u32 s35, s2, s34                ; sgrp = b/9
    s_mul_i32 s36, s35, 9
    s_sub_u32 s36, s2, s36                   ; dgrp
    v_lshrrev_b32 v1, 6, v0
    s_nop 0
    v_readfirstlane_b32 s24, v1              ; wave
    v_and_b32 v1, 63, v0
    s_waitcnt lgkmcnt(0)
    """)
    srd(a, 12, 4, 5, SZ_ACT, WS_Y2T)
    srd(a, 16, 4, 5, SZ_PART, WS_PART)
    srd(a, 20, 4, 5, SZ_ACT, WS_XN)
    srd(a, 40, 6, 7, SZ_ACT)
    srd(a, 44, 8, 9, SZ_ACT)
    a(f"""
    v_lshrrev_b32 v2, 2, v0
    v_and_b32 v3, 3, v0
    s_lshl_b32 s37, s36, 6                   ; 64*dgrp
    v_add_u32 v4, s37, v2
    v_lshlrev_b32 v4, 12, v4
    v_lshl_add_u32 v4, v3, 5, v4
    s_lshl_b32 s38, s35, 7                   ; 128*sgrp
    v_add_u32 v4, s38, v4
    buffer_load_dwordx4 v[8:11], v4, s[12:15], 0 offen
    buffer_load_dwordx4 v[12:15], v4, s[12:15], 0 offen offset:16
    v_mul_u32_u24 v5, 160, v2
    v_lshl_add_u32 v5, v3, 5, v5
    s_lshl_b32 s25, s35, 2
    s_add_u32 s25, s25, s24
    s_mul_i32 s26, s25, 36
    s_lshl_b32 s27, s36, 2
    s_add_u32 s26, s26, s27
    s_lshl_b32 s26, s26, 10
    v_lshlrev_b32 v6, 4, v1
    v_add_u32 v6, s26, v6
    v_and_b32 v7, 15, v1
    s_lshl_b32 s27, s25, 4
    v_add_u32 v7, s27, v7
    v_mul_u32_u24 v7, 1152, v7
    v_lshrrev_b32 v16, 4, v1
    v_lshl_add_u32 v7, v16, 3, v7
    s_lshl_b32 s27, s36, 7
    v_add_u32 v7, s27, v7
    s_mul_i32 s27, s25, 18
    s_lshl_b32 s28, s36, 1
    s_add_u32 s27, s27, s28
    s_lshl_b32 s27, s27, 10
    v_lshlrev_b32 v17, 4, v1
    v_add_u32 v17, s27, v17
    v_lshrrev_b32 v18, 2, v1
    v_mul_u32_u24 v18, 160, v18
    v_and_b32 v19, 3, v1
    v_lshl_add_u32 v18, v19, 3, v18
    s_lshl_b32 s27, s24, 5
    v_add_u32 v18, s27, v18
    s_waitcnt vmcnt(0)
    ds_write_b128 v5, v[8:11]
    ds_write_b128 v5, v[12:15] offset:16
    s_waitcnt lgkmcnt(0)
    s_barrier
    """)
    for dt in range(4):
        for ks in range(4):
            a(f"s_mov_b32 s27, {ks*128*36*1024 + dt*1024}")
            a(f"buffer_load_dwordx4 v[{24+4*ks}:{27+4*ks}], v6, s[16:19], s27 offen")
        a(f"""
        buffer_load_dwordx2 v[40:41], v7, s[40:43], 0 offen offset:{dt*32}
        buffer_load_dwordx2 v[42:43], v17, s[20:23], 0 offen offset:{(dt>>1)*1024 + (dt&1)*8}
        ds_read_b64_tr_b16 v[44:45], v18 offset:{dt*2560}
        s_waitcnt vmcnt(0) lgkmcnt(0)
        """)
        for i in range(4):
            a(f"v_add_f32 v{24+i}, v{24+i}, v{28+i}")
            a(f"v_add_f32 v{32+i}, v{32+i}, v{36+i}")
            a(f"v_add_f32 v{24+i}, v{24+i}, v{32+i}")
        a(f"""
        v_cvt_pk_bf16_f32 v28, v24, v25
        v_cvt_pk_bf16_f32 v29, v26, v27
        ; xn*y2
        v_lshlrev_b32 v46, 16, v42
        v_and_b32 v47, 0xffff0000, v42
        v_lshlrev_b32 v48, 16, v43
        v_and_b32 v49, 0xffff0000, v43
        v_lshlrev_b32 v50, 16, v44
        v_and_b32 v51, 0xffff0000, v44
        v_lshlrev_b32 v52, 16, v45
        v_and_b32 v53, 0xffff0000, v45
        v_mul_f32 v46, v46, v50
        v_mul_f32 v47, v47, v51
        v_mul_f32 v48, v48, v52
        v_mul_f32 v49, v49, v53
        v_cvt_pk_bf16_f32 v30, v46, v47
        v_cvt_pk_bf16_f32 v31, v48, v49
        ; x + that
        v_lshlrev_b32 v46, 16, v40
        v_and_b32 v47, 0xffff0000, v40
        v_lshlrev_b32 v48, 16, v41
        v_and_b32 v49, 0xffff0000, v41
        v_lshlrev_b32 v50, 16, v30
        v_and_b32 v51, 0xffff0000, v30
        v_lshlrev_b32 v52, 16, v31
        v_and_b32 v53, 0xffff0000, v31
        v_add_f32 v46, v46, v50
        v_add_f32 v47, v47, v51
        v_add_f32 v48, v48, v52
        v_add_f32 v49, v49, v53
        v_cvt_pk_bf16_f32 v30, v46, v47
        v_cvt_pk_bf16_f32 v31, v48, v49
        v_lshlrev_b32 v46, 16, v30
        v_and_b32 v47, 0xffff0000, v30
        v_lshlrev_b32 v48, 16, v31
        v_and_b32 v49, 0xffff0000, v31
        v_lshlrev_b32 v50, 16, v28
        v_and_b32 v51, 0xffff0000, v28
        v_lshlrev_b32 v52, 16, v29
        v_and_b32 v53, 0xffff0000, v29
        v_add_f32 v46, v46, v50
        v_add_f32 v47, v47, v51
        v_add_f32 v48, v48, v52
        v_add_f32 v49, v49, v53
        v_cvt_pk_bf16_f32 v54, v46, v47
        v_cvt_pk_bf16_f32 v55, v48, v49
        buffer_store_dwordx2 v[54:55], v7, s[44:47], 0 offen offset:{dt*32}
        s_nop 1
        """)
    a.label("k4_done")
    a("s_endpgm")
```

```python
import sys

NAME = "parallel_sum__ssm_conv_h3__glu_gated_bilinear__prompt"
S, D, F = 2048, 576, 4608
WS_XN   = 0
WS_KVT  = 0x240000
WS_H    = 0x480000
WS_Y2T  = 0x1680000
WS_PART = 0x18C0000
SZ_ACT  = S * D * 2
SZ_H    = S * F * 2
SZ_PART = 4 * S * D * 4
SZ_W    = D * F * 2

class A:
    def __init__(self):
        self.l = []
    def __call__(self, s):
        for line in s.strip("\n").split("\n"):
            self.l.append("    " + line.strip())
    def label(self, s):
        self.l.append(s + ":")
    def raw(self, s):
        self.l.append(s)
    def text(self):
        return "\n".join(self.l) + "\n"

def srd(a, dst, lo, hi, size, off=0):
    if off:
        a(f"s_add_u32 s{dst}, s{lo}, {off}")
        a(f"s_addc_u32 s{dst+1}, s{hi}, 0")
    else:
        a(f"s_mov_b32 s{dst}, s{lo}")
        a(f"s_mov_b32 s{dst+1}, s{hi}")
    a(f"s_mov_b32 s{dst+2}, {size}")
    a(f"s_mov_b32 s{dst+3}, 0x00020000")

def kernel_header(a, name):
    a.raw(f".globl {name}")
    a.raw(".p2align 8")
    a.raw(f".type {name},@function")
    a.label(name)

def kd(name, vgpr, sgpr):
    acc = (vgpr + 3) // 4 * 4
    return f""".amdhsa_kernel {name}
  .amdhsa_next_free_vgpr {vgpr}
  .amdhsa_next_free_sgpr {sgpr}
  .amdhsa_accum_offset {acc}
  .amdhsa_group_segment_fixed_size 0
  .amdhsa_kernarg_size 104
  .amdhsa_user_sgpr_count 2
  .amdhsa_user_sgpr_kernarg_segment_ptr 1
  .amdhsa_system_sgpr_workgroup_id_x 1
.end_amdhsa_kernel
"""

N_LN_WG = 64
N_KV_WG = 144
def gen_prep(a):
    kernel_header(a, "prep_kernel")
    a(f"""
    s_load_dwordx2 s[4:5], s[0:1], 0
    s_load_dwordx2 s[6:7], s[0:1], 8
    s_load_dwordx2 s[8:9], s[0:1], 16
    s_load_dwordx2 s[10:11], s[0:1], 24
    s_load_dwordx2 s[12:13], s[0:1], 96
    s_cmp_ge_u32 s2, {N_LN_WG + N_KV_WG}
    s_cbranch_scc1 prep_done
    s_waitcnt lgkmcnt(0)
    s_cmp_ge_u32 s2, {N_LN_WG}
    s_cbranch_scc1 prep_kv
    """)
    srd(a, 16, 4, 5, SZ_ACT)
    srd(a, 20, 12, 13, SZ_ACT, WS_XN)
    a(f"""
    s_lshl_b32 s3, s2, 5
    v_lshrrev_b32 v1, 3, v0
    v_add_u32 v1, s3, v1                     ; row
    v_and_b32 v2, 7, v0                      ; j
    s_movk_i32 s24, 1152
    v_mul_lo_u32 v3, v1, s24
    v_lshl_add_u32 v3, v2, 4, v3
    """)
    for i in range(9):
        a(f"buffer_load_dwordx4 v[{8+4*i}:{11+4*i}], v3, s[16:19], 0 offen offset:{i*128}")
    a(f"""
    v_lshrrev_b32 v4, 4, v1                  ; stile
    v_mul_u32_u24 v4, 18, v4
    v_lshrrev_b32 v5, 2, v2                  ; j>>2
    v_add_u32 v4, v4, v5
    v_lshlrev_b32 v4, 10, v4                 ; *(1024)
    v_and_b32 v5, 1, v2                      ; j&1
    v_lshlrev_b32 v5, 5, v5                  ; 2*(j&1)*16
    v_and_b32 v6, 15, v1                     ; srow
    v_add_u32 v5, v5, v6
    v_lshl_add_u32 v4, v5, 4, v4
    v_bfe_u32 v5, v2, 1, 1                   ; (j>>1)&1
    v_lshl_add_u32 v4, v5, 3, v4
    s_waitcnt vmcnt(0)
    """)
    X = 48
    for i in range(36):
        a(f"v_lshlrev_b32 v{X+2*i}, 16, v{8+i}")
        a(f"v_and_b32 v{X+2*i+1}, 0xffff0000, v{8+i}")
    for c in range(4):
        a(f"v_add_f32 v{120+c}, v{X+c}, v{X+4+c}")
    for i in range(2, 18):
        for c in range(4):
            a(f"v_add_f32 v{120+c}, v{120+c}, v{X+4*i+c}")
    a("""
    v_add_f32 v120, v120, v121
    v_add_f32 v122, v122, v123
    v_add_f32 v120, v120, v122
    s_nop 1
    v_add_f32_dpp v121, v120, v120 quad_perm:[1,0,3,2] row_mask:0xf bank_mask:0xf
    s_nop 1
    v_add_f32_dpp v120, v121, v121 quad_perm:[2,3,0,1] row_mask:0xf bank_mask:0xf
    s_nop 1
    v_add_f32_dpp v121, v120, v120 row_half_mirror row_mask:0xf bank_mask:0xf
    s_mov_b32 s25, 0x3ae38e39               ; 1/576
    v_mul_f32 v124, s25, v121
    """)
    for c in range(4):
        a(f"v_sub_f32 v125, v{X+c}, v124")
        a(f"v_mul_f32 v{120+c}, v125, v125")
    for i in range(1, 18):
        for c in range(4):
            a(f"v_sub_f32 v125, v{X+4*i+c}, v124")
            a(f"v_fmac_f32 v{120+c}, v125, v125")
    a("""
    v_add_f32 v120, v120, v121
    v_add_f32 v122, v122, v123
    v_add_f32 v120, v120, v122
    s_nop 1
    v_add_f32_dpp v121, v120, v120 quad_perm:[1,0,3,2] row_mask:0xf bank_mask:0xf
    s_nop 1
    v_add_f32_dpp v120, v121, v121 quad_perm:[2,3,0,1] row_mask:0xf bank_mask:0xf
    s_nop 1
    v_add_f32_dpp v121, v120, v120 row_half_mirror row_mask:0xf bank_mask:0xf
    v_mul_f32 v125, s25, v121
    v_cvt_pk_bf16_f32 v126, v124, v125
    v_lshlrev_b32 v124, 16, v126            ; m
    v_and_b32 v125, 0xffff0000, v126        ; v
    s_mov_b32 s26, 0x3727c5ac               ; 1e-5
    v_add_f32 v125, s26, v125
    v_cvt_pk_bf16_f32 v125, v125, v125
    v_lshlrev_b32 v125, 16, v125
    v_sqrt_f32 v125, v125
    s_nop 0
    v_cvt_pk_bf16_f32 v125, v125, v125
    v_lshlrev_b32 v125, 16, v125            ; den
    v_rcp_f32 v126, v125                    ; r
    s_nop 0
    """)
    for i in range(36):
        x0, x1 = X + 2*i, X + 2*i + 1
        a(f"""
        v_sub_f32 v{x0}, v{x0}, v124
        v_sub_f32 v{x1}, v{x1}, v124
        v_cvt_pk_bf16_f32 v127, v{x0}, v{x1}
        v_lshlrev_b32 v{x0}, 16, v127
        v_and_b32 v{x1}, 0xffff0000, v127
        v_mul_f32 v120, v{x0}, v126
        v_mul_f32 v121, v{x1}, v126
        v_fma_f32 v122, -v120, v125, v{x0}
        v_fma_f32 v123, -v121, v125, v{x1}
        v_fmac_f32 v120, v122, v126
        v_fmac_f32 v121, v123, v126
        v_cvt_pk_bf16_f32 v{8+i}, v120, v121
        """)
    for i in range(9):
        a(f"s_movk_i32 s27, {i*2048}")
        a(f"buffer_store_dwordx2 v[{8+4*i}:{9+4*i}], v4, s[20:23], s27 offen")
        a(f"buffer_store_dwordx2 v[{10+4*i}:{11+4*i}], v4, s[20:23], s27 offen offset:256")
    a("s_endpgm")

    a.label("prep_kv")
    srd(a, 16, 6, 7, SZ_ACT)
    srd(a, 20, 8, 9, SZ_ACT)
    srd(a, 24, 10, 11, D*4*2)
    srd(a, 28, 12, 13, SZ_ACT, WS_KVT)
    a(f"""
    v_lshrrev_b32 v1, 6, v0
    s_nop 0
    v_readfirstlane_b32 s32, v1
    s_sub_u32 s33, s2, {N_LN_WG}
    s_lshl_b32 s33, s33, 2
    s_add_u32 s33, s33, s32                  ; W 0..575
    s_mov_b32 s34, 0x1c71c71d                ; ceil(2^32/9)
    s_mul_hi_u32 s35, s33, s34               ; sgroup = W/9
    s_mul_i32 s36, s35, 9
    s_sub_u32 s36, s33, s36                  ; dgroup = W%9
    v_and_b32 v1, 63, v0                     ; lane
    v_and_b32 v2, 7, v1                      ; dchunk
    v_lshrrev_b32 v3, 3, v1                  ; sblk
    s_lshl_b32 s37, s35, 5                   ; sgroup*32
    v_lshl_add_u32 v3, v3, 2, s37            ; s0
    s_lshl_b32 s38, s36, 7
    v_lshl_add_u32 v4, v2, 4, s38
    s_movk_i32 s39, 1152
    v_mul_lo_u32 v5, v3, s39
    v_add_u32 v5, v5, v4                     ; s0*1152 + d0*2
    v_subrev_u32 v6, {3*1152}, v5
    """)
    a("buffer_load_dwordx4 v[16:19], v6, s[16:19], 0 offen")
    a("buffer_load_dwordx4 v[20:23], v6, s[16:19], 0 offen offset:1152")
    a("buffer_load_dwordx4 v[24:27], v6, s[16:19], 0 offen offset:2304")
    for r in range(4):
        a(f"buffer_load_dwordx4 v[{28+4*r}:{31+4*r}], v5, s[16:19], 0 offen offset:{r*1152}")
    for r in range(4):
        a(f"buffer_load_dwordx4 v[{44+4*r}:{47+4*r}], v5, s[20:23], 0 offen offset:{r*1152}")
    a("v_lshlrev_b32 v7, 2, v4")
    for r in range(4):
        a(f"buffer_load_dwordx4 v[{60+4*r}:{63+4*r}], v7, s[24:27], 0 offen offset:{r*16}")
    a("""
    v_lshlrev_b32 v8, 11, v4                 ; d0*2*2048
    v_and_b32 v9, 0xfffffff8, v3
    v_lshl_add_u32 v8, v9, 1, v8
    v_and_b32 v9, 4, v3
    v_lshlrev_b32 v9, 1, v9                  ; 8 if s0&4
    v_sub_u32 v9, 8, v9                      ; 8 - that
    v_add_u32 v8, v8, v9
    s_waitcnt vmcnt(0)
    """)
    KF = 80
    WF = 96
    VF = 104
    AC = 112
    PR = 120
    T  = 122
    OUT = 124
    for p in range(4):
        for r in range(7):
            a(f"v_lshlrev_b32 v{KF+2*r}, 16, v{16+4*r+p}")
            a(f"v_and_b32 v{KF+2*r+1}, 0xffff0000, v{16+4*r+p}")
        for r in range(4):
            a(f"v_lshlrev_b32 v{VF+2*r}, 16, v{44+4*r+p}")
            a(f"v_and_b32 v{VF+2*r+1}, 0xffff0000, v{44+4*r+p}")
        for c in range(2):
            ch = 2*p + c
            a(f"v_lshlrev_b32 v{WF+4*c+0}, 16, v{60+2*ch}")
            a(f"v_and_b32 v{WF+4*c+1}, 0xffff0000, v{60+2*ch}")
            a(f"v_lshlrev_b32 v{WF+4*c+2}, 16, v{61+2*ch}")
            a(f"v_and_b32 v{WF+4*c+3}, 0xffff0000, v{61+2*ch}")
        for r in range(4):
            for t in range(4):
                a(f"v_mul_f32 v{PR}, v{KF+2*(r+t)}, v{WF+3-t}")
                a(f"v_mul_f32 v{PR+1}, v{KF+2*(r+t)+1}, v{WF+4+3-t}")
                a(f"v_cvt_pk_bf16_f32 v{T}, v{PR}, v{PR+1}")
                if t == 0:
                    a(f"v_lshlrev_b32 v{AC+2*r}, 16, v{T}")
                    a(f"v_and_b32 v{AC+2*r+1}, 0xffff0000, v{T}")
                else:
                    a(f"v_lshlrev_b32 v{PR}, 16, v{T}")
                    a(f"v_and_b32 v{PR+1}, 0xffff0000, v{T}")
                    a(f"v_add_f32 v{PR}, v{AC+2*r}, v{PR}")
                    a(f"v_add_f32 v{PR+1}, v{AC+2*r+1}, v{PR+1}")
                    a(f"v_cvt_pk_bf16_f32 v{T}, v{PR}, v{PR+1}")
                    a(f"v_lshlrev_b32 v{AC+2*r}, 16, v{T}")
                    a(f"v_and_b32 v{AC+2*r+1}, 0xffff0000, v{T}")
            a(f"v_mul_f32 v{AC+2*r}, v{AC+2*r}, v{VF+2*r}")
            a(f"v_mul_f32 v{AC+2*r+1}, v{AC+2*r+1}, v{VF+2*r+1}")
        for c in range(2):
            a(f"v_cvt_pk_bf16_f32 v{OUT+2*c}, v{AC+6+c}, v{AC+4+c}")
            a(f"v_cvt_pk_bf16_f32 v{OUT+2*c+1}, v{AC+2+c}, v{AC+0+c}")
        for c in range(2):
            ch = 2*p + c
            a(f"s_movk_i32 s40, {ch*4096 & 0xffff}" if ch*4096 < 32768 else f"s_mov_b32 s40, {ch*4096}")
            a(f"buffer_store_dwordx2 v[{OUT+2*c}:{OUT+2*c+1}], v8, s[28:31], s40 offen")
        a("s_nop 1")
    a.label("prep_done")
    a("s_endpgm")

HEADER = open("cdna_kernels/%s.s.ref" % NAME).read().split("; Override launch geometry")[0]

def main():
    a = A()
    launches = []
    kds = []
    gen_prep(a); launches.append(("prep_kernel", N_LN_WG + N_KV_WG, 256, 0)); kds.append(kd("prep_kernel", 128, 48))
    import gen2
    gen2.add(a, launches, kds, globals())
    out = HEADER
    for (k, g, b, l) in launches:
        out += f"; @launch kernel={k} grid=({g},1,1) block=({b},1,1) lds={l}\n"
    out += '.amdgcn_target "amdgcn-amd-amdhsa--gfx950"\n.text\n'
    out += a.text()
    out += '.section .rodata,"a"\n'
    for k in kds:
        out += ".p2align 6\n" + k
    open("cdna_kernels/%s.s" % NAME, "w").write(out)

if __name__ == "__main__":
    main()
```

```python
def add(a, launches, kds, G):
    gen_gemm1(a, G); launches.append(("gemm1_kernel", 256, 512, 4*G1_STG)); kds.append(G["kd"]("gemm1_kernel", 256, 96))
    try:
        import gen3
        gen3.add(a, launches, kds, G)
    except ImportError:
        pass

G1_STG = 16384 + 18432

import os
G1_NODMA = os.environ.get('G1_NODMA')
G1_NOMFMA = os.environ.get('G1_NOMFMA')
G1_NOBAR = os.environ.get('G1_NOBAR')
G1_STAMP = os.environ.get('G1_STAMP')
FUSE_PREP = bool(os.environ.get('FUSE_PREP'))
G1_NOREAD = os.environ.get('G1_NOREAD')
def gen_gemm1(a, G):
    srd = G["srd"]; WS_XN = G["WS_XN"]; WS_H = G["WS_H"]; SZ_ACT = G["SZ_ACT"]; SZ_H = G["SZ_H"]; SZ_W = G["SZ_W"]
    G["kernel_header"](a, "gemm1_kernel")
    STG = G1_STG
    NST = 18
    a(f"""
    s_load_dwordx2 s[4:5], s[0:1], 96
    s_load_dwordx2 s[6:7], s[0:1], 56
    s_load_dwordx2 s[8:9], s[0:1], 64
    s_load_dwordx2 s[60:61], s[0:1], 0       ; x
    s_load_dwordx2 s[62:63], s[0:1], 8       ; k
    s_load_dwordx2 s[64:65], s[0:1], 16      ; v
    s_load_dwordx2 s[66:67], s[0:1], 24      ; shift_k
    s_load_dwordx2 s[68:69], s[0:1], 88
    s_cmp_ge_u32 s2, 256
    s_cbranch_scc1 g1_done
    s_memtime s[48:49]
    v_lshrrev_b32 v1, 6, v0
    s_nop 0
    v_readfirstlane_b32 s24, v1              ; wave
    v_and_b32 v1, 63, v0                     ; lane
    s_and_b32 s25, s24, 3                    ; mw
    s_lshr_b32 s26, s24, 2                   ; gu
    s_and_b32 s28, s2, 7
    s_lshl_b32 s28, s28, 2
    s_lshr_b32 s27, s2, 3                    ; idx
    s_and_b32 s29, s27, 3
    s_add_u32 s28, s28, s29                  ; nblk
    s_lshr_b32 s27, s27, 2                   ; mblk
    s_waitcnt lgkmcnt(0)
    s_cmp_eq_u32 s26, 0
    s_cselect_b32 s6, s6, s8
    s_cselect_b32 s7, s7, s9
    """)
    srd(a, 12, 4, 5, SZ_ACT, WS_XN)
    srd(a, 16, 6, 7, SZ_W)
    srd(a, 20, 4, 5, SZ_H, WS_H)
    a(f"""
    s_lshl_b32 s32, s27, 4                   ; mblk*16
    s_lshl_b32 s33, s24, 1                   ; 2w
    s_add_u32 s32, s32, s33
    s_mul_i32 s32, s32, {18*1024}
    v_lshlrev_b32 v2, 4, v1
    v_add_u32 v2, s32, v2                    ; voffA0
    v_add_u32 v3, {18*1024}, v2              ; voffA1
    s_lshl_b32 s33, s25, 3                   ; 8*mw
    s_mul_i32 s33, s33, 9216
    s_mul_i32 s34, s28, 288
    s_add_u32 s33, s33, s34
    """)
    for i in range(3):
        a(f"""
        v_add_u32 v20, {64*i}, v1            ; q
        v_mul_u32_u24 v21, 3641, v20
        v_lshrrev_b32 v21, 16, v21           ; row = q/18
        v_mul_u32_u24 v22, 18, v21
        v_sub_u32 v22, v20, v22              ; c
        v_mul_u32_u24 v21, 9216, v21
        v_lshl_add_u32 v21, v22, 4, v21
        v_add_u32 v{4+i}, s33, v21
        """)
    a(f"""
    s_lshl_b32 s30, s24, 11                  ; w*2048
    s_mul_i32 s31, s26, 9216
    s_mul_i32 s34, s25, 2304
    s_add_u32 s31, s31, s34
    s_add_u32 s31, s31, 16384
    s_lshl_b32 s34, s25, 12                  ; mw*4096
    v_lshlrev_b32 v8, 4, v1
    v_add_u32 v8, s34, v8                    ; vA[0]
    v_lshrrev_b32 v12, 2, v1
    v_mul_u32_u24 v12, 288, v12
    v_and_b32 v13, 3, v1
    v_lshl_add_u32 v12, v13, 3, v12
    s_mul_i32 s34, s26, 9216
    s_add_u32 s34, s34, 16384
    v_add_u32 v12, s34, v12                  ; vB[0]
    """)
    for b in range(1, 4):
        a(f"v_add_u32 v{8+b}, {b*STG}, v8")
        a(f"v_add_u32 v{12+b}, {b*STG}, v12")
    a(f"""
    s_lshl_b32 s34, s27, 4
    s_lshl_b32 s35, s25, 2
    s_add_u32 s34, s34, s35                  ; mblk*16+4mw
    s_mul_i32 s34, s34, 144
    s_mul_i32 s35, s28, 9
    s_lshr_b32 s35, s35, 1
    s_add_u32 s34, s34, s35
    s_lshl_b32 s34, s34, 10
    v_lshlrev_b32 v16, 4, v1
    v_add_u32 v16, s34, v16                  ; voffH
    s_mul_i32 s34, s24, 9216
    v_lshlrev_b32 v17, 3, v1
    v_add_u32 v17, s34, v17
    s_xor_b32 s35, s24, 4
    s_mul_i32 s35, s35, 9216
    v_lshlrev_b32 v18, 3, v1
    v_add_u32 v18, s35, v18
    """)
    AF = [44, 60]
    BF = 76
    ACC = 112
    def acc(mt, ft): return ACC + 4*(mt*9 + ft)

    def dma_piece(t, i):
        b = t % 4
        if i == 0:
            a(f"s_mov_b32 s36, {t*1024}")
            a(f"s_add_u32 m0, s30, {b*STG}")
            a(f"s_mov_b32 s37, {t*294912}")
            a("buffer_load_dwordx4 v2, s[12:15], s36 offen lds")
        elif i == 1:
            a(f"s_add_u32 m0, s30, {b*STG + 1024}")
            a("s_nop 0")
            a("buffer_load_dwordx4 v3, s[12:15], s36 offen lds")
        elif i == 2:
            a(f"s_add_u32 m0, s31, {b*STG}")
            a("s_nop 0")
            a("buffer_load_dwordx4 v4, s[16:19], s37 offen lds")
        elif i == 3:
            a(f"s_add_u32 m0, s31, {b*STG + 1024}")
            a("s_nop 0")
            a("buffer_load_dwordx4 v5, s[16:19], s37 offen lds")
        else:
            a(f"s_add_u32 m0, s31, {b*STG + 2048}")
            a("s_mov_b64 exec, 0xffff")
            a("buffer_load_dwordx4 v6, s[16:19], s37 offen lds")
            a("s_mov_b64 exec, -1")
    def dma(t):
        for i in range(5): dma_piece(t, i)

    def readA(t):
        b = t % 4; r = AF[t % 2]
        for mt in range(4):
            a(f"ds_read_b128 v[{r+4*mt}:{r+4*mt+3}], v{8+b} offset:{mt*1024}")
    def readB(t, ft):
        b = t % 4; r = BF + 4*ft
        a(f"ds_read_b64_tr_b16 v[{r}:{r+1}], v{12+b} offset:{ft*32}")
        a(f"ds_read_b64_tr_b16 v[{r+2}:{r+3}], v{12+b} offset:{4608 + ft*32}")

    if not FUSE_PREP:
        dma(0); dma(1); dma(2)
        a("s_waitcnt vmcnt(10)")
        a("s_barrier")
    else:
        def bdma():
            for t in range(3):
                a(f"s_mov_b32 s37, {t*294912}")
                for i in (2, 3, 4): dma_piece(t, i)
        gen_ln_kv(a, G, bdma)
        for t in range(3):
            for i in (0, 1): dma_piece(t, i)
        a("s_waitcnt vmcnt(4)")
        a("s_barrier")
    if G1_STAMP: a("s_memtime s[50:51]"); a("s_waitcnt lgkmcnt(0)")
    readA(0)
    for ft in range(9): readB(0, ft)
    for t in range(NST):
        last = (t == NST-1)
        if t == 0: a("s_waitcnt lgkmcnt(0)")
        for ft in range(9):
            if t > 0:
                a(f"s_waitcnt lgkmcnt({12 if not last else min(15, 2*(8-ft))})")
            for mt in range(4):
                c = f"v[{acc(mt,ft)}:{acc(mt,ft)+3}]"
                src_c = c if t > 0 else "0"
                a(f"v_mfma_f32_16x16x32_bf16 {c}, v[{BF+4*ft}:{BF+4*ft+3}], v[{AF[t%2]+4*mt}:{AF[t%2]+4*mt+3}], {src_c}")
            if not last:
                if ft == 0:
                    a(f"s_waitcnt vmcnt({2 if (t == 0 and FUSE_PREP) else (5 if t+2 < NST else 0)})")
                    a("s_barrier")
                    readA(t+1)
                readB(t+1, ft)
                if 1 <= ft <= 5 and t + 3 < NST: dma_piece(t+3, ft-1)
    a("s_nop 7")
    a("s_nop 7")
    if G1_STAMP: a("s_memtime s[52:53]"); a("s_waitcnt lgkmcnt(0)")
    a("s_barrier")
    for mt in range(4):
        for ft in range(9):
            c = acc(mt, ft)
            a(f"v_cvt_pk_bf16_f32 v{c}, v{c}, v{c+1}")
            a(f"v_cvt_pk_bf16_f32 v{c+1}, v{c+2}, v{c+3}")
    a("s_and_b32 s36, s28, 1")
    a("s_lshl_b32 s36, s36, 1")
    a("s_add_u32 s36, s36, s26")
    a("s_cmp_eq_u32 s36, 1")
    a("s_cbranch_scc1 g1_ep1")
    a("s_cmp_eq_u32 s36, 2")
    a("s_cbranch_scc1 g1_ep2")
    a("s_cmp_eq_u32 s36, 3")
    a("s_cbranch_scc1 g1_ep3")
    for var in range(4):
        gu = var & 1; odd = var >> 1
        if var > 0: a.label(f"g1_ep{var}")
        send = [2, 3] if gu == 0 else [0, 1]
        keep = [0, 1] if gu == 0 else [2, 3]
        for i, mt in enumerate(send):
            for ft in range(9):
                c = acc(mt, ft)
                a(f"ds_write_b64 v17, v[{c}:{c+1}] offset:{(i*9+ft)*512}")
        a("s_waitcnt lgkmcnt(0)")
        a("s_barrier")
        for i, mt in enumerate(keep):
            for ft in range(9):
                c = acc(mt, ft)
                a(f"ds_read_b64 v[{c+2}:{c+3}], v18 offset:{(i*9+ft)*512}")
        n = 0
        def prod(c, dst):
            a(f"""
            v_lshlrev_b32 v20, 16, v{c}
            v_and_b32 v21, 0xffff0000, v{c}
            v_lshlrev_b32 v22, 16, v{c+1}
            v_and_b32 v23, 0xffff0000, v{c+1}
            v_lshlrev_b32 v24, 16, v{c+2}
            v_and_b32 v25, 0xffff0000, v{c+2}
            v_lshlrev_b32 v26, 16, v{c+3}
            v_and_b32 v27, 0xffff0000, v{c+3}
            v_mul_f32 v20, v20, v24
            v_mul_f32 v21, v21, v25
            v_mul_f32 v22, v22, v26
            v_mul_f32 v23, v23, v27
            v_cvt_pk_bf16_f32 v{dst}, v20, v21
            v_cvt_pk_bf16_f32 v{dst+1}, v22, v23
            """)
        for i, mt in enumerate(keep):
            groups = [[0,1],[2,3],[4,5],[6,7],[8]] if not odd else [[0],[1,2],[3,4],[5,6],[7,8]]
            for gi, g in enumerate(groups):
                c0 = acc(mt, g[0])
                n += len(g)
                a(f"s_waitcnt lgkmcnt({min(15, 18-n)})")
                prod(c0, c0)
                if len(g) == 2:
                    prod(acc(mt, g[1]), c0+2)
                    a(f"s_mov_b32 s36, {mt*147456 + gi*1024}")
                    a(f"buffer_store_dwordx4 v[{c0}:{c0+3}], v16, s[20:23], s36 offen sc1")
                else:
                    a(f"s_mov_b32 s36, {mt*147456 + gi*1024 + (8 if odd else 0)}")
                    a(f"buffer_store_dwordx2 v[{c0}:{c0+1}], v16, s[20:23], s36 offen sc1")
        if G1_STAMP:
            a("s_waitcnt vmcnt(0)")
            a("s_memtime s[54:55]")
            a("s_waitcnt lgkmcnt(0)")
            a("s_sub_u32 s50, s50, s48")
            a("s_sub_u32 s52, s52, s48")
            a("s_sub_u32 s54, s54, s48")
            a("v_mov_b32 v20, s50")
            a("v_mov_b32 v21, s52")
            a("v_mov_b32 v22, s54")
            a("v_mov_b32 v23, 0")
            a("s_lshl_b32 s36, s2, 3")
            a("s_add_u32 s36, s36, s24")
            a("s_lshl_b32 s36, s36, 4")
            a("s_add_u32 s36, s36, 0x2F00000")
            a("v_mov_b32 v24, s36")
            a("s_add_u32 s56, s4, 0")
            a("s_addc_u32 s57, s5, 0")
            a("s_mov_b32 s58, 0x3000000")
            a("s_mov_b32 s59, 0x00020000")
            a("s_mov_b64 exec, 1")
            a("buffer_store_dwordx4 v[20:23], v24, s[56:59], 0 offen")
        a("s_endpgm")
    a.label("g1_done")
    a("s_endpgm")


def gen_ln_kv(a, G, dma_cb):
    srd = G["srd"]; SZ_ACT = G["SZ_ACT"]; WS_KVT = G["WS_KVT"]
    srd(a, 72, 60, 61, SZ_ACT)
    srd(a, 76, 68, 69, 256)
    a(f"""
    s_lshl_b32 s70, s2, 3
    s_add_u32 s70, s70, s24                  ; row
    s_mul_i32 s71, s70, 1152
    v_lshlrev_b32 v112, 3, v1
    v_add_u32 v112, s71, v112
    v_mov_b32 v118, 0
    v_mov_b32 v119, 0
    buffer_load_dwordx2 v[114:115], v112, s[72:75], 0 offen
    buffer_load_dwordx2 v[116:117], v112, s[72:75], 0 offen offset:512
    s_mov_b64 exec, 0xffff
    buffer_load_dwordx2 v[118:119], v112, s[72:75], 0 offen offset:1024
    s_mov_b64 exec, -1
    s_lshr_b32 s71, s70, 4
    s_mul_i32 s71, s71, {18*1024}
    s_and_b32 s80, s70, 15
    s_lshl_b32 s80, s80, 4
    s_add_u32 s71, s71, s80
    v_lshrrev_b32 v113, 3, v1
    v_lshlrev_b32 v113, 10, v113
    v_and_b32 v120, 3, v1
    v_lshl_add_u32 v113, v120, 8, v113
    v_bfe_u32 v120, v1, 2, 1
    v_lshl_add_u32 v113, v120, 3, v113
    v_add_u32 v113, s71, v113
    """)
    dma_cb()
    a("s_waitcnt vmcnt(9)")
    srd(a, 40, 62, 63, SZ_ACT)
    srd(a, 84, 64, 65, SZ_ACT)
    srd(a, 88, 66, 67, 576*4*2)
    srd(a, 92, 4, 5, SZ_ACT, WS_KVT)
    a(f"""
    s_lshl_b32 s44, s24, 8
    s_add_u32 s44, s44, s2                   ; u
    s_cmp_ge_u32 s44, 1152
    s_cbranch_scc1 g1_nokv0
    s_mov_b32 s45, 0x1c71c71d
    s_mul_hi_u32 s46, s44, s45               ; sgroup = u/9
    s_mul_i32 s47, s46, 9
    s_sub_u32 s47, s44, s47                  ; dgroup
    v_and_b32 v144, 7, v1                    ; dchunk
    v_lshrrev_b32 v145, 3, v1                ; sblk
    s_lshl_b32 s38, s46, 4
    v_lshl_add_u32 v145, v145, 1, s38        ; s0
    s_lshl_b32 s38, s47, 7
    v_lshl_add_u32 v146, v144, 4, s38        ; d0*2
    s_movk_i32 s39, 1152
    v_mul_lo_u32 v147, v145, s39
    v_add_u32 v147, v147, v146
    v_subrev_u32 v148, {3*1152}, v147
    v_subrev_u32 v149, {2*1152}, v147
    v_subrev_u32 v150, {1*1152}, v147
    buffer_load_dwordx4 v[152:155], v148, s[40:43], 0 offen
    buffer_load_dwordx4 v[156:159], v149, s[40:43], 0 offen
    buffer_load_dwordx4 v[160:163], v150, s[40:43], 0 offen
    buffer_load_dwordx4 v[164:167], v147, s[40:43], 0 offen
    buffer_load_dwordx4 v[168:171], v147, s[40:43], 0 offen offset:1152
    buffer_load_dwordx4 v[172:175], v147, s[84:87], 0 offen
    buffer_load_dwordx4 v[176:179], v147, s[84:87], 0 offen offset:1152
    v_lshlrev_b32 v149, 2, v146
    buffer_load_dwordx4 v[180:183], v149, s[88:91], 0 offen
    buffer_load_dwordx4 v[184:187], v149, s[88:91], 0 offen offset:16
    buffer_load_dwordx4 v[188:191], v149, s[88:91], 0 offen offset:32
    buffer_load_dwordx4 v[192:195], v149, s[88:91], 0 offen offset:48
    v_lshlrev_b32 v150, 11, v146
    v_and_b32 v151, 0xfffffff8, v145
    v_lshl_add_u32 v150, v151, 1, v150
    v_and_b32 v151, 7, v145
    v_sub_u32 v151, 6, v151
    v_lshl_add_u32 v150, v151, 1, v150
    """)
    a.label("g1_nokv0")
    F = 120
    for i in range(6):
        a(f"v_lshlrev_b32 v{F+2*i}, 16, v{114+i}")
        a(f"v_and_b32 v{F+2*i+1}, 0xffff0000, v{114+i}")
    def wave_sum(r, t):
        a(f"""
        s_nop 1
        v_add_f32_dpp v{t}, v{r}, v{r} quad_perm:[1,0,3,2] row_mask:0xf bank_mask:0xf
        s_nop 1
        v_add_f32_dpp v{r}, v{t}, v{t} quad_perm:[2,3,0,1] row_mask:0xf bank_mask:0xf
        s_nop 1
        v_add_f32_dpp v{t}, v{r}, v{r} row_half_mirror row_mask:0xf bank_mask:0xf
        s_nop 1
        v_add_f32_dpp v{r}, v{t}, v{t} row_mirror row_mask:0xf bank_mask:0xf
        s_nop 0
        v_readlane_b32 s80, v{r}, 0
        v_readlane_b32 s81, v{r}, 16
        v_readlane_b32 s82, v{r}, 32
        v_readlane_b32 s83, v{r}, 48
        s_nop 1
        v_mov_b32 v{r}, s80
        v_add_f32 v{r}, s81, v{r}
        v_add_f32 v{r}, s82, v{r}
        v_add_f32 v{r}, s83, v{r}
        """)
    a(f"v_add_f32 v134, v{F}, v{F+1}")
    for i in range(2, 12): a(f"v_add_f32 v134, v134, v{F+i}")
    wave_sum(134, 135)
    a(f"""
    s_mov_b32 s84, 0x3ae38e39
    v_mul_f32 v136, s84, v134                ; mean
    v_sub_f32 v137, v{F}, v136
    v_mul_f32 v134, v137, v137
    """)
    for i in range(1, 8):
        a(f"v_sub_f32 v137, v{F+i}, v136")
        a(f"v_fmac_f32 v134, v137, v137")
    a("s_mov_b64 exec, 0xffff")
    for i in range(8, 12):
        a(f"v_sub_f32 v137, v{F+i}, v136")
        a(f"v_fmac_f32 v134, v137, v137")
    a("s_mov_b64 exec, -1")
    wave_sum(134, 135)
    a(f"""
    v_mul_f32 v137, s84, v134                ; var
    v_cvt_pk_bf16_f32 v138, v136, v137
    v_lshlrev_b32 v136, 16, v138             ; m
    v_and_b32 v137, 0xffff0000, v138
    s_mov_b32 s85, 0x3727c5ac
    v_add_f32 v137, s85, v137
    v_cvt_pk_bf16_f32 v137, v137, v137
    v_lshlrev_b32 v137, 16, v137
    v_sqrt_f32 v137, v137
    s_nop 0
    v_cvt_pk_bf16_f32 v137, v137, v137
    v_lshlrev_b32 v137, 16, v137             ; den
    v_rcp_f32 v138, v137
    s_nop 0
    """)
    for i in range(6):
        x0, x1 = F + 2*i, F + 2*i + 1
        a(f"""
        v_sub_f32 v{x0}, v{x0}, v136
        v_sub_f32 v{x1}, v{x1}, v136
        v_cvt_pk_bf16_f32 v139, v{x0}, v{x1}
        v_lshlrev_b32 v{x0}, 16, v139
        v_and_b32 v{x1}, 0xffff0000, v139
        v_mul_f32 v140, v{x0}, v138
        v_mul_f32 v141, v{x1}, v138
        v_fma_f32 v142, -v140, v137, v{x0}
        v_fma_f32 v143, -v141, v137, v{x1}
        v_fmac_f32 v140, v142, v138
        v_fmac_f32 v141, v143, v138
        v_cvt_pk_bf16_f32 v{114+i}, v140, v141
        """)
    a(f"""
    s_movk_i32 s80, 8192
    s_movk_i32 s81, 16384
    buffer_store_dwordx2 v[114:115], v113, s[12:15], 0 offen sc1
    buffer_store_dwordx2 v[116:117], v113, s[12:15], s80 offen sc1
    s_mov_b64 exec, 0xffff
    buffer_store_dwordx2 v[118:119], v113, s[12:15], s81 offen sc1
    s_mov_b64 exec, -1
    s_waitcnt vmcnt(0)
    s_barrier
    s_cmp_lg_u32 s24, 0
    s_cbranch_scc1 g1_noflag
    v_mov_b32 v112, s2
    v_mov_b32 v113, 1
    s_mov_b64 exec, 1
    buffer_store_byte v113, v112, s[76:79], 0 offen sc1
    s_mov_b64 exec, -1
    """)
    a.label("g1_noflag")
    a("s_cmp_ge_u32 s44, 1152")
    a("s_cbranch_scc1 g1_nokv")
    KF = 200; WF = 210; VF = 218; AC = 222; PR = 226; T = 228; OUT = 230
    for p in range(4):
        for r in range(5):
            a(f"v_lshlrev_b32 v{KF+2*r}, 16, v{152+4*r+p}")
            a(f"v_and_b32 v{KF+2*r+1}, 0xffff0000, v{152+4*r+p}")
        for r in range(2):
            a(f"v_lshlrev_b32 v{VF+2*r}, 16, v{172+4*r+p}")
            a(f"v_and_b32 v{VF+2*r+1}, 0xffff0000, v{172+4*r+p}")
        for c in range(2):
            ch = 2*p + c
            a(f"v_lshlrev_b32 v{WF+4*c+0}, 16, v{180+2*ch}")
            a(f"v_and_b32 v{WF+4*c+1}, 0xffff0000, v{180+2*ch}")
            a(f"v_lshlrev_b32 v{WF+4*c+2}, 16, v{181+2*ch}")
            a(f"v_and_b32 v{WF+4*c+3}, 0xffff0000, v{181+2*ch}")
        for r in range(2):
            for t in range(4):
                a(f"v_mul_f32 v{PR}, v{KF+2*(r+t)}, v{WF+3-t}")
                a(f"v_mul_f32 v{PR+1}, v{KF+2*(r+t)+1}, v{WF+4+3-t}")
                a(f"v_cvt_pk_bf16_f32 v{T}, v{PR}, v{PR+1}")
                if t == 0:
                    a(f"v_lshlrev_b32 v{AC+2*r}, 16, v{T}")
                    a(f"v_and_b32 v{AC+2*r+1}, 0xffff0000, v{T}")
                else:
                    a(f"v_lshlrev_b32 v{PR}, 16, v{T}")
                    a(f"v_and_b32 v{PR+1}, 0xffff0000, v{T}")
                    a(f"v_add_f32 v{PR}, v{AC+2*r}, v{PR}")
                    a(f"v_add_f32 v{PR+1}, v{AC+2*r+1}, v{PR+1}")
                    a(f"v_cvt_pk_bf16_f32 v{T}, v{PR}, v{PR+1}")
                    a(f"v_lshlrev_b32 v{AC+2*r}, 16, v{T}")
                    a(f"v_and_b32 v{AC+2*r+1}, 0xffff0000, v{T}")
            a(f"v_mul_f32 v{AC+2*r}, v{AC+2*r}, v{VF+2*r}")
            a(f"v_mul_f32 v{AC+2*r+1}, v{AC+2*r+1}, v{VF+2*r+1}")
        for c in range(2):
            ch = 2*p + c
            a(f"v_cvt_pk_bf16_f32 v{OUT+2*p+c}, v{AC+2+c}, v{AC+0+c}")
            a(f"s_mov_b32 s38, {ch*4096}")
            a(f"buffer_store_dword v{OUT+2*p+c}, v150, s[92:95], s38 offen")
    a.label("g1_nokv")
    a(f"""
    s_cmp_lg_u32 s24, 0
    s_cbranch_scc1 g1_nopoll
    s_lshl_b32 s70, s27, 5
    v_mov_b32 v112, s70
    s_mov_b64 exec, 1
    s_mov_b32 s71, 0
    s_mov_b32 s86, 0x01010101
    """)
    a.label("g1_poll")
    a(f"""
    buffer_load_dwordx4 v[116:119], v112, s[76:79], 0 offen sc1
    buffer_load_dwordx4 v[120:123], v112, s[76:79], 0 offen offset:16 sc1
    s_waitcnt vmcnt(0)
    v_and_b32 v116, v116, v117
    v_and_b32 v118, v118, v119
    v_and_b32 v120, v120, v121
    v_and_b32 v122, v122, v123
    v_and_b32 v116, v116, v118
    v_and_b32 v120, v120, v122
    v_and_b32 v116, v116, v120
    s_nop 0
    v_readfirstlane_b32 s80, v116
    s_add_u32 s71, s71, 1
    s_cmp_ge_u32 s71, 0x400000
    s_cbranch_scc1 g1_polldone
    s_cmp_eq_u32 s80, s86
    s_cbranch_scc1 g1_polldone
    s_sleep 1
    s_branch g1_poll
    """)
    a.label("g1_polldone")
    a("s_mov_b64 exec, -1")
    a("buffer_inv sc1")
    a("s_waitcnt vmcnt(0)")
    a.label("g1_nopoll")
    a("s_barrier")
```

```python
import os
G2_STAMP = os.environ.get('G2_STAMP')
FUSE_FINAL = bool(os.environ.get('FUSE_FINAL'))
G2_STG = 18432
WS_FLAG = 0x2B00000
CONV_REG = 24512
CONV_PER_WG = 3
K3_LDS = 73728
N_CONV = 576 // CONV_PER_WG
def add(a, launches, kds, G):
    gen_k3(a, G); launches.append(("gemm2_kernel", 256 + N_CONV, 512, K3_LDS)); kds.append(G["kd"]("gemm2_kernel", 128, 96))
    if not FUSE_FINAL:
        gen_k4(a, G); launches.append(("final_kernel", 288, 256, 10240)); kds.append(G["kd"]("final_kernel", 128, 64))

def gen_k3(a, G):
    srd = G["srd"]
    WS_H = G["WS_H"]; WS_PART = G["WS_PART"]; WS_KVT = G["WS_KVT"]; WS_Y2T = G["WS_Y2T"]
    SZ_ACT = G["SZ_ACT"]; SZ_H = G["SZ_H"]; SZ_W = G["SZ_W"]; SZ_PART = G["SZ_PART"]
    G["kernel_header"](a, "gemm2_kernel")
    STG = G2_STG
    NST = 18
    a(f"""
    s_load_dwordx2 s[4:5], s[0:1], 96        ; ws
    s_load_dwordx2 s[6:7], s[0:1], 72        ; w_down
    s_load_dwordx2 s[8:9], s[0:1], 32        ; ssm_k
    s_load_dwordx2 s[10:11], s[0:1], 40      ; ssm_D
    s_load_dwordx2 s[60:61], s[0:1], 0       ; x
    s_load_dwordx2 s[62:63], s[0:1], 80      ; out
    s_load_dwordx2 s[64:65], s[0:1], 88
    s_cmp_ge_u32 s2, {256+N_CONV}
    s_cbranch_scc1 g2_done
    s_memtime s[48:49]
    v_lshrrev_b32 v1, 6, v0
    s_nop 0
    v_readfirstlane_b32 s24, v1              ; wave
    v_and_b32 v1, 63, v0                     ; lane
    s_waitcnt lgkmcnt(0)
    s_cmp_ge_u32 s2, 256
    s_cbranch_scc1 conv_start
    s_and_b32 s25, s24, 3                    ; mw
    s_lshr_b32 s26, s24, 2                   ; kg
    s_and_b32 s29, s2, 7                     ; xcd
    s_and_b32 s38, s29, 3                    ; ks
    s_lshr_b32 s29, s29, 2                   ; mhalf
    s_lshr_b32 s27, s2, 3                    ; idx
    s_and_b32 s28, s27, 3                    ; nblk
    s_lshr_b32 s27, s27, 2
    s_lshl_b32 s29, s29, 3
    s_add_u32 s27, s27, s29                  ; mblk (0..15)
    """)
    srd(a, 12, 4, 5, SZ_H, WS_H)
    srd(a, 16, 6, 7, SZ_W)
    srd(a, 20, 4, 5, SZ_PART, WS_PART)
    a(f"""
    s_lshl_b32 s32, s27, 3
    s_lshl_b32 s33, s25, 1
    s_add_u32 s32, s32, s33
    s_mul_i32 s33, s32, {144*1024}
    s_mul_i32 s34, s38, {36*1024}
    s_add_u32 s33, s33, s34
    s_lshl_b32 s34, s26, 10
    s_add_u32 s33, s33, s34
    v_lshlrev_b32 v2, 4, v1
    v_add_u32 v2, s33, v2
    v_add_u32 v3, {144*1024}, v2
    s_mul_i32 s33, s38, 1152
    s_lshl_b32 s34, s24, 3
    s_add_u32 s33, s33, s34
    s_mul_i32 s33, s33, 1152
    s_mul_i32 s34, s28, 288
    s_add_u32 s33, s33, s34
    """)
    for i in range(3):
        a(f"""
        v_add_u32 v20, {64*i}, v1
        v_mul_u32_u24 v21, 3641, v20
        v_lshrrev_b32 v21, 16, v21
        v_mul_u32_u24 v22, 18, v21
        v_sub_u32 v22, v20, v22
        v_mul_u32_u24 v21, 1152, v21
        v_lshl_add_u32 v21, v22, 4, v21
        v_add_u32 v{4+i}, s33, v21
        """)
    a(f"""
    s_mul_i32 s31, s24, 2304
    v_lshrrev_b32 v8, 2, v1
    v_mul_u32_u24 v8, 288, v8
    v_and_b32 v9, 3, v1
    v_lshl_add_u32 v8, v9, 3, v8
    s_mul_i32 s34, s26, 9216
    v_add_u32 v8, s34, v8                    ; vB[0]
    """)
    for b in range(1, 4):
        a(f"v_add_u32 v{8+b}, {b*STG}, v8")
    a(f"""
    """)
    NA = 4
    AS = [12, 20, 28, 36]
    RB = 3
    BR = 44
    ACC = 56
    def acc(mt, dt): return ACC + 4*(mt*9 + dt)
    def dma_piece(t, i):
        b = t % 4
        if i == 0:
            a(f"s_mov_b32 s37, {t*64*1152}")
            a(f"s_add_u32 m0, s31, {b*STG}")
            a("s_nop 0")
            a("buffer_load_dwordx4 v4, s[16:19], s37 offen lds")
        elif i == 1:
            a(f"s_add_u32 m0, s31, {b*STG + 1024}")
            a("s_nop 0")
            a("buffer_load_dwordx4 v5, s[16:19], s37 offen lds")
        else:
            a(f"s_add_u32 m0, s31, {b*STG + 2048}")
            a("s_mov_b64 exec, 0xffff")
            a("buffer_load_dwordx4 v6, s[16:19], s37 offen lds")
            a("s_mov_b64 exec, -1")
    def dma(t):
        for i in range(3): dma_piece(t, i)
    def loadA_piece(t, i):
        r = AS[t % NA]
        if i == 0:
            a(f"s_mov_b32 s36, {t*2048}")
            a(f"buffer_load_dwordx4 v[{r}:{r+3}], v2, s[12:15], s36 offen")
        else:
            a(f"buffer_load_dwordx4 v[{r+4}:{r+7}], v3, s[12:15], s36 offen")
    def loadA(t):
        loadA_piece(t, 0); loadA_piece(t, 1)
    def readB(n):
        t = n // 9; dt = n % 9; b = t % 4; r = BR + 4*(n % RB)
        a(f"ds_read_b64_tr_b16 v[{r}:{r+1}], v{8+b} offset:{dt*32}")
        a(f"ds_read_b64_tr_b16 v[{r+2}:{r+3}], v{8+b} offset:{4608 + dt*32}")
    loadA(0); dma(0); loadA(1); dma(1); loadA(2); dma(2)
    a("s_waitcnt vmcnt(10)")
    a("s_barrier")
    if G2_STAMP: a("s_memtime s[50:51]"); a("s_waitcnt lgkmcnt(0)")
    for n in range(RB): readB(n)
    NT = 9*NST
    for t in range(NST):
        def cnt(lo):
            return sum(5 for x in range(lo, t+3) if x <= NST-1)
        if t <= 2:
            nA = 3 + cnt(t+1) if t < 3 else 0
            a(f"s_waitcnt vmcnt({min(nA, 63)})")
        else:
            a(f"s_waitcnt vmcnt({cnt(t+1)})")
        for dt in range(9):
            n = 9*t + dt
            younger = min(RB-1, NT-1-n)
            a(f"s_waitcnt lgkmcnt({2*younger})")
            br = BR + 4*(n % RB)
            for mt in range(2):
                c = f"v[{acc(mt,dt)}:{acc(mt,dt)+3}]"
                src_c = c if t > 0 else "0"
                ar = AS[t % NA] + 4*mt
                a(f"v_mfma_f32_16x16x32_bf16 {c}, v[{br}:{br+3}], v[{ar}:{ar+3}], {src_c}")
            if dt == 1 and t < NST-1:
                if t + 1 <= 2: nD = cnt(t+2)
                else: nD = 2 + cnt(t+2)
                a(f"s_waitcnt vmcnt({nD})")
                a("s_barrier")
            if n + RB < NT: readB(n + RB)
            if t + 3 < NST:
                if 2 <= dt <= 4: dma_piece(t+3, dt-2)
                if 5 <= dt <= 6: loadA_piece(t+3, dt-5)
    a("""
    v_and_b32 v1, 63, v0
    s_lshl_b32 s34, s38, 7
    s_add_u32 s34, s34, s32
    s_add_u32 s34, s34, s26
    s_mul_i32 s34, s34, 36
    s_mul_i32 s35, s28, 9
    s_add_u32 s34, s34, s35
    s_lshl_b32 s34, s34, 10
    v_lshlrev_b32 v12, 4, v1
    v_add_u32 v12, s34, v12
    s_mul_i32 s34, s24, 9216
    v_lshlrev_b32 v13, 4, v1
    v_add_u32 v13, s34, v13
    s_xor_b32 s35, s24, 4
    s_mul_i32 s35, s35, 9216
    v_lshlrev_b32 v14, 4, v1
    v_add_u32 v14, s35, v14
    """)
    a("s_nop 7")
    if G2_STAMP: a("s_memtime s[52:53]"); a("s_waitcnt lgkmcnt(0)")
    a("s_barrier")
    a("s_cmp_eq_u32 s26, 0")
    a("s_cbranch_scc0 g2_ep1")
    FREG = 0
    YREG = 18432
    for kg in range(2):
        if kg == 1: a.label("g2_ep1")
        send = 1 - kg; keep = kg
        for dt in range(9):
            c = acc(send, dt)
            a(f"ds_write_b128 v13, v[{c}:{c+3}] offset:{dt*1024}")
        a("s_waitcnt lgkmcnt(0)")
        a("s_barrier")
        for dt in range(9):
            c = acc(send, dt)
            a(f"ds_read_b128 v[{c}:{c+3}], v14 offset:{dt*1024}")
        for dt in range(9):
            c = acc(send, dt); k = acc(keep, dt)
            a(f"s_waitcnt lgkmcnt({8-dt})")
            for i in range(4):
                a(f"v_add_f32 v{k+i}, v{k+i}, v{c+i}")
            if not FUSE_FINAL:
                a(f"s_mov_b32 s36, {dt*1024}")
                a(f"buffer_store_dwordx4 v[{k}:{k+3}], v12, s[20:23], s36 offen sc1")
        if not FUSE_FINAL:
            a("s_endpgm")
            continue
        a("s_barrier")
        a("s_cmp_eq_u32 s25, s38")
        a(f"s_cbranch_scc1 g2_own{kg}")
        for dt in range(9):
            k = acc(keep, dt)
            a(f"s_mov_b32 s36, {dt*1024}")
            a(f"buffer_store_dwordx4 v[{k}:{k+3}], v12, s[20:23], s36 offen sc1")
        a("s_branch g2_fin")
        a.label(f"g2_own{kg}")
        a("v_lshlrev_b32 v15, 4, v1")
        for dt in range(9):
            k = acc(keep, dt)
            a(f"ds_write_b128 v15, v[{k}:{k+3}] offset:{FREG + (kg*9+dt)*1024}")
        if kg == 0: a("s_branch g2_fin")
    if FUSE_FINAL:
        a.label("g2_fin")
        srd(a, 40, 60, 61, SZ_ACT)
        srd(a, 44, 62, 63, SZ_ACT)
        srd(a, 68, 4, 5, SZ_ACT, G["WS_XN"])
        srd(a, 72, 4, 5, SZ_ACT, WS_Y2T)
        srd(a, 76, 4, 5, 0x3000, WS_FLAG)
        a(f"""
        ; quarter rows: stile base sq = mblk*8 + 2*ks ; wave w handles q = 3w..3w+2 (w<6): sr = q/9, dt = q%9
        s_lshl_b32 s32, s27, 3
        s_lshl_b32 s33, s38, 1
        s_add_u32 s32, s32, s33                  ; sq
        s_mul_i32 s33, s24, 3                    ; q0 = 3w
        s_cmp_ge_u32 s33, 9
        s_cselect_b32 s34, 1, 0                  ; sr
        s_mul_i32 s35, s34, 9
        s_sub_u32 s35, s33, s35                  ; dt0 (0,3,6)
        s_add_u32 s39, s32, s34
        s_mul_i32 s66, s28, 9
        s_add_u32 s66, s66, s35
        v_and_b32 v20, 15, v1
        s_lshl_b32 s36, s39, 4
        v_add_u32 v20, s36, v20
        v_mul_u32_u24 v20, 1152, v20
        v_lshrrev_b32 v21, 4, v1
        v_lshl_add_u32 v20, v21, 3, v20
        s_lshl_b32 s36, s66, 5
        v_add_u32 v20, s36, v20
        s_mul_i32 s36, s39, 36
        s_add_u32 s36, s36, s66
        s_lshl_b32 s36, s36, 10
        v_lshlrev_b32 v21, 4, v1
        v_add_u32 v21, s36, v21                  ; v21
        s_lshl_b32 s36, s33, 10
        v_lshlrev_b32 v22, 4, v1
        v_add_u32 v22, s36, v22                  ; v22
        v_lshrrev_b32 v23, 1, v0
        v_and_b32 v24, 1, v0
        s_mul_i32 s36, s28, 144
        v_add_u32 v25, s36, v23
        v_lshlrev_b32 v25, 12, v25
        v_lshl_add_u32 v25, v24, 5, v25
        s_lshl_b32 s36, s32, 5
        v_add_u32 v25, s36, v25                  ; v25 global
        v_mul_u32_u24 v26, 96, v23
        v_lshl_add_u32 v26, v24, 5, v26
        v_add_u32 v26, {YREG}, v26
        v_lshrrev_b32 v27, 2, v1
        s_lshl_b32 s36, s35, 4
        v_add_u32 v27, s36, v27
        v_mul_u32_u24 v27, 96, v27
        v_and_b32 v28, 3, v1
        v_lshl_add_u32 v27, v28, 3, v27
        s_lshl_b32 s36, s34, 5
        s_add_u32 s36, s36, {YREG}
        v_add_u32 v27, s36, v27                  ; v27
        s_waitcnt vmcnt(0) lgkmcnt(0)
        s_barrier                                ; B3
        s_cmp_lg_u32 s24, 0
        s_cbranch_scc1 g2_nopoll
        s_lshl_b32 s36, s27, 2
        s_add_u32 s36, s36, s28
        s_lshl_b32 s36, s36, 6                   ; *64 B
        v_mov_b32 v31, s36
        s_lshl_b32 s37, s38, 2
        s_add_u32 s37, s37, s36
        v_mov_b32 v32, s37
        v_mov_b32 v33, 1
        s_mov_b64 exec, 1
        buffer_store_dword v33, v32, s[76:79], 0 offen sc1
        s_mov_b32 s36, 0xffffffff
        s_mov_b32 s37, 0xf
        s_mov_b64 exec, s[36:37]                 ; 36 lanes
        s_mul_i32 s36, s28, 576
        s_add_u32 s36, s36, 0x2000
        v_lshlrev_b32 v30, 4, v1
        v_add_u32 v30, s36, v30
        s_mov_b32 s67, 0
        """)
        a.label("g2_poll")
        a(f"""
        buffer_load_dwordx4 v[48:51], v30, s[76:79], 0 offen sc1
        buffer_load_dwordx4 v[52:55], v31, s[76:79], 0 offen sc1
        s_waitcnt vmcnt(0)
        v_min_u32 v48, v48, v49
        v_min_u32 v50, v50, v51
        v_min_u32 v52, v52, v53
        v_min_u32 v54, v54, v55
        v_min_u32 v48, v48, v50
        v_min_u32 v52, v52, v54
        v_min_u32 v48, v48, v52
        v_cmp_eq_u32 vcc, 0, v48
        s_add_u32 s67, s67, 1
        s_cmp_ge_u32 s67, 0x400000
        s_cbranch_scc1 g2_polldone
        s_cmp_eq_u64 vcc, 0
        s_cbranch_scc1 g2_polldone
        s_sleep 2
        s_branch g2_poll
        """)
        a.label("g2_polldone")
        a("s_mov_b64 exec, -1")
        a.label("g2_nopoll")
        a("""
        s_mul_i32 s36, s39, 18
        s_lshl_b32 s36, s36, 10
        v_lshlrev_b32 v29, 4, v1
        v_add_u32 v29, s36, v29
        """)
        for j in range(3):
            a(f"""
            s_add_u32 s36, s66, {j}
            s_lshr_b32 s37, s36, 1
            s_lshl_b32 s37, s37, 10
            s_and_b32 s36, s36, 1
            s_lshl_b32 s36, s36, 3
            s_add_u32 s36, s36, s37
            buffer_load_dwordx2 v[{36+4*j}:{37+4*j}], v20, s[40:43], 0 offen offset:{32*j}
            buffer_load_dwordx2 v[{38+4*j}:{39+4*j}], v29, s[68:71], s36 offen
            """)
        a("""
        s_barrier                                ; B4
        v_cmp_gt_u32 vcc, 288, v0
        s_and_saveexec_b64 s[82:83], vcc
        s_cbranch_execz g2_noy
        buffer_load_dwordx4 v[48:51], v25, s[72:75], 0 offen sc1
        buffer_load_dwordx4 v[52:55], v25, s[72:75], 0 offen offset:16 sc1
        s_waitcnt vmcnt(0)
        ds_write_b128 v26, v[48:51]
        ds_write_b128 v26, v[52:55] offset:16
        """)
        a.label("g2_noy")
        a("s_mov_b64 exec, s[82:83]")
        a("s_cmp_ge_u32 s24, 6")
        a("s_cbranch_scc1 g2_skipld")
        for i in range(1, 4):
            a(f"""
            s_add_u32 s36, s38, {i}
            s_and_b32 s36, s36, 3
            s_mul_i32 s36, s36, {128*36*1024}
            """)
            for j in range(3):
                r = 56 + 12*(i-1) + 4*j
                a(f"buffer_load_dwordx4 v[{r}:{r+3}], v21, s[20:23], s36 offen offset:{1024*j} sc1")
        for j in range(3):
            a(f"ds_read_b128 v[{92+4*j}:{95+4*j}], v22 offset:{1024*j}")
        a.label("g2_skipld")
        a("s_waitcnt lgkmcnt(0)")
        a("s_barrier                                ; B5")
        a("s_cmp_ge_u32 s24, 6")
        a("s_cbranch_scc1 g2_done")
        for j in range(3):
            a(f"ds_read_b64_tr_b16 v[{104+2*j}:{105+2*j}], v27 offset:{16*96*j}")
        a("s_waitcnt vmcnt(0) lgkmcnt(0)")
        for j in range(3):
            P = 92 + 4*j; X = 36 + 4*j; XN = 38 + 4*j; Y = 104 + 2*j
            for i in range(3):
                o = 56 + 12*i + 4*j
                for e in range(4):
                    a(f"v_add_f32 v{P+e}, v{P+e}, v{o+e}")
            a(f"""
            v_cvt_pk_bf16_f32 v112, v{P}, v{P+1}
            v_cvt_pk_bf16_f32 v113, v{P+2}, v{P+3}
            v_lshlrev_b32 v116, 16, v{XN}
            v_and_b32 v117, 0xffff0000, v{XN}
            v_lshlrev_b32 v118, 16, v{XN+1}
            v_and_b32 v119, 0xffff0000, v{XN+1}
            v_lshlrev_b32 v120, 16, v{Y}
            v_and_b32 v121, 0xffff0000, v{Y}
            v_lshlrev_b32 v122, 16, v{Y+1}
            v_and_b32 v123, 0xffff0000, v{Y+1}
            v_mul_f32 v116, v116, v120
            v_mul_f32 v117, v117, v121
            v_mul_f32 v118, v118, v122
            v_mul_f32 v119, v119, v123
            v_cvt_pk_bf16_f32 v114, v116, v117
            v_cvt_pk_bf16_f32 v115, v118, v119
            v_lshlrev_b32 v116, 16, v{X}
            v_and_b32 v117, 0xffff0000, v{X}
            v_lshlrev_b32 v118, 16, v{X+1}
            v_and_b32 v119, 0xffff0000, v{X+1}
            v_lshlrev_b32 v120, 16, v114
            v_and_b32 v121, 0xffff0000, v114
            v_lshlrev_b32 v122, 16, v115
            v_and_b32 v123, 0xffff0000, v115
            v_add_f32 v116, v116, v120
            v_add_f32 v117, v117, v121
            v_add_f32 v118, v118, v122
            v_add_f32 v119, v119, v123
            v_cvt_pk_bf16_f32 v114, v116, v117
            v_cvt_pk_bf16_f32 v115, v118, v119
            v_lshlrev_b32 v116, 16, v114
            v_and_b32 v117, 0xffff0000, v114
            v_lshlrev_b32 v118, 16, v115
            v_and_b32 v119, 0xffff0000, v115
            v_lshlrev_b32 v120, 16, v112
            v_and_b32 v121, 0xffff0000, v112
            v_lshlrev_b32 v122, 16, v113
            v_and_b32 v123, 0xffff0000, v113
            v_add_f32 v116, v116, v120
            v_add_f32 v117, v117, v121
            v_add_f32 v118, v118, v122
            v_add_f32 v119, v119, v123
            v_cvt_pk_bf16_f32 v{P}, v116, v117
            v_cvt_pk_bf16_f32 v{P+1}, v118, v119
            buffer_store_dwordx2 v[{P}:{P+1}], v20, s[44:47], 0 offen offset:{32*j}
            """)
        a("s_endpgm")

    CB = [12728, 0, 4160, 8320]
    UOFF = 16896
    UZ = 31
    CREG = CONV_REG
    a.label("conv_start")
    a(f"s_cmp_ge_u32 s24, {CONV_PER_WG}")
    a("s_cbranch_scc1 g2_done")
    srd(a, 12, 4, 5, SZ_ACT, WS_KVT)
    srd(a, 16, 8, 9, SZ_ACT)
    srd(a, 20, 4, 5, SZ_ACT, WS_Y2T)
    srd(a, 40, 10, 11, 576*2)
    a(f"""
    s_sub_u32 s25, s2, 256
    s_mul_i32 s25, s25, {CONV_PER_WG}
    s_add_u32 s25, s25, s24                  ; channel d
    s_mul_i32 s30, s24, {CREG}
    s_lshl_b32 s31, s25, 12                  ; d*4096
    v_lshlrev_b32 v2, 4, v1                  ; lane*16
    v_add_u32 v3, s30, v2
    s_lshl_b32 s32, s25, 1
    v_mov_b32 v8, s32
    buffer_load_ushort v9, v8, s[40:43], 0 offen
    """)
    for i in range(4):
        a(f"s_add_u32 s33, s31, {i*1024}")
        a(f"buffer_load_dwordx4 v[{32+4*i}:{35+4*i}], v2, s[12:15], s33 offen")
        a(f"buffer_load_dwordx4 v[{48+6*i}:{51+6*i}], v2, s[16:19], s33 offen")
        a(f"buffer_load_dwordx2 v[{52+6*i}:{53+6*i}], v2, s[16:19], s33 offen offset:16")
    a(f"""
    v_mov_b32 v4, 0
    v_mov_b32 v5, 0
    v_mov_b32 v6, 0
    v_mov_b32 v7, 0
    ds_write_b128 v3, v[4:7] offset:{UOFF}
    ds_write_b128 v3, v[4:7] offset:{UOFF+1024}
    ds_write_b128 v3, v[4:7] offset:{UOFF+2048}
    s_mov_b64 exec, 0xf
    ds_write_b128 v3, v[4:7] offset:{CB[1]}
    ds_write_b128 v3, v[4:7] offset:{CB[2]}
    ds_write_b128 v3, v[4:7] offset:{CB[3]}
    ds_write_b64 v3, v[4:5] offset:{CB[0]}
    ds_write_b64 v3, v[4:5] offset:{CB[0]+8}
    s_mov_b64 exec, -1
    v_lshrrev_b32 v20, 2, v1
    v_mul_u32_u24 v20, 80, v20
    v_and_b32 v21, 3, v1
    v_lshl_add_u32 v20, v21, 4, v20
    v_add_u32 v20, s30, v20
    v_and_b32 v10, 31, v1                    ; r / n
    v_lshrrev_b32 v11, 5, v1                 ; kh
    v_lshlrev_b32 v12, 3, v11
    v_sub_u32 v12, v10, v12
    v_add_u32 v12, 9, v12
    v_and_b32 v13, 3, v12                    ; t
    v_sub_u32 v12, v12, v13
    v_lshlrev_b32 v12, 1, v12
    v_add_u32 v14, -1, v13                   ; t-1 (t=0 -> -1)
    v_mul_u32_u24 v15, 4160, v14
    v_cmp_eq_u32 vcc, 0, v13
    v_mov_b32 v16, {CB[0]}
    s_nop 1
    v_cndmask_b32 v15, v15, v16, vcc
    v_add_u32 v12, v12, v15
    v_add_u32 v12, s30, v12
    v_mul_u32_u24 v13, 80, v10
    v_lshl_add_u32 v13, v11, 4, v13
    v_add_u32 v13, {UOFF}, v13
    v_add_u32 v13, s30, v13
    v_add_u32 v14, {32*80}, v13
    s_waitcnt vmcnt(0) lgkmcnt(0)
    v_lshlrev_b32 v9, 16, v9                 ; D as f32
    """)
    for i in range(4):
        a(f"ds_write_b128 v20, v[{32+4*i}:{35+4*i}] offset:{UOFF + (UZ + 16*i)*80}")
    a(f"""
    s_mov_b64 exec, 1
    v_lshlrev_b32 v22, 16, v48               ; K0<<16
    v_alignbit_b32 v23, v49, v48, 16
    ds_write_b32 v3, v22 offset:{CB[1]+60}
    ds_write_b32 v3, v48 offset:{CB[2]+60}
    ds_write_b32 v3, v22 offset:{CB[3]+56}
    ds_write_b32 v3, v23 offset:{CB[3]+60}
    s_mov_b64 exec, -1
    """)
    for i in range(4):
        d = 48 + 6*i
        a(f"""
        v_alignbit_b32 v72, v{d+1}, v{d}, 16
        v_alignbit_b32 v73, v{d+2}, v{d+1}, 16
        v_alignbit_b32 v74, v{d+3}, v{d+2}, 16
        v_alignbit_b32 v75, v{d+4}, v{d+3}, 16
        v_mov_b32 v76, v73
        v_mov_b32 v77, v74
        v_mov_b32 v78, v75
        v_alignbit_b32 v79, v{d+5}, v{d+4}, 16
        v_mov_b32 v80, v{d+1}
        v_mov_b32 v81, v{d+2}
        v_mov_b32 v82, v{d+3}
        v_mov_b32 v83, v{d+4}
        ds_write_b64 v3, v[{d}:{d+1}] offset:{CB[0] + 64 + 1024*i}
        ds_write_b64 v3, v[{d+2}:{d+3}] offset:{CB[0] + 72 + 1024*i}
        ds_write_b128 v3, v[72:75] offset:{CB[1] + 64 + 1024*i}
        ds_write_b128 v3, v[80:83] offset:{CB[2] + 64 + 1024*i}
        ds_write_b128 v3, v[76:79] offset:{CB[3] + 64 + 1024*i}
        s_waitcnt lgkmcnt(0)
        s_nop 0
        """)
    a("s_waitcnt lgkmcnt(0)")
    P = 3
    CA = 16; CB0 = 32; CB1 = 48; C0 = 64; C1 = 80
    def nreads(i): return 4 if i <= 63 else 3
    def boff(o):
        if o % 2 == 0:
            p = o // 2; return (UZ - p)*80
        else:
            p = (o - 1)//2; return (UZ - p - 1)*80 + 32
    def cread(i):
        o = i - 1; sl = i % P
        a(f"ds_read_b64 v[{CA+4*sl}:{CA+4*sl+1}], v12 offset:{32*i}")
        a(f"ds_read_b64 v[{CA+4*sl+2}:{CA+4*sl+3}], v12 offset:{32*i+8}")
        if boff(o) >= 0: a(f"ds_read_b128 v[{CB1+4*sl}:{CB1+4*sl+3}], v14 offset:{boff(o)}")
        else: a(f"ds_read_b128 v[{CB1+4*sl}:{CB1+4*sl+3}], v13 offset:{boff(o) + 32*80}")
        if i <= 63:
            a(f"ds_read_b128 v[{CB0+4*sl}:{CB0+4*sl+3}], v13 offset:{boff(o)}")
    for i in range(P): cread(i)
    for i in range(128):
        sl = i % P
        younger = sum(nreads(j) for j in range(i+1, min(128, i+P)))
        a(f"s_waitcnt lgkmcnt({younger})")
        c1 = f"v[{C1}:{C1+15}]"; c0 = f"v[{C0}:{C0+15}]"
        a(f"v_mfma_f32_32x32x16_bf16 {c1}, v[{CA+4*sl}:{CA+4*sl+3}], v[{CB1+4*sl}:{CB1+4*sl+3}], {c1 if i>0 else '0'}")
        if i <= 63:
            a(f"v_mfma_f32_32x32x16_bf16 {c0}, v[{CA+4*sl}:{CA+4*sl+3}], v[{CB0+4*sl}:{CB0+4*sl+3}], {c0 if i>0 else '0'}")
        if i + P < 128: cread(i + P)
    a(f"""
    v_mul_u32_u24 v15, 80, v10
    v_lshlrev_b32 v16, 3, v11
    v_sub_u32 v16, 8, v16
    v_add_u32 v15, v15, v16
    v_add_u32 v15, {UOFF + UZ*80}, v15
    v_add_u32 v15, s30, v15
    v_lshlrev_b32 v16, 6, v10
    v_lshl_add_u32 v16, v11, 3, v16
    v_add_u32 v16, s31, v16
    """)
    for T in range(2):
        for q in range(4):
            r = 100 + 2*(T*4+q)
            a(f"ds_read_b64 v[{r}:{r+1}], v15 offset:{2560*T + 16*q}")
    a("s_nop 7")
    a("s_nop 3")
    a("s_waitcnt lgkmcnt(0)")
    for T in range(2):
        C = C0 if T == 0 else C1
        for q in range(4):
            r = 100 + 2*(T*4+q); c = C + 4*q
            a(f"""
            v_and_b32 v20, 0xffff0000, v{r+1}
            v_lshlrev_b32 v21, 16, v{r+1}
            v_and_b32 v22, 0xffff0000, v{r}
            v_lshlrev_b32 v23, 16, v{r}
            v_mul_f32 v20, v20, v9
            v_mul_f32 v21, v21, v9
            v_mul_f32 v22, v22, v9
            v_mul_f32 v23, v23, v9
            v_cvt_pk_bf16_f32 v24, v20, v21
            v_cvt_pk_bf16_f32 v25, v22, v23
            v_cvt_pk_bf16_f32 v26, v{c}, v{c+1}
            v_cvt_pk_bf16_f32 v27, v{c+2}, v{c+3}
            v_lshlrev_b32 v20, 16, v24
            v_and_b32 v21, 0xffff0000, v24
            v_lshlrev_b32 v22, 16, v25
            v_and_b32 v23, 0xffff0000, v25
            v_lshlrev_b32 v28, 16, v26
            v_and_b32 v29, 0xffff0000, v26
            v_lshlrev_b32 v30, 16, v27
            v_and_b32 v31, 0xffff0000, v27
            v_add_f32 v20, v20, v28
            v_add_f32 v21, v21, v29
            v_add_f32 v22, v22, v30
            v_add_f32 v23, v23, v31
            v_cvt_pk_bf16_f32 v{r}, v20, v21
            v_cvt_pk_bf16_f32 v{r+1}, v22, v23
            buffer_store_dwordx2 v[{r}:{r+1}], v16, s[20:23], 0 offen offset:{2048*T + 16*q} sc1
            """)
    if FUSE_FINAL:
        srd(a, 76, 4, 5, 0x3000, WS_FLAG)
        a("""
        s_lshl_b32 s35, s25, 2
        s_add_u32 s35, s35, 0x2000
        v_mov_b32 v30, s35
        v_mov_b32 v31, 1
        s_waitcnt vmcnt(0)
        s_mov_b64 exec, 1
        buffer_store_dword v31, v30, s[76:79], 0 offen sc1
        """)
    a.label("g2_done")
    a("s_endpgm")

def gen_k4(a, G):
    srd = G["srd"]
    WS_XN = G["WS_XN"]; WS_PART = G["WS_PART"]; WS_Y2T = G["WS_Y2T"]
    SZ_ACT = G["SZ_ACT"]; SZ_PART = G["SZ_PART"]
    G["kernel_header"](a, "final_kernel")
    a(f"""
    s_load_dwordx2 s[4:5], s[0:1], 96        ; ws
    s_load_dwordx2 s[6:7], s[0:1], 0         ; q (x)
    s_load_dwordx2 s[8:9], s[0:1], 80        ; out
    s_cmp_ge_u32 s2, 288
    s_cbranch_scc1 k4_done
    s_mov_b32 s34, 0x1c71c71d
    s_mul_hi_u32 s35, s2, s34                ; sgrp = b/9
    s_mul_i32 s36, s35, 9
    s_sub_u32 s36, s2, s36                   ; dgrp
    v_lshrrev_b32 v1, 6, v0
    s_nop 0
    v_readfirstlane_b32 s24, v1              ; wave
    v_and_b32 v1, 63, v0
    s_waitcnt lgkmcnt(0)
    """)
    srd(a, 12, 4, 5, SZ_ACT, WS_Y2T)
    srd(a, 16, 4, 5, SZ_PART, WS_PART)
    srd(a, 20, 4, 5, SZ_ACT, WS_XN)
    srd(a, 40, 6, 7, SZ_ACT)
    srd(a, 44, 8, 9, SZ_ACT)
    a(f"""
    v_lshrrev_b32 v2, 2, v0
    v_and_b32 v3, 3, v0
    s_lshl_b32 s37, s36, 6                   ; 64*dgrp
    v_add_u32 v4, s37, v2
    v_lshlrev_b32 v4, 12, v4
    v_lshl_add_u32 v4, v3, 5, v4
    s_lshl_b32 s38, s35, 7                   ; 128*sgrp
    v_add_u32 v4, s38, v4
    buffer_load_dwordx4 v[8:11], v4, s[12:15], 0 offen
    buffer_load_dwordx4 v[12:15], v4, s[12:15], 0 offen offset:16
    v_mul_u32_u24 v5, 160, v2
    v_lshl_add_u32 v5, v3, 5, v5
    s_lshl_b32 s25, s35, 2
    s_add_u32 s25, s25, s24
    s_mul_i32 s26, s25, 36
    s_lshl_b32 s27, s36, 2
    s_add_u32 s26, s26, s27
    s_lshl_b32 s26, s26, 10
    v_lshlrev_b32 v6, 4, v1
    v_add_u32 v6, s26, v6
    v_and_b32 v7, 15, v1
    s_lshl_b32 s27, s25, 4
    v_add_u32 v7, s27, v7
    v_mul_u32_u24 v7, 1152, v7
    v_lshrrev_b32 v16, 4, v1
    v_lshl_add_u32 v7, v16, 3, v7
    s_lshl_b32 s27, s36, 7
    v_add_u32 v7, s27, v7
    s_mul_i32 s27, s25, 18
    s_lshl_b32 s28, s36, 1
    s_add_u32 s27, s27, s28
    s_lshl_b32 s27, s27, 10
    v_lshlrev_b32 v17, 4, v1
    v_add_u32 v17, s27, v17
    v_lshrrev_b32 v18, 2, v1
    v_mul_u32_u24 v18, 160, v18
    v_and_b32 v19, 3, v1
    v_lshl_add_u32 v18, v19, 3, v18
    s_lshl_b32 s27, s24, 5
    v_add_u32 v18, s27, v18
    """)
    for dt in range(4):
        for ks in range(4):
            a(f"s_mov_b32 s27, {ks*128*36*1024 + dt*1024}")
            a(f"buffer_load_dwordx4 v[{24+16*dt+4*ks}:{27+16*dt+4*ks}], v6, s[16:19], s27 offen")
        a(f"buffer_load_dwordx2 v[{88+4*dt}:{89+4*dt}], v7, s[40:43], 0 offen offset:{dt*32}")
        a(f"buffer_load_dwordx2 v[{90+4*dt}:{91+4*dt}], v17, s[20:23], 0 offen offset:{(dt>>1)*1024 + (dt&1)*8}")
    a("""
    s_waitcnt vmcnt(24)
    ds_write_b128 v5, v[8:11]
    ds_write_b128 v5, v[12:15] offset:16
    s_waitcnt lgkmcnt(0)
    s_barrier
    """)
    for dt in range(4):
        a(f"ds_read_b64_tr_b16 v[{104+2*dt}:{105+2*dt}], v18 offset:{dt*2560}")
    for dt in range(4):
        P = 24 + 16*dt; X = 88 + 4*dt; XN = 90 + 4*dt; Y = 104 + 2*dt
        a(f"s_waitcnt vmcnt({18 - 6*dt}) lgkmcnt({3-dt})")
        for i in range(4):
            a(f"v_add_f32 v{P+i}, v{P+i}, v{P+4+i}")
            a(f"v_add_f32 v{P+8+i}, v{P+8+i}, v{P+12+i}")
            a(f"v_add_f32 v{P+i}, v{P+i}, v{P+8+i}")
        a(f"""
        v_cvt_pk_bf16_f32 v112, v{P}, v{P+1}
        v_cvt_pk_bf16_f32 v113, v{P+2}, v{P+3}
        v_lshlrev_b32 v116, 16, v{XN}
        v_and_b32 v117, 0xffff0000, v{XN}
        v_lshlrev_b32 v118, 16, v{XN+1}
        v_and_b32 v119, 0xffff0000, v{XN+1}
        v_lshlrev_b32 v120, 16, v{Y}
        v_and_b32 v121, 0xffff0000, v{Y}
        v_lshlrev_b32 v122, 16, v{Y+1}
        v_and_b32 v123, 0xffff0000, v{Y+1}
        v_mul_f32 v116, v116, v120
        v_mul_f32 v117, v117, v121
        v_mul_f32 v118, v118, v122
        v_mul_f32 v119, v119, v123
        v_cvt_pk_bf16_f32 v114, v116, v117
        v_cvt_pk_bf16_f32 v115, v118, v119
        v_lshlrev_b32 v116, 16, v{X}
        v_and_b32 v117, 0xffff0000, v{X}
        v_lshlrev_b32 v118, 16, v{X+1}
        v_and_b32 v119, 0xffff0000, v{X+1}
        v_lshlrev_b32 v120, 16, v114
        v_and_b32 v121, 0xffff0000, v114
        v_lshlrev_b32 v122, 16, v115
        v_and_b32 v123, 0xffff0000, v115
        v_add_f32 v116, v116, v120
        v_add_f32 v117, v117, v121
        v_add_f32 v118, v118, v122
        v_add_f32 v119, v119, v123
        v_cvt_pk_bf16_f32 v114, v116, v117
        v_cvt_pk_bf16_f32 v115, v118, v119
        v_lshlrev_b32 v116, 16, v114
        v_and_b32 v117, 0xffff0000, v114
        v_lshlrev_b32 v118, 16, v115
        v_and_b32 v119, 0xffff0000, v115
        v_lshlrev_b32 v120, 16, v112
        v_and_b32 v121, 0xffff0000, v112
        v_lshlrev_b32 v122, 16, v113
        v_and_b32 v123, 0xffff0000, v113
        v_add_f32 v116, v116, v120
        v_add_f32 v117, v117, v121
        v_add_f32 v118, v118, v122
        v_add_f32 v119, v119, v123
        v_cvt_pk_bf16_f32 v{P}, v116, v117
        v_cvt_pk_bf16_f32 v{P+1}, v118, v119
        """)
    for dt in range(4):
        P = 24 + 16*dt
        a(f"buffer_store_dwordx2 v[{P}:{P+1}], v7, s[44:47], 0 offen offset:{dt*32}")
    a.label("k4_done")
    a("s_endpgm")
```

```python
import sys

NAME = "parallel_sum__ssm_conv_h3__glu_gated_bilinear__prompt"
S, D, F = 2048, 576, 4608
WS_XN   = 0
WS_KVT  = 0x240000
WS_H    = 0x480000
WS_Y2T  = 0x1680000
WS_PART = 0x18C0000
SZ_ACT  = S * D * 2
SZ_H    = S * F * 2
SZ_PART = 4 * S * D * 4
SZ_W    = D * F * 2

class A:
    def __init__(self):
        self.l = []
    def __call__(self, s):
        for line in s.strip("\n").split("\n"):
            self.l.append("    " + line.strip())
    def label(self, s):
        self.l.append(s + ":")
    def raw(self, s):
        self.l.append(s)
    def text(self):
        return "\n".join(self.l) + "\n"

def srd(a, dst, lo, hi, size, off=0):
    if off:
        a(f"s_add_u32 s{dst}, s{lo}, {off}")
        a(f"s_addc_u32 s{dst+1}, s{hi}, 0")
    else:
        a(f"s_mov_b32 s{dst}, s{lo}")
        a(f"s_mov_b32 s{dst+1}, s{hi}")
    a(f"s_mov_b32 s{dst+2}, {size}")
    a(f"s_mov_b32 s{dst+3}, 0x00020000")

def kernel_header(a, name):
    a.raw(f".globl {name}")
    a.raw(".p2align 8")
    a.raw(f".type {name},@function")
    a.label(name)

def kd(name, vgpr, sgpr):
    acc = (vgpr + 3) // 4 * 4
    return f""".amdhsa_kernel {name}
  .amdhsa_next_free_vgpr {vgpr}
  .amdhsa_next_free_sgpr {sgpr}
  .amdhsa_accum_offset {acc}
  .amdhsa_group_segment_fixed_size 0
  .amdhsa_kernarg_size 104
  .amdhsa_user_sgpr_count 2
  .amdhsa_user_sgpr_kernarg_segment_ptr 1
  .amdhsa_system_sgpr_workgroup_id_x 1
.end_amdhsa_kernel
"""

N_LN_WG = 64
N_KV_WG = 144
def gen_prep(a):
    kernel_header(a, "prep_kernel")
    a(f"""
    s_load_dwordx2 s[4:5], s[0:1], 0
    s_load_dwordx2 s[6:7], s[0:1], 8
    s_load_dwordx2 s[8:9], s[0:1], 16
    s_load_dwordx2 s[10:11], s[0:1], 24
    s_load_dwordx2 s[12:13], s[0:1], 96
    s_cmp_ge_u32 s2, {N_LN_WG + N_KV_WG}
    s_cbranch_scc1 prep_done
    s_waitcnt lgkmcnt(0)
    s_cmp_ge_u32 s2, {N_LN_WG}
    s_cbranch_scc1 prep_kv
    """)
    srd(a, 16, 4, 5, SZ_ACT)
    srd(a, 20, 12, 13, SZ_ACT, WS_XN)
    srd(a, 28, 12, 13, 0x3000, 0x2B00000)
    a("""
    s_cmp_lg_u32 s2, 0
    s_cbranch_scc1 prep_noz
    v_mul_u32_u24 v1, 48, v0
    v_mov_b32 v4, 0
    v_mov_b32 v5, 0
    v_mov_b32 v6, 0
    v_mov_b32 v7, 0
    buffer_store_dwordx4 v[4:7], v1, s[28:31], 0 offen
    buffer_store_dwordx4 v[4:7], v1, s[28:31], 0 offen offset:16
    buffer_store_dwordx4 v[4:7], v1, s[28:31], 0 offen offset:32
    s_nop 1
    """)
    a.label("prep_noz")
    a(f"""
    s_lshl_b32 s3, s2, 5
    v_lshrrev_b32 v1, 3, v0
    v_add_u32 v1, s3, v1                     ; row
    v_and_b32 v2, 7, v0                      ; j
    s_movk_i32 s24, 1152
    v_mul_lo_u32 v3, v1, s24
    v_lshl_add_u32 v3, v2, 4, v3
    """)
    for i in range(9):
        a(f"buffer_load_dwordx4 v[{8+4*i}:{11+4*i}], v3, s[16:19], 0 offen offset:{i*128}")
    a(f"""
    v_lshrrev_b32 v4, 4, v1                  ; stile
    v_mul_u32_u24 v4, 18, v4
    v_lshrrev_b32 v5, 2, v2                  ; j>>2
    v_add_u32 v4, v4, v5
    v_lshlrev_b32 v4, 10, v4                 ; *(1024)
    v_and_b32 v5, 1, v2                      ; j&1
    v_lshlrev_b32 v5, 5, v5                  ; 2*(j&1)*16
    v_and_b32 v6, 15, v1                     ; srow
    v_add_u32 v5, v5, v6
    v_lshl_add_u32 v4, v5, 4, v4
    v_bfe_u32 v5, v2, 1, 1                   ; (j>>1)&1
    v_lshl_add_u32 v4, v5, 3, v4
    s_waitcnt vmcnt(0)
    """)
    X = 48
    for i in range(36):
        a(f"v_lshlrev_b32 v{X+2*i}, 16, v{8+i}")
        a(f"v_and_b32 v{X+2*i+1}, 0xffff0000, v{8+i}")
    for c in range(4):
        a(f"v_add_f32 v{120+c}, v{X+c}, v{X+4+c}")
    for i in range(2, 18):
        for c in range(4):
            a(f"v_add_f32 v{120+c}, v{120+c}, v{X+4*i+c}")
    a("""
    v_add_f32 v120, v120, v121
    v_add_f32 v122, v122, v123
    v_add_f32 v120, v120, v122
    s_nop 1
    v_add_f32_dpp v121, v120, v120 quad_perm:[1,0,3,2] row_mask:0xf bank_mask:0xf
    s_nop 1
    v_add_f32_dpp v120, v121, v121 quad_perm:[2,3,0,1] row_mask:0xf bank_mask:0xf
    s_nop 1
    v_add_f32_dpp v121, v120, v120 row_half_mirror row_mask:0xf bank_mask:0xf
    s_mov_b32 s25, 0x3ae38e39               ; 1/576
    v_mul_f32 v124, s25, v121
    """)
    for c in range(4):
        a(f"v_sub_f32 v125, v{X+c}, v124")
        a(f"v_mul_f32 v{120+c}, v125, v125")
    for i in range(1, 18):
        for c in range(4):
            a(f"v_sub_f32 v125, v{X+4*i+c}, v124")
            a(f"v_fmac_f32 v{120+c}, v125, v125")
    a("""
    v_add_f32 v120, v120, v121
    v_add_f32 v122, v122, v123
    v_add_f32 v120, v120, v122
    s_nop 1
    v_add_f32_dpp v121, v120, v120 quad_perm:[1,0,3,2] row_mask:0xf bank_mask:0xf
    s_nop 1
    v_add_f32_dpp v120, v121, v121 quad_perm:[2,3,0,1] row_mask:0xf bank_mask:0xf
    s_nop 1
    v_add_f32_dpp v121, v120, v120 row_half_mirror row_mask:0xf bank_mask:0xf
    v_mul_f32 v125, s25, v121
    v_cvt_pk_bf16_f32 v126, v124, v125
    v_lshlrev_b32 v124, 16, v126            ; m
    v_and_b32 v125, 0xffff0000, v126        ; v
    s_mov_b32 s26, 0x3727c5ac               ; 1e-5
    v_add_f32 v125, s26, v125
    v_cvt_pk_bf16_f32 v125, v125, v125
    v_lshlrev_b32 v125, 16, v125
    v_sqrt_f32 v125, v125
    s_nop 0
    v_cvt_pk_bf16_f32 v125, v125, v125
    v_lshlrev_b32 v125, 16, v125            ; den
    v_rcp_f32 v126, v125                    ; r
    s_nop 0
    """)
    for i in range(36):
        x0, x1 = X + 2*i, X + 2*i + 1
        a(f"""
        v_sub_f32 v{x0}, v{x0}, v124
        v_sub_f32 v{x1}, v{x1}, v124
        v_cvt_pk_bf16_f32 v127, v{x0}, v{x1}
        v_lshlrev_b32 v{x0}, 16, v127
        v_and_b32 v{x1}, 0xffff0000, v127
        v_mul_f32 v120, v{x0}, v126
        v_mul_f32 v121, v{x1}, v126
        v_fma_f32 v122, -v120, v125, v{x0}
        v_fma_f32 v123, -v121, v125, v{x1}
        v_fmac_f32 v120, v122, v126
        v_fmac_f32 v121, v123, v126
        v_cvt_pk_bf16_f32 v{8+i}, v120, v121
        """)
    for i in range(9):
        a(f"s_movk_i32 s27, {i*2048}")
        a(f"buffer_store_dwordx2 v[{8+4*i}:{9+4*i}], v4, s[20:23], s27 offen")
        a(f"buffer_store_dwordx2 v[{10+4*i}:{11+4*i}], v4, s[20:23], s27 offen offset:256")
    a("s_endpgm")

    a.label("prep_kv")
    srd(a, 16, 6, 7, SZ_ACT)
    srd(a, 20, 8, 9, SZ_ACT)
    srd(a, 24, 10, 11, D*4*2)
    srd(a, 28, 12, 13, SZ_ACT, WS_KVT)
    a(f"""
    v_lshrrev_b32 v1, 6, v0
    s_nop 0
    v_readfirstlane_b32 s32, v1
    s_sub_u32 s33, s2, {N_LN_WG}
    s_lshl_b32 s33, s33, 2
    s_add_u32 s33, s33, s32                  ; W 0..575
    s_mov_b32 s34, 0x1c71c71d                ; ceil(2^32/9)
    s_mul_hi_u32 s35, s33, s34               ; sgroup = W/9
    s_mul_i32 s36, s35, 9
    s_sub_u32 s36, s33, s36                  ; dgroup = W%9
    v_and_b32 v1, 63, v0                     ; lane
    v_and_b32 v2, 7, v1                      ; dchunk
    v_lshrrev_b32 v3, 3, v1                  ; sblk
    s_lshl_b32 s37, s35, 5                   ; sgroup*32
    v_lshl_add_u32 v3, v3, 2, s37            ; s0
    s_lshl_b32 s38, s36, 7
    v_lshl_add_u32 v4, v2, 4, s38
    s_movk_i32 s39, 1152
    v_mul_lo_u32 v5, v3, s39
    v_add_u32 v5, v5, v4                     ; s0*1152 + d0*2
    v_subrev_u32 v6, {3*1152}, v5
    """)
    a("buffer_load_dwordx4 v[16:19], v6, s[16:19], 0 offen")
    a("buffer_load_dwordx4 v[20:23], v6, s[16:19], 0 offen offset:1152")
    a("buffer_load_dwordx4 v[24:27], v6, s[16:19], 0 offen offset:2304")
    for r in range(4):
        a(f"buffer_load_dwordx4 v[{28+4*r}:{31+4*r}], v5, s[16:19], 0 offen offset:{r*1152}")
    for r in range(4):
        a(f"buffer_load_dwordx4 v[{44+4*r}:{47+4*r}], v5, s[20:23], 0 offen offset:{r*1152}")
    a("v_lshlrev_b32 v7, 2, v4")
    for r in range(4):
        a(f"buffer_load_dwordx4 v[{60+4*r}:{63+4*r}], v7, s[24:27], 0 offen offset:{r*16}")
    a("""
    v_lshlrev_b32 v8, 11, v4                 ; d0*2*2048
    v_and_b32 v9, 0xfffffff8, v3
    v_lshl_add_u32 v8, v9, 1, v8
    v_and_b32 v9, 4, v3
    v_lshlrev_b32 v9, 1, v9                  ; 8 if s0&4
    v_sub_u32 v9, 8, v9                      ; 8 - that
    v_add_u32 v8, v8, v9
    s_waitcnt vmcnt(0)
    """)
    KF = 80
    WF = 96
    VF = 104
    AC = 112
    PR = 120
    T  = 122
    OUT = 124
    for p in range(4):
        for r in range(7):
            a(f"v_lshlrev_b32 v{KF+2*r}, 16, v{16+4*r+p}")
            a(f"v_and_b32 v{KF+2*r+1}, 0xffff0000, v{16+4*r+p}")
        for r in range(4):
            a(f"v_lshlrev_b32 v{VF+2*r}, 16, v{44+4*r+p}")
            a(f"v_and_b32 v{VF+2*r+1}, 0xffff0000, v{44+4*r+p}")
        for c in range(2):
            ch = 2*p + c
            a(f"v_lshlrev_b32 v{WF+4*c+0}, 16, v{60+2*ch}")
            a(f"v_and_b32 v{WF+4*c+1}, 0xffff0000, v{60+2*ch}")
            a(f"v_lshlrev_b32 v{WF+4*c+2}, 16, v{61+2*ch}")
            a(f"v_and_b32 v{WF+4*c+3}, 0xffff0000, v{61+2*ch}")
        for r in range(4):
            for t in range(4):
                a(f"v_mul_f32 v{PR}, v{KF+2*(r+t)}, v{WF+3-t}")
                a(f"v_mul_f32 v{PR+1}, v{KF+2*(r+t)+1}, v{WF+4+3-t}")
                a(f"v_cvt_pk_bf16_f32 v{T}, v{PR}, v{PR+1}")
                if t == 0:
                    a(f"v_lshlrev_b32 v{AC+2*r}, 16, v{T}")
                    a(f"v_and_b32 v{AC+2*r+1}, 0xffff0000, v{T}")
                else:
                    a(f"v_lshlrev_b32 v{PR}, 16, v{T}")
                    a(f"v_and_b32 v{PR+1}, 0xffff0000, v{T}")
                    a(f"v_add_f32 v{PR}, v{AC+2*r}, v{PR}")
                    a(f"v_add_f32 v{PR+1}, v{AC+2*r+1}, v{PR+1}")
                    a(f"v_cvt_pk_bf16_f32 v{T}, v{PR}, v{PR+1}")
                    a(f"v_lshlrev_b32 v{AC+2*r}, 16, v{T}")
                    a(f"v_and_b32 v{AC+2*r+1}, 0xffff0000, v{T}")
            a(f"v_mul_f32 v{AC+2*r}, v{AC+2*r}, v{VF+2*r}")
            a(f"v_mul_f32 v{AC+2*r+1}, v{AC+2*r+1}, v{VF+2*r+1}")
        for c in range(2):
            a(f"v_cvt_pk_bf16_f32 v{OUT+2*c}, v{AC+6+c}, v{AC+4+c}")
            a(f"v_cvt_pk_bf16_f32 v{OUT+2*c+1}, v{AC+2+c}, v{AC+0+c}")
        for c in range(2):
            ch = 2*p + c
            a(f"s_movk_i32 s40, {ch*4096 & 0xffff}" if ch*4096 < 32768 else f"s_mov_b32 s40, {ch*4096}")
            a(f"buffer_store_dwordx2 v[{OUT+2*c}:{OUT+2*c+1}], v8, s[28:31], s40 offen")
        a("s_nop 1")
    a.label("prep_done")
    a("s_endpgm")

P2_LN = 512
P2_KV = 288
def gen_prep2(a):
    kernel_header(a, "prep_kernel")
    a(f"""
    s_load_dwordx2 s[4:5], s[0:1], 0
    s_load_dwordx2 s[6:7], s[0:1], 8
    s_load_dwordx2 s[8:9], s[0:1], 16
    s_load_dwordx2 s[10:11], s[0:1], 24
    s_load_dwordx2 s[12:13], s[0:1], 96
    s_cmp_ge_u32 s2, {P2_LN + P2_KV}
    s_cbranch_scc1 prep_done
    v_lshrrev_b32 v1, 6, v0
    s_nop 0
    v_readfirstlane_b32 s24, v1              ; wave
    v_and_b32 v1, 63, v0                     ; lane
    s_waitcnt lgkmcnt(0)
    s_cmp_ge_u32 s2, {P2_KV}
    s_cbranch_scc0 prep_kv
    """)
    srd(a, 16, 4, 5, SZ_ACT)
    srd(a, 20, 12, 13, SZ_ACT, WS_XN)
    a(f"""
    s_sub_u32 s30, s2, {P2_KV}
    s_lshl_b32 s30, s30, 2
    s_add_u32 s30, s30, s24                  ; row
    s_mul_i32 s31, s30, 1152
    v_lshlrev_b32 v12, 3, v1
    v_add_u32 v12, s31, v12
    v_mov_b32 v18, 0
    v_mov_b32 v19, 0
    buffer_load_dwordx2 v[14:15], v12, s[16:19], 0 offen
    buffer_load_dwordx2 v[16:17], v12, s[16:19], 0 offen offset:512
    s_mov_b64 exec, 0xffff
    buffer_load_dwordx2 v[18:19], v12, s[16:19], 0 offen offset:1024
    s_mov_b64 exec, -1
    s_lshr_b32 s31, s30, 4
    s_mul_i32 s31, s31, {18*1024}
    s_and_b32 s32, s30, 15
    s_lshl_b32 s32, s32, 4
    s_add_u32 s31, s31, s32
    v_lshrrev_b32 v13, 3, v1
    v_lshlrev_b32 v13, 10, v13
    v_and_b32 v20, 3, v1
    v_lshl_add_u32 v13, v20, 8, v13
    v_bfe_u32 v20, v1, 2, 1
    v_lshl_add_u32 v13, v20, 3, v13
    v_add_u32 v13, s31, v13
    s_waitcnt vmcnt(0)
    """)
    F = 20
    for i in range(6):
        a(f"v_lshlrev_b32 v{F+2*i}, 16, v{14+i}")
        a(f"v_and_b32 v{F+2*i+1}, 0xffff0000, v{14+i}")
    def wave_sum(r, t):
        a(f"""
        s_nop 1
        v_add_f32_dpp v{t}, v{r}, v{r} quad_perm:[1,0,3,2] row_mask:0xf bank_mask:0xf
        s_nop 1
        v_add_f32_dpp v{r}, v{t}, v{t} quad_perm:[2,3,0,1] row_mask:0xf bank_mask:0xf
        s_nop 1
        v_add_f32_dpp v{t}, v{r}, v{r} row_half_mirror row_mask:0xf bank_mask:0xf
        s_nop 1
        v_add_f32_dpp v{r}, v{t}, v{t} row_mirror row_mask:0xf bank_mask:0xf
        s_nop 0
        v_readlane_b32 s40, v{r}, 0
        v_readlane_b32 s41, v{r}, 16
        v_readlane_b32 s42, v{r}, 32
        v_readlane_b32 s43, v{r}, 48
        s_nop 1
        v_mov_b32 v{r}, s40
        v_add_f32 v{r}, s41, v{r}
        v_add_f32 v{r}, s42, v{r}
        v_add_f32 v{r}, s43, v{r}
        """)
    a(f"v_add_f32 v34, v{F}, v{F+1}")
    for i in range(2, 12): a(f"v_add_f32 v34, v34, v{F+i}")
    wave_sum(34, 35)
    a(f"""
    s_mov_b32 s44, 0x3ae38e39
    v_mul_f32 v36, s44, v34
    v_sub_f32 v37, v{F}, v36
    v_mul_f32 v34, v37, v37
    """)
    for i in range(1, 8):
        a(f"v_sub_f32 v37, v{F+i}, v36")
        a(f"v_fmac_f32 v34, v37, v37")
    a("s_mov_b64 exec, 0xffff")
    for i in range(8, 12):
        a(f"v_sub_f32 v37, v{F+i}, v36")
        a(f"v_fmac_f32 v34, v37, v37")
    a("s_mov_b64 exec, -1")
    wave_sum(34, 35)
    a(f"""
    v_mul_f32 v37, s44, v34
    v_cvt_pk_bf16_f32 v38, v36, v37
    v_lshlrev_b32 v36, 16, v38
    v_and_b32 v37, 0xffff0000, v38
    s_mov_b32 s45, 0x3727c5ac
    v_add_f32 v37, s45, v37
    v_cvt_pk_bf16_f32 v37, v37, v37
    v_lshlrev_b32 v37, 16, v37
    v_sqrt_f32 v37, v37
    s_nop 0
    v_cvt_pk_bf16_f32 v37, v37, v37
    v_lshlrev_b32 v37, 16, v37
    v_rcp_f32 v38, v37
    s_nop 0
    """)
    for i in range(6):
        x0, x1 = F + 2*i, F + 2*i + 1
        a(f"""
        v_sub_f32 v{x0}, v{x0}, v36
        v_sub_f32 v{x1}, v{x1}, v36
        v_cvt_pk_bf16_f32 v39, v{x0}, v{x1}
        v_lshlrev_b32 v{x0}, 16, v39
        v_and_b32 v{x1}, 0xffff0000, v39
        v_mul_f32 v40, v{x0}, v38
        v_mul_f32 v41, v{x1}, v38
        v_fma_f32 v42, -v40, v37, v{x0}
        v_fma_f32 v43, -v41, v37, v{x1}
        v_fmac_f32 v40, v42, v38
        v_fmac_f32 v41, v43, v38
        v_cvt_pk_bf16_f32 v{14+i}, v40, v41
        """)
    a(f"""
    s_movk_i32 s40, 8192
    s_movk_i32 s41, 16384
    buffer_store_dwordx2 v[14:15], v13, s[20:23], 0 offen
    buffer_store_dwordx2 v[16:17], v13, s[20:23], s40 offen
    s_mov_b64 exec, 0xffff
    buffer_store_dwordx2 v[18:19], v13, s[20:23], s41 offen
    s_endpgm
    """)
    a.label("prep_kv")
    srd(a, 16, 6, 7, SZ_ACT)
    srd(a, 20, 8, 9, SZ_ACT)
    srd(a, 28, 10, 11, D*4*2)
    srd(a, 32, 12, 13, SZ_ACT, WS_KVT)
    a(f"""
    s_lshl_b32 s40, s2, 2
    s_add_u32 s40, s40, s24                  ; u (0..1151)
    s_mov_b32 s41, 0x1c71c71d
    s_mul_hi_u32 s42, s40, s41               ; sgroup
    s_mul_i32 s43, s42, 9
    s_sub_u32 s43, s40, s43                  ; dgroup
    v_and_b32 v2, 7, v1
    v_lshrrev_b32 v3, 3, v1
    s_lshl_b32 s44, s42, 4
    v_lshl_add_u32 v3, v3, 1, s44            ; s0
    s_lshl_b32 s44, s43, 7
    v_lshl_add_u32 v4, v2, 4, s44            ; d0*2
    s_movk_i32 s45, 1152
    v_mul_lo_u32 v5, v3, s45
    v_add_u32 v5, v5, v4
    v_subrev_u32 v6, {3*1152}, v5
    v_subrev_u32 v7, {2*1152}, v5
    v_subrev_u32 v8, {1*1152}, v5
    buffer_load_dwordx4 v[12:15], v6, s[16:19], 0 offen
    buffer_load_dwordx4 v[16:19], v7, s[16:19], 0 offen
    buffer_load_dwordx4 v[20:23], v8, s[16:19], 0 offen
    buffer_load_dwordx4 v[24:27], v5, s[16:19], 0 offen
    buffer_load_dwordx4 v[28:31], v5, s[16:19], 0 offen offset:1152
    buffer_load_dwordx4 v[32:35], v5, s[20:23], 0 offen
    buffer_load_dwordx4 v[36:39], v5, s[20:23], 0 offen offset:1152
    v_lshlrev_b32 v9, 2, v4
    buffer_load_dwordx4 v[40:43], v9, s[28:31], 0 offen
    buffer_load_dwordx4 v[44:47], v9, s[28:31], 0 offen offset:16
    buffer_load_dwordx4 v[48:51], v9, s[28:31], 0 offen offset:32
    buffer_load_dwordx4 v[52:55], v9, s[28:31], 0 offen offset:48
    v_lshlrev_b32 v10, 11, v4
    v_and_b32 v11, 0xfffffff8, v3
    v_lshl_add_u32 v10, v11, 1, v10
    v_and_b32 v11, 7, v3
    v_sub_u32 v11, 6, v11
    v_lshl_add_u32 v10, v11, 1, v10
    s_waitcnt vmcnt(0)
    """)
    KF = 56; WF = 66; VF = 74; AC = 78; PR = 82; T = 84; OUT = 86
    for p in range(4):
        for r in range(5):
            a(f"v_lshlrev_b32 v{KF+2*r}, 16, v{12+4*r+p}")
            a(f"v_and_b32 v{KF+2*r+1}, 0xffff0000, v{12+4*r+p}")
        for r in range(2):
            a(f"v_lshlrev_b32 v{VF+2*r}, 16, v{32+4*r+p}")
            a(f"v_and_b32 v{VF+2*r+1}, 0xffff0000, v{32+4*r+p}")
        for c in range(2):
            ch = 2*p + c
            a(f"v_lshlrev_b32 v{WF+4*c+0}, 16, v{40+2*ch}")
            a(f"v_and_b32 v{WF+4*c+1}, 0xffff0000, v{40+2*ch}")
            a(f"v_lshlrev_b32 v{WF+4*c+2}, 16, v{41+2*ch}")
            a(f"v_and_b32 v{WF+4*c+3}, 0xffff0000, v{41+2*ch}")
        for r in range(2):
            for t in range(4):
                a(f"v_mul_f32 v{PR}, v{KF+2*(r+t)}, v{WF+3-t}")
                a(f"v_mul_f32 v{PR+1}, v{KF+2*(r+t)+1}, v{WF+4+3-t}")
                a(f"v_cvt_pk_bf16_f32 v{T}, v{PR}, v{PR+1}")
                if t == 0:
                    a(f"v_lshlrev_b32 v{AC+2*r}, 16, v{T}")
                    a(f"v_and_b32 v{AC+2*r+1}, 0xffff0000, v{T}")
                else:
                    a(f"v_lshlrev_b32 v{PR}, 16, v{T}")
                    a(f"v_and_b32 v{PR+1}, 0xffff0000, v{T}")
                    a(f"v_add_f32 v{PR}, v{AC+2*r}, v{PR}")
                    a(f"v_add_f32 v{PR+1}, v{AC+2*r+1}, v{PR+1}")
                    a(f"v_cvt_pk_bf16_f32 v{T}, v{PR}, v{PR+1}")
                    a(f"v_lshlrev_b32 v{AC+2*r}, 16, v{T}")
                    a(f"v_and_b32 v{AC+2*r+1}, 0xffff0000, v{T}")
            a(f"v_mul_f32 v{AC+2*r}, v{AC+2*r}, v{VF+2*r}")
            a(f"v_mul_f32 v{AC+2*r+1}, v{AC+2*r+1}, v{VF+2*r+1}")
        for c in range(2):
            ch = 2*p + c
            a(f"v_cvt_pk_bf16_f32 v{OUT+2*p+c}, v{AC+2+c}, v{AC+0+c}")
            a(f"s_mov_b32 s46, {ch*4096}")
            a(f"buffer_store_dword v{OUT+2*p+c}, v10, s[32:35], s46 offen")
    a.label("prep_done")
    a("s_endpgm")

HEADER = open("cdna_kernels/%s.s.ref" % NAME).read().split("; Override launch geometry")[0]

def main():
    a = A()
    launches = []
    kds = []
    import os
    if not os.environ.get("FUSE_PREP"):
        gen_prep2(a); launches.append(("prep_kernel", P2_LN + P2_KV, 256, 0)); kds.append(kd("prep_kernel", 96, 64))
    import gen2
    gen2.add(a, launches, kds, globals())
    out = HEADER
    for (k, g, b, l) in launches:
        out += f"; @launch kernel={k} grid=({g},1,1) block=({b},1,1) lds={l}\n"
    out += '.amdgcn_target "amdgcn-amd-amdhsa--gfx950"\n.text\n'
    out += a.text()
    out += '.section .rodata,"a"\n'
    for k in kds:
        out += ".p2align 6\n" + k
    open(sys.argv[1] if len(sys.argv) > 1 else "cdna_kernels/%s.s" % NAME, "w").write(out)

if __name__ == "__main__":
    main()
```

```python
def add(a, launches, kds, G):
    gen_gemm1(a, G); launches.append(("gemm1_kernel", 256, 512, 4*G1_STG)); kds.append(G["kd"]("gemm1_kernel", 256, 102))
    try:
        import gen3
        gen3.add(a, launches, kds, G)
    except ImportError:
        pass

G1_STG = 16384 + 18432

import os
G1_NODMA = os.environ.get('G1_NODMA')
G1_NOMFMA = os.environ.get('G1_NOMFMA')
G1_NOBAR = os.environ.get('G1_NOBAR')
G1_STAMP = os.environ.get('G1_STAMP')
FUSE_PREP = bool(os.environ.get('FUSE_PREP'))
PREFETCH = not os.environ.get('NO_PREFETCH')
G1_NOREAD = os.environ.get('G1_NOREAD')
def gen_gemm1(a, G):
    srd = G["srd"]; WS_XN = G["WS_XN"]; WS_H = G["WS_H"]; SZ_ACT = G["SZ_ACT"]; SZ_H = G["SZ_H"]; SZ_W = G["SZ_W"]
    G["kernel_header"](a, "gemm1_kernel")
    STG = G1_STG
    NST = 18
    a(f"""
    s_load_dwordx2 s[4:5], s[0:1], 96
    s_load_dwordx2 s[6:7], s[0:1], 56
    s_load_dwordx2 s[8:9], s[0:1], 64
    s_load_dwordx2 s[60:61], s[0:1], 0       ; x
    s_load_dwordx2 s[62:63], s[0:1], 8       ; k
    s_load_dwordx2 s[64:65], s[0:1], 16      ; v
    s_load_dwordx2 s[66:67], s[0:1], 24      ; shift_k
    s_load_dwordx2 s[68:69], s[0:1], 88
    s_load_dwordx2 s[96:97], s[0:1], 72
    s_load_dwordx2 s[98:99], s[0:1], 32
    s_cmp_ge_u32 s2, 256
    s_cbranch_scc1 g1_done
    s_memtime s[48:49]
    v_lshrrev_b32 v1, 6, v0
    s_nop 0
    v_readfirstlane_b32 s24, v1              ; wave
    v_and_b32 v1, 63, v0                     ; lane
    s_and_b32 s25, s24, 3                    ; mw
    s_lshr_b32 s26, s24, 2                   ; gu
    s_and_b32 s28, s2, 7
    s_lshl_b32 s28, s28, 2
    s_lshr_b32 s27, s2, 3                    ; idx
    s_and_b32 s29, s27, 3
    s_add_u32 s28, s28, s29                  ; nblk
    s_lshr_b32 s27, s27, 2                   ; mblk
    s_waitcnt lgkmcnt(0)
    s_cmp_eq_u32 s26, 0
    s_cselect_b32 s6, s6, s8
    s_cselect_b32 s7, s7, s9
    """)
    srd(a, 12, 4, 5, SZ_ACT, WS_XN)
    srd(a, 16, 6, 7, SZ_W)
    srd(a, 20, 4, 5, SZ_H, WS_H)
    a(f"""
    s_lshl_b32 s32, s27, 4                   ; mblk*16
    s_lshl_b32 s33, s24, 1                   ; 2w
    s_add_u32 s32, s32, s33
    s_mul_i32 s32, s32, {18*1024}
    v_lshlrev_b32 v2, 4, v1
    v_add_u32 v2, s32, v2                    ; voffA0
    v_add_u32 v3, {18*1024}, v2              ; voffA1
    s_lshl_b32 s33, s25, 3                   ; 8*mw
    s_mul_i32 s33, s33, 9216
    s_mul_i32 s34, s28, 288
    s_add_u32 s33, s33, s34
    """)
    for i in range(3):
        a(f"""
        v_add_u32 v20, {64*i}, v1            ; q
        v_mul_u32_u24 v21, 3641, v20
        v_lshrrev_b32 v21, 16, v21           ; row = q/18
        v_mul_u32_u24 v22, 18, v21
        v_sub_u32 v22, v20, v22              ; c
        v_mul_u32_u24 v21, 9216, v21
        v_lshl_add_u32 v21, v22, 4, v21
        v_add_u32 v{4+i}, s33, v21
        """)
    a(f"""
    s_lshl_b32 s30, s24, 11                  ; w*2048
    s_mul_i32 s31, s26, 9216
    s_mul_i32 s34, s25, 2304
    s_add_u32 s31, s31, s34
    s_add_u32 s31, s31, 16384
    s_lshl_b32 s34, s25, 12                  ; mw*4096
    v_lshlrev_b32 v8, 4, v1
    v_add_u32 v8, s34, v8                    ; vA[0]
    v_lshrrev_b32 v12, 2, v1
    v_mul_u32_u24 v12, 288, v12
    v_and_b32 v13, 3, v1
    v_lshl_add_u32 v12, v13, 3, v12
    s_mul_i32 s34, s26, 9216
    s_add_u32 s34, s34, 16384
    v_add_u32 v12, s34, v12                  ; vB[0]
    """)
    for b in range(1, 4):
        a(f"v_add_u32 v{8+b}, {b*STG}, v8")
        a(f"v_add_u32 v{12+b}, {b*STG}, v12")
    a(f"""
    s_lshl_b32 s34, s27, 4
    s_lshl_b32 s35, s25, 2
    s_add_u32 s34, s34, s35                  ; mblk*16+4mw
    s_mul_i32 s34, s34, 144
    s_mul_i32 s35, s28, 9
    s_lshr_b32 s35, s35, 1
    s_add_u32 s34, s34, s35
    s_lshl_b32 s34, s34, 10
    v_lshlrev_b32 v16, 4, v1
    v_add_u32 v16, s34, v16                  ; voffH
    s_mul_i32 s34, s24, 9216
    v_lshlrev_b32 v17, 3, v1
    v_add_u32 v17, s34, v17
    s_xor_b32 s35, s24, 4
    s_mul_i32 s35, s35, 9216
    v_lshlrev_b32 v18, 3, v1
    v_add_u32 v18, s35, v18
    """)
    AF = [44, 60]
    BF = 76
    ACC = 112
    def acc(mt, ft): return ACC + 4*(mt*9 + ft)

    def dma_piece(t, i):
        b = t % 4
        if i == 0:
            a(f"s_mov_b32 s36, {t*1024}")
            a(f"s_add_u32 m0, s30, {b*STG}")
            a(f"s_mov_b32 s37, {t*294912}")
            a("buffer_load_dwordx4 v2, s[12:15], s36 offen lds")
        elif i == 1:
            a(f"s_add_u32 m0, s30, {b*STG + 1024}")
            a("s_nop 0")
            a("buffer_load_dwordx4 v3, s[12:15], s36 offen lds")
        elif i == 2:
            a(f"s_add_u32 m0, s31, {b*STG}")
            a("s_nop 0")
            a("buffer_load_dwordx4 v4, s[16:19], s37 offen lds")
        elif i == 3:
            a(f"s_add_u32 m0, s31, {b*STG + 1024}")
            a("s_nop 0")
            a("buffer_load_dwordx4 v5, s[16:19], s37 offen lds")
        else:
            a(f"s_add_u32 m0, s31, {b*STG + 2048}")
            a("s_mov_b64 exec, 0xffff")
            a("buffer_load_dwordx4 v6, s[16:19], s37 offen lds")
            a("s_mov_b64 exec, -1")
    def dma(t):
        for i in range(5): dma_piece(t, i)

    def readA(t):
        b = t % 4; r = AF[t % 2]
        for mt in range(4):
            a(f"ds_read_b128 v[{r+4*mt}:{r+4*mt+3}], v{8+b} offset:{mt*1024}")
    def readB(t, ft):
        b = t % 4; r = BF + 4*ft
        a(f"ds_read_b64_tr_b16 v[{r}:{r+1}], v{12+b} offset:{ft*32}")
        a(f"ds_read_b64_tr_b16 v[{r+2}:{r+3}], v{12+b} offset:{4608 + ft*32}")

    if not FUSE_PREP:
        dma(0); dma(1); dma(2)
        a("s_waitcnt vmcnt(10)")
        a("s_barrier")
    else:
        def bdma():
            for t in range(3):
                a(f"s_mov_b32 s37, {t*294912}")
                for i in (2, 3, 4): dma_piece(t, i)
        gen_ln_kv(a, G, bdma)
        for t in range(3):
            for i in (0, 1): dma_piece(t, i)
        a("s_waitcnt vmcnt(4)")
        a("s_barrier")
    if G1_STAMP: a("s_memtime s[50:51]"); a("s_waitcnt lgkmcnt(0)")
    readA(0)
    for ft in range(9): readB(0, ft)
    for t in range(NST):
        last = (t == NST-1)
        if t == 0: a("s_waitcnt lgkmcnt(0)")
        for ft in range(9):
            if t > 0:
                a(f"s_waitcnt lgkmcnt({12 if not last else min(15, 2*(8-ft))})")
            for mt in range(4):
                c = f"v[{acc(mt,ft)}:{acc(mt,ft)+3}]"
                src_c = c if t > 0 else "0"
                a(f"v_mfma_f32_16x16x32_bf16 {c}, v[{BF+4*ft}:{BF+4*ft+3}], v[{AF[t%2]+4*mt}:{AF[t%2]+4*mt+3}], {src_c}")
            if not last:
                if ft == 0:
                    a(f"s_waitcnt vmcnt({2 if (t == 0 and FUSE_PREP) else (5 if t+2 < NST else 0)})")
                    a("s_barrier")
                    readA(t+1)
                    if t == NST-2 and PREFETCH:
                        srd(a, 76, 96, 97, SZ_W)
                        srd(a, 80, 98, 99, SZ_ACT)
                        a("""
                        s_and_b32 s84, s2, 3
                        s_mul_i32 s84, s84, 1327104
                        s_lshr_b32 s85, s2, 3
                        s_mul_i32 s85, s85, 41472
                        s_add_u32 s84, s84, s85
                        s_mul_i32 s85, s24, 5184
                        s_add_u32 s84, s84, s85
                        v_lshlrev_b32 v20, 4, v1
                        v_add_u32 v20, s84, v20
                        s_mul_i32 s84, s2, 9216
                        s_lshl_b32 s85, s24, 11
                        s_add_u32 s84, s84, s85
                        v_lshlrev_b32 v21, 4, v1
                        v_add_u32 v21, s84, v21
                        """)
                        for i in range(4):
                            a(f"buffer_load_dwordx4 v[32:35], v20, s[76:79], 0 offen offset:{i*1024}")
                        a("v_add_u32 v20, 4096, v20")
                        for i in range(2):
                            a(f"buffer_load_dwordx4 v[32:35], v20, s[76:79], 0 offen offset:{i*1024}")
                        for i in range(2):
                            a(f"buffer_load_dwordx4 v[36:39], v21, s[80:83], 0 offen offset:{i*1024}")
                readB(t+1, ft)
                if 1 <= ft <= 5 and t + 3 < NST: dma_piece(t+3, ft-1)
    a("s_nop 7")
    a("s_nop 7")
    if G1_STAMP: a("s_memtime s[52:53]"); a("s_waitcnt lgkmcnt(0)")
    a("s_barrier")
    for mt in range(4):
        for ft in range(9):
            c = acc(mt, ft)
            a(f"v_cvt_pk_bf16_f32 v{c}, v{c}, v{c+1}")
            a(f"v_cvt_pk_bf16_f32 v{c+1}, v{c+2}, v{c+3}")
    a("s_and_b32 s36, s28, 1")
    a("s_lshl_b32 s36, s36, 1")
    a("s_add_u32 s36, s36, s26")
    a("s_cmp_eq_u32 s36, 1")
    a("s_cbranch_scc1 g1_ep1")
    a("s_cmp_eq_u32 s36, 2")
    a("s_cbranch_scc1 g1_ep2")
    a("s_cmp_eq_u32 s36, 3")
    a("s_cbranch_scc1 g1_ep3")
    for var in range(4):
        gu = var & 1; odd = var >> 1
        if var > 0: a.label(f"g1_ep{var}")
        send = [2, 3] if gu == 0 else [0, 1]
        keep = [0, 1] if gu == 0 else [2, 3]
        for i, mt in enumerate(send):
            for ft in range(9):
                c = acc(mt, ft)
                a(f"ds_write_b64 v17, v[{c}:{c+1}] offset:{(i*9+ft)*512}")
        a("s_waitcnt lgkmcnt(0)")
        a("s_barrier")
        for i, mt in enumerate(keep):
            for ft in range(9):
                c = acc(mt, ft)
                a(f"ds_read_b64 v[{c+2}:{c+3}], v18 offset:{(i*9+ft)*512}")
        n = 0
        def prod(c, dst):
            a(f"""
            v_lshlrev_b32 v20, 16, v{c}
            v_and_b32 v21, 0xffff0000, v{c}
            v_lshlrev_b32 v22, 16, v{c+1}
            v_and_b32 v23, 0xffff0000, v{c+1}
            v_lshlrev_b32 v24, 16, v{c+2}
            v_and_b32 v25, 0xffff0000, v{c+2}
            v_lshlrev_b32 v26, 16, v{c+3}
            v_and_b32 v27, 0xffff0000, v{c+3}
            v_mul_f32 v20, v20, v24
            v_mul_f32 v21, v21, v25
            v_mul_f32 v22, v22, v26
            v_mul_f32 v23, v23, v27
            v_cvt_pk_bf16_f32 v{dst}, v20, v21
            v_cvt_pk_bf16_f32 v{dst+1}, v22, v23
            """)
        for i, mt in enumerate(keep):
            groups = [[0,1],[2,3],[4,5],[6,7],[8]] if not odd else [[0],[1,2],[3,4],[5,6],[7,8]]
            for gi, g in enumerate(groups):
                c0 = acc(mt, g[0])
                n += len(g)
                a(f"s_waitcnt lgkmcnt({min(15, 18-n)})")
                prod(c0, c0)
                if len(g) == 2:
                    prod(acc(mt, g[1]), c0+2)
                    a(f"s_mov_b32 s36, {mt*147456 + gi*1024}")
                    a(f"buffer_store_dwordx4 v[{c0}:{c0+3}], v16, s[20:23], s36 offen sc1")
                else:
                    a(f"s_mov_b32 s36, {mt*147456 + gi*1024 + (8 if odd else 0)}")
                    a(f"buffer_store_dwordx2 v[{c0}:{c0+1}], v16, s[20:23], s36 offen sc1")
        if G1_STAMP:
            a("s_waitcnt vmcnt(0)")
            a("s_memtime s[54:55]")
            a("s_waitcnt lgkmcnt(0)")
            a("s_sub_u32 s50, s50, s48")
            a("s_sub_u32 s52, s52, s48")
            a("s_sub_u32 s54, s54, s48")
            a("v_mov_b32 v20, s50")
            a("v_mov_b32 v21, s52")
            a("v_mov_b32 v22, s54")
            a("v_mov_b32 v23, 0")
            a("s_lshl_b32 s36, s2, 3")
            a("s_add_u32 s36, s36, s24")
            a("s_lshl_b32 s36, s36, 4")
            a("s_add_u32 s36, s36, 0x2F00000")
            a("v_mov_b32 v24, s36")
            a("s_add_u32 s56, s4, 0")
            a("s_addc_u32 s57, s5, 0")
            a("s_mov_b32 s58, 0x3000000")
            a("s_mov_b32 s59, 0x00020000")
            a("s_mov_b64 exec, 1")
            a("buffer_store_dwordx4 v[20:23], v24, s[56:59], 0 offen")
        a("s_endpgm")
    a.label("g1_done")
    a("s_endpgm")


def gen_ln_kv(a, G, dma_cb):
    srd = G["srd"]; SZ_ACT = G["SZ_ACT"]; WS_KVT = G["WS_KVT"]
    srd(a, 72, 60, 61, SZ_ACT)
    srd(a, 76, 68, 69, 256)
    a(f"""
    s_lshl_b32 s70, s2, 3
    s_add_u32 s70, s70, s24                  ; row
    s_mul_i32 s71, s70, 1152
    v_lshlrev_b32 v112, 3, v1
    v_add_u32 v112, s71, v112
    v_mov_b32 v118, 0
    v_mov_b32 v119, 0
    buffer_load_dwordx2 v[114:115], v112, s[72:75], 0 offen
    buffer_load_dwordx2 v[116:117], v112, s[72:75], 0 offen offset:512
    s_mov_b64 exec, 0xffff
    buffer_load_dwordx2 v[118:119], v112, s[72:75], 0 offen offset:1024
    s_mov_b64 exec, -1
    s_lshr_b32 s71, s70, 4
    s_mul_i32 s71, s71, {18*1024}
    s_and_b32 s80, s70, 15
    s_lshl_b32 s80, s80, 4
    s_add_u32 s71, s71, s80
    v_lshrrev_b32 v113, 3, v1
    v_lshlrev_b32 v113, 10, v113
    v_and_b32 v120, 3, v1
    v_lshl_add_u32 v113, v120, 8, v113
    v_bfe_u32 v120, v1, 2, 1
    v_lshl_add_u32 v113, v120, 3, v113
    v_add_u32 v113, s71, v113
    """)
    dma_cb()
    a("s_waitcnt vmcnt(9)")
    srd(a, 40, 62, 63, SZ_ACT)
    srd(a, 84, 64, 65, SZ_ACT)
    srd(a, 88, 66, 67, 576*4*2)
    srd(a, 92, 4, 5, SZ_ACT, WS_KVT)
    a(f"""
    s_lshl_b32 s44, s24, 8
    s_add_u32 s44, s44, s2                   ; u
    s_cmp_ge_u32 s44, 1152
    s_cbranch_scc1 g1_nokv0
    s_mov_b32 s45, 0x1c71c71d
    s_mul_hi_u32 s46, s44, s45               ; sgroup = u/9
    s_mul_i32 s47, s46, 9
    s_sub_u32 s47, s44, s47                  ; dgroup
    v_and_b32 v144, 7, v1                    ; dchunk
    v_lshrrev_b32 v145, 3, v1                ; sblk
    s_lshl_b32 s38, s46, 4
    v_lshl_add_u32 v145, v145, 1, s38        ; s0
    s_lshl_b32 s38, s47, 7
    v_lshl_add_u32 v146, v144, 4, s38        ; d0*2
    s_movk_i32 s39, 1152
    v_mul_lo_u32 v147, v145, s39
    v_add_u32 v147, v147, v146
    v_subrev_u32 v148, {3*1152}, v147
    v_subrev_u32 v149, {2*1152}, v147
    v_subrev_u32 v150, {1*1152}, v147
    buffer_load_dwordx4 v[152:155], v148, s[40:43], 0 offen
    buffer_load_dwordx4 v[156:159], v149, s[40:43], 0 offen
    buffer_load_dwordx4 v[160:163], v150, s[40:43], 0 offen
    buffer_load_dwordx4 v[164:167], v147, s[40:43], 0 offen
    buffer_load_dwordx4 v[168:171], v147, s[40:43], 0 offen offset:1152
    buffer_load_dwordx4 v[172:175], v147, s[84:87], 0 offen
    buffer_load_dwordx4 v[176:179], v147, s[84:87], 0 offen offset:1152
    v_lshlrev_b32 v149, 2, v146
    buffer_load_dwordx4 v[180:183], v149, s[88:91], 0 offen
    buffer_load_dwordx4 v[184:187], v149, s[88:91], 0 offen offset:16
    buffer_load_dwordx4 v[188:191], v149, s[88:91], 0 offen offset:32
    buffer_load_dwordx4 v[192:195], v149, s[88:91], 0 offen offset:48
    v_lshlrev_b32 v150, 11, v146
    v_and_b32 v151, 0xfffffff8, v145
    v_lshl_add_u32 v150, v151, 1, v150
    v_and_b32 v151, 7, v145
    v_sub_u32 v151, 6, v151
    v_lshl_add_u32 v150, v151, 1, v150
    """)
    a.label("g1_nokv0")
    F = 120
    for i in range(6):
        a(f"v_lshlrev_b32 v{F+2*i}, 16, v{114+i}")
        a(f"v_and_b32 v{F+2*i+1}, 0xffff0000, v{114+i}")
    def wave_sum(r, t):
        a(f"""
        s_nop 1
        v_add_f32_dpp v{t}, v{r}, v{r} quad_perm:[1,0,3,2] row_mask:0xf bank_mask:0xf
        s_nop 1
        v_add_f32_dpp v{r}, v{t}, v{t} quad_perm:[2,3,0,1] row_mask:0xf bank_mask:0xf
        s_nop 1
        v_add_f32_dpp v{t}, v{r}, v{r} row_half_mirror row_mask:0xf bank_mask:0xf
        s_nop 1
        v_add_f32_dpp v{r}, v{t}, v{t} row_mirror row_mask:0xf bank_mask:0xf
        s_nop 0
        v_readlane_b32 s80, v{r}, 0
        v_readlane_b32 s81, v{r}, 16
        v_readlane_b32 s82, v{r}, 32
        v_readlane_b32 s83, v{r}, 48
        s_nop 1
        v_mov_b32 v{r}, s80
        v_add_f32 v{r}, s81, v{r}
        v_add_f32 v{r}, s82, v{r}
        v_add_f32 v{r}, s83, v{r}
        """)
    a(f"v_add_f32 v134, v{F}, v{F+1}")
    for i in range(2, 12): a(f"v_add_f32 v134, v134, v{F+i}")
    wave_sum(134, 135)
    a(f"""
    s_mov_b32 s84, 0x3ae38e39
    v_mul_f32 v136, s84, v134                ; mean
    v_sub_f32 v137, v{F}, v136
    v_mul_f32 v134, v137, v137
    """)
    for i in range(1, 8):
        a(f"v_sub_f32 v137, v{F+i}, v136")
        a(f"v_fmac_f32 v134, v137, v137")
    a("s_mov_b64 exec, 0xffff")
    for i in range(8, 12):
        a(f"v_sub_f32 v137, v{F+i}, v136")
        a(f"v_fmac_f32 v134, v137, v137")
    a("s_mov_b64 exec, -1")
    wave_sum(134, 135)
    a(f"""
    v_mul_f32 v137, s84, v134                ; var
    v_cvt_pk_bf16_f32 v138, v136, v137
    v_lshlrev_b32 v136, 16, v138             ; m
    v_and_b32 v137, 0xffff0000, v138
    s_mov_b32 s85, 0x3727c5ac
    v_add_f32 v137, s85, v137
    v_cvt_pk_bf16_f32 v137, v137, v137
    v_lshlrev_b32 v137, 16, v137
    v_sqrt_f32 v137, v137
    s_nop 0
    v_cvt_pk_bf16_f32 v137, v137, v137
    v_lshlrev_b32 v137, 16, v137             ; den
    v_rcp_f32 v138, v137
    s_nop 0
    """)
    for i in range(6):
        x0, x1 = F + 2*i, F + 2*i + 1
        a(f"""
        v_sub_f32 v{x0}, v{x0}, v136
        v_sub_f32 v{x1}, v{x1}, v136
        v_cvt_pk_bf16_f32 v139, v{x0}, v{x1}
        v_lshlrev_b32 v{x0}, 16, v139
        v_and_b32 v{x1}, 0xffff0000, v139
        v_mul_f32 v140, v{x0}, v138
        v_mul_f32 v141, v{x1}, v138
        v_fma_f32 v142, -v140, v137, v{x0}
        v_fma_f32 v143, -v141, v137, v{x1}
        v_fmac_f32 v140, v142, v138
        v_fmac_f32 v141, v143, v138
        v_cvt_pk_bf16_f32 v{114+i}, v140, v141
        """)
    a(f"""
    s_movk_i32 s80, 8192
    s_movk_i32 s81, 16384
    buffer_store_dwordx2 v[114:115], v113, s[12:15], 0 offen sc1
    buffer_store_dwordx2 v[116:117], v113, s[12:15], s80 offen sc1
    s_mov_b64 exec, 0xffff
    buffer_store_dwordx2 v[118:119], v113, s[12:15], s81 offen sc1
    s_mov_b64 exec, -1
    s_waitcnt vmcnt(0)
    s_barrier
    s_cmp_lg_u32 s24, 0
    s_cbranch_scc1 g1_noflag
    v_mov_b32 v112, s2
    v_mov_b32 v113, 1
    s_mov_b64 exec, 1
    buffer_store_byte v113, v112, s[76:79], 0 offen sc1
    s_mov_b64 exec, -1
    """)
    a.label("g1_noflag")
    a("s_cmp_ge_u32 s44, 1152")
    a("s_cbranch_scc1 g1_nokv")
    KF = 200; WF = 210; VF = 218; AC = 222; PR = 226; T = 228; OUT = 230
    for p in range(4):
        for r in range(5):
            a(f"v_lshlrev_b32 v{KF+2*r}, 16, v{152+4*r+p}")
            a(f"v_and_b32 v{KF+2*r+1}, 0xffff0000, v{152+4*r+p}")
        for r in range(2):
            a(f"v_lshlrev_b32 v{VF+2*r}, 16, v{172+4*r+p}")
            a(f"v_and_b32 v{VF+2*r+1}, 0xffff0000, v{172+4*r+p}")
        for c in range(2):
            ch = 2*p + c
            a(f"v_lshlrev_b32 v{WF+4*c+0}, 16, v{180+2*ch}")
            a(f"v_and_b32 v{WF+4*c+1}, 0xffff0000, v{180+2*ch}")
            a(f"v_lshlrev_b32 v{WF+4*c+2}, 16, v{181+2*ch}")
            a(f"v_and_b32 v{WF+4*c+3}, 0xffff0000, v{181+2*ch}")
        for r in range(2):
            for t in range(4):
                a(f"v_mul_f32 v{PR}, v{KF+2*(r+t)}, v{WF+3-t}")
                a(f"v_mul_f32 v{PR+1}, v{KF+2*(r+t)+1}, v{WF+4+3-t}")
                a(f"v_cvt_pk_bf16_f32 v{T}, v{PR}, v{PR+1}")
                if t == 0:
                    a(f"v_lshlrev_b32 v{AC+2*r}, 16, v{T}")
                    a(f"v_and_b32 v{AC+2*r+1}, 0xffff0000, v{T}")
                else:
                    a(f"v_lshlrev_b32 v{PR}, 16, v{T}")
                    a(f"v_and_b32 v{PR+1}, 0xffff0000, v{T}")
                    a(f"v_add_f32 v{PR}, v{AC+2*r}, v{PR}")
                    a(f"v_add_f32 v{PR+1}, v{AC+2*r+1}, v{PR+1}")
                    a(f"v_cvt_pk_bf16_f32 v{T}, v{PR}, v{PR+1}")
                    a(f"v_lshlrev_b32 v{AC+2*r}, 16, v{T}")
                    a(f"v_and_b32 v{AC+2*r+1}, 0xffff0000, v{T}")
            a(f"v_mul_f32 v{AC+2*r}, v{AC+2*r}, v{VF+2*r}")
            a(f"v_mul_f32 v{AC+2*r+1}, v{AC+2*r+1}, v{VF+2*r+1}")
        for c in range(2):
            ch = 2*p + c
            a(f"v_cvt_pk_bf16_f32 v{OUT+2*p+c}, v{AC+2+c}, v{AC+0+c}")
            a(f"s_mov_b32 s38, {ch*4096}")
            a(f"buffer_store_dword v{OUT+2*p+c}, v150, s[92:95], s38 offen")
    a.label("g1_nokv")
    a(f"""
    s_cmp_lg_u32 s24, 0
    s_cbranch_scc1 g1_nopoll
    s_lshl_b32 s70, s27, 5
    v_mov_b32 v112, s70
    s_mov_b64 exec, 1
    s_mov_b32 s71, 0
    s_mov_b32 s86, 0x01010101
    """)
    a.label("g1_poll")
    a(f"""
    buffer_load_dwordx4 v[116:119], v112, s[76:79], 0 offen sc1
    buffer_load_dwordx4 v[120:123], v112, s[76:79], 0 offen offset:16 sc1
    s_waitcnt vmcnt(0)
    v_and_b32 v116, v116, v117
    v_and_b32 v118, v118, v119
    v_and_b32 v120, v120, v121
    v_and_b32 v122, v122, v123
    v_and_b32 v116, v116, v118
    v_and_b32 v120, v120, v122
    v_and_b32 v116, v116, v120
    s_nop 0
    v_readfirstlane_b32 s80, v116
    s_add_u32 s71, s71, 1
    s_cmp_ge_u32 s71, 0x400000
    s_cbranch_scc1 g1_polldone
    s_cmp_eq_u32 s80, s86
    s_cbranch_scc1 g1_polldone
    s_sleep 12
    s_branch g1_poll
    """)
    a.label("g1_polldone")
    a("s_mov_b64 exec, -1")
    a("buffer_inv sc1")
    a("s_waitcnt vmcnt(0)")
    a.label("g1_nopoll")
    a("s_barrier")
```

```python
import os
G2_STAMP = os.environ.get('G2_STAMP')
FUSE_FINAL = bool(os.environ.get('FUSE_FINAL'))
BF16_PART = bool(os.environ.get('BF16_PART'))
G2_STG = 18432
WS_FLAG = 0x2B00000
CONV_REG = 24512
CONV_PER_WG = 3
K3_LDS = 73728
N_CONV = 576 // CONV_PER_WG
def add(a, launches, kds, G):
    gen_k3(a, G); launches.append(("gemm2_kernel", 256 + N_CONV, 512, K3_LDS)); kds.append(G["kd"]("gemm2_kernel", 128, 96))
    if not FUSE_FINAL:
        gen_k4(a, G); launches.append(("final_kernel", 288, 256, 10240)); kds.append(G["kd"]("final_kernel", 128, 64))

def gen_k3(a, G):
    srd = G["srd"]
    WS_H = G["WS_H"]; WS_PART = G["WS_PART"]; WS_KVT = G["WS_KVT"]; WS_Y2T = G["WS_Y2T"]
    SZ_ACT = G["SZ_ACT"]; SZ_H = G["SZ_H"]; SZ_W = G["SZ_W"]; SZ_PART = G["SZ_PART"]
    G["kernel_header"](a, "gemm2_kernel")
    STG = G2_STG
    NST = 18
    a(f"""
    s_load_dwordx2 s[4:5], s[0:1], 96        ; ws
    s_load_dwordx2 s[6:7], s[0:1], 72        ; w_down
    s_load_dwordx2 s[8:9], s[0:1], 32        ; ssm_k
    s_load_dwordx2 s[10:11], s[0:1], 40      ; ssm_D
    s_load_dwordx2 s[60:61], s[0:1], 0       ; x
    s_load_dwordx2 s[62:63], s[0:1], 80      ; out
    s_load_dwordx2 s[64:65], s[0:1], 88
    s_cmp_ge_u32 s2, {256+N_CONV}
    s_cbranch_scc1 g2_done
    s_memtime s[48:49]
    v_lshrrev_b32 v1, 6, v0
    s_nop 0
    v_readfirstlane_b32 s24, v1              ; wave
    v_and_b32 v1, 63, v0                     ; lane
    s_waitcnt lgkmcnt(0)
    s_cmp_ge_u32 s2, 256
    s_cbranch_scc1 conv_start
    s_and_b32 s25, s24, 3                    ; mw
    s_lshr_b32 s26, s24, 2                   ; kg
    s_and_b32 s29, s2, 7                     ; xcd
    s_and_b32 s38, s29, 3                    ; ks
    s_lshr_b32 s29, s29, 2                   ; mhalf
    s_lshr_b32 s27, s2, 3                    ; idx
    s_and_b32 s28, s27, 3                    ; nblk
    s_lshr_b32 s27, s27, 2
    s_lshl_b32 s29, s29, 3
    s_add_u32 s27, s27, s29                  ; mblk (0..15)
    """)
    srd(a, 12, 4, 5, SZ_H, WS_H)
    srd(a, 16, 6, 7, SZ_W)
    srd(a, 20, 4, 5, SZ_PART, WS_PART)
    a(f"""
    ; A (h) offsets: (st*144 + ks*36 + kg)*1024 + lane*16
    s_lshl_b32 s32, s27, 3
    s_lshl_b32 s33, s25, 1
    s_add_u32 s32, s32, s33
    s_mul_i32 s33, s32, {144*1024}
    s_mul_i32 s34, s38, {36*1024}
    s_add_u32 s33, s33, s34
    s_lshl_b32 s34, s26, 10
    s_add_u32 s33, s33, s34
    v_lshlrev_b32 v2, 4, v1
    v_add_u32 v2, s33, v2
    v_add_u32 v3, {144*1024}, v2
    s_mul_i32 s33, s38, 1152
    s_lshl_b32 s34, s24, 3
    s_add_u32 s33, s33, s34
    s_mul_i32 s33, s33, 1152
    s_mul_i32 s34, s28, 288
    s_add_u32 s33, s33, s34
    """)
    for i in range(3):
        a(f"""
        v_add_u32 v20, {64*i}, v1
        v_mul_u32_u24 v21, 3641, v20
        v_lshrrev_b32 v21, 16, v21
        v_mul_u32_u24 v22, 18, v21
        v_sub_u32 v22, v20, v22
        v_mul_u32_u24 v21, 1152, v21
        v_lshl_add_u32 v21, v22, 4, v21
        v_add_u32 v{4+i}, s33, v21
        """)
    a(f"""
    s_mul_i32 s31, s24, 2304
    v_lshrrev_b32 v8, 2, v1
    v_mul_u32_u24 v8, 288, v8
    v_and_b32 v9, 3, v1
    v_lshl_add_u32 v8, v9, 3, v8
    s_mul_i32 s34, s26, 9216
    v_add_u32 v8, s34, v8                    ; vB[0]
    """)
    for b in range(1, 4):
        a(f"v_add_u32 v{8+b}, {b*STG}, v8")
    a(f"""
    """)
    NA = 4
    AS = [12, 20, 28, 36]
    RB = 3
    BR = 44
    ACC = 56
    def acc(mt, dt): return ACC + 4*(mt*9 + dt)
    def dma_piece(t, i):
        b = t % 4
        if i == 0:
            a(f"s_mov_b32 s37, {t*64*1152}")
            a(f"s_add_u32 m0, s31, {b*STG}")
            a("s_nop 0")
            a("buffer_load_dwordx4 v4, s[16:19], s37 offen lds")
        elif i == 1:
            a(f"s_add_u32 m0, s31, {b*STG + 1024}")
            a("s_nop 0")
            a("buffer_load_dwordx4 v5, s[16:19], s37 offen lds")
        else:
            a(f"s_add_u32 m0, s31, {b*STG + 2048}")
            a("s_mov_b64 exec, 0xffff")
            a("buffer_load_dwordx4 v6, s[16:19], s37 offen lds")
            a("s_mov_b64 exec, -1")
    def dma(t):
        for i in range(3): dma_piece(t, i)
    def loadA_piece(t, i):
        r = AS[t % NA]
        if i == 0:
            a(f"s_mov_b32 s36, {t*2048}")
            a(f"buffer_load_dwordx4 v[{r}:{r+3}], v2, s[12:15], s36 offen")
        else:
            a(f"buffer_load_dwordx4 v[{r+4}:{r+7}], v3, s[12:15], s36 offen")
    def loadA(t):
        loadA_piece(t, 0); loadA_piece(t, 1)
    def readB(n):
        t = n // 9; dt = n % 9; b = t % 4; r = BR + 4*(n % RB)
        a(f"ds_read_b64_tr_b16 v[{r}:{r+1}], v{8+b} offset:{dt*32}")
        a(f"ds_read_b64_tr_b16 v[{r+2}:{r+3}], v{8+b} offset:{4608 + dt*32}")
    loadA(0); dma(0); loadA(1); dma(1); loadA(2); dma(2)
    a("s_waitcnt vmcnt(10)")
    a("s_barrier")
    if G2_STAMP: a("s_memtime s[50:51]"); a("s_waitcnt lgkmcnt(0)")
    for n in range(RB): readB(n)
    NT = 9*NST
    for t in range(NST):
        def cnt(lo):
            return sum(5 for x in range(lo, t+3) if x <= NST-1)
        if t <= 2:
            nA = 3 + cnt(t+1) if t < 3 else 0
            a(f"s_waitcnt vmcnt({min(nA, 63)})")
        else:
            a(f"s_waitcnt vmcnt({cnt(t+1)})")
        for dt in range(9):
            n = 9*t + dt
            younger = min(RB-1, NT-1-n)
            a(f"s_waitcnt lgkmcnt({2*younger})")
            br = BR + 4*(n % RB)
            for mt in range(2):
                c = f"v[{acc(mt,dt)}:{acc(mt,dt)+3}]"
                src_c = c if t > 0 else "0"
                ar = AS[t % NA] + 4*mt
                a(f"v_mfma_f32_16x16x32_bf16 {c}, v[{br}:{br+3}], v[{ar}:{ar+3}], {src_c}")
            if dt == 1 and t < NST-1:
                if t + 1 <= 2: nD = cnt(t+2)
                else: nD = 2 + cnt(t+2)
                a(f"s_waitcnt vmcnt({nD})")
                a("s_barrier")
            if n + RB < NT: readB(n + RB)
            if t + 3 < NST:
                if 2 <= dt <= 4: dma_piece(t+3, dt-2)
                if 5 <= dt <= 6: loadA_piece(t+3, dt-5)
    a(("""
    v_and_b32 v1, 63, v0
    ; partial store offset: ((ks*128 + st0 + kg)*36 + nblk*9)*1024 + lane*16   (keep mt = kg)
    s_lshl_b32 s34, s38, 7
    s_add_u32 s34, s34, s32
    s_add_u32 s34, s34, s26
    s_mul_i32 s34, s34, 36
    s_mul_i32 s35, s28, 9
    s_add_u32 s34, s34, s35
    s_lshl_b32 s34, s34, PSH
    v_lshlrev_b32 v12, PLS, v1
    v_add_u32 v12, s34, v12
    s_mul_i32 s34, s24, 9216
    v_lshlrev_b32 v13, 4, v1
    v_add_u32 v13, s34, v13                  ; own exchange region
    s_xor_b32 s35, s24, 4
    s_mul_i32 s35, s35, 9216
    v_lshlrev_b32 v14, 4, v1
    v_add_u32 v14, s35, v14                  ; partner region
    """).replace("PSH", "9" if BF16_PART else "10").replace("PLS", "3" if BF16_PART else "4"))
    a("s_nop 7")
    if G2_STAMP: a("s_memtime s[52:53]"); a("s_waitcnt lgkmcnt(0)")
    a("s_barrier")
    a("s_cmp_eq_u32 s26, 0")
    a("s_cbranch_scc0 g2_ep1")
    FREG = 0
    YREG = 18432
    for kg in range(2):
        if kg == 1: a.label("g2_ep1")
        send = 1 - kg; keep = kg
        for dt in range(9):
            c = acc(send, dt)
            a(f"ds_write_b128 v13, v[{c}:{c+3}] offset:{dt*1024}")
        a("s_waitcnt lgkmcnt(0)")
        a("s_barrier")
        for dt in range(9):
            c = acc(send, dt)
            a(f"ds_read_b128 v[{c}:{c+3}], v14 offset:{dt*1024}")
        for dt in range(9):
            c = acc(send, dt); k = acc(keep, dt)
            a(f"s_waitcnt lgkmcnt({8-dt})")
            for i in range(4):
                a(f"v_add_f32 v{k+i}, v{k+i}, v{c+i}")
            if not FUSE_FINAL and not BF16_PART:
                a(f"s_mov_b32 s36, {dt*1024}")
                a(f"buffer_store_dwordx4 v[{k}:{k+3}], v12, s[20:23], s36 offen sc1")
            if not FUSE_FINAL and BF16_PART:
                a(f"v_cvt_pk_bf16_f32 v{k}, v{k}, v{k+1}")
                a(f"v_cvt_pk_bf16_f32 v{k+1}, v{k+2}, v{k+3}")
                a(f"s_mov_b32 s36, {dt*512}")
                a(f"buffer_store_dwordx2 v[{k}:{k+1}], v12, s[20:23], s36 offen sc1")
        if not FUSE_FINAL:
            if G2_STAMP:
                a("""
                s_waitcnt vmcnt(0)
                s_memtime s[54:55]
                s_waitcnt lgkmcnt(0)
                s_sub_u32 s50, s50, s48
                s_sub_u32 s52, s52, s48
                s_sub_u32 s54, s54, s48
                v_mov_b32 v20, s50
                v_mov_b32 v21, s52
                v_mov_b32 v22, s54
                v_mov_b32 v23, 0
                s_lshl_b32 s36, s2, 3
                s_add_u32 s36, s36, s24
                s_lshl_b32 s36, s36, 4
                s_add_u32 s36, s36, 0x2F80000
                v_mov_b32 v24, s36
                s_add_u32 s56, s4, 0
                s_addc_u32 s57, s5, 0
                s_mov_b32 s58, 0x3000000
                s_mov_b32 s59, 0x00020000
                s_mov_b64 exec, 1
                buffer_store_dwordx4 v[20:23], v24, s[56:59], 0 offen
                """)
            a("s_endpgm")
            continue
        a("s_barrier")
        a("s_cmp_eq_u32 s25, s38")
        a(f"s_cbranch_scc1 g2_own{kg}")
        for dt in range(9):
            k = acc(keep, dt)
            a(f"s_mov_b32 s36, {dt*1024}")
            a(f"buffer_store_dwordx4 v[{k}:{k+3}], v12, s[20:23], s36 offen sc1")
        a("s_branch g2_fin")
        a.label(f"g2_own{kg}")
        a("v_lshlrev_b32 v15, 4, v1")
        for dt in range(9):
            k = acc(keep, dt)
            a(f"ds_write_b128 v15, v[{k}:{k+3}] offset:{FREG + (kg*9+dt)*1024}")
        if kg == 0: a("s_branch g2_fin")
    if FUSE_FINAL:
        a.label("g2_fin")
        srd(a, 40, 60, 61, SZ_ACT)
        srd(a, 44, 62, 63, SZ_ACT)
        srd(a, 68, 4, 5, SZ_ACT, G["WS_XN"])
        srd(a, 72, 4, 5, SZ_ACT, WS_Y2T)
        srd(a, 76, 4, 5, 0x3000, WS_FLAG)
        a(f"""
        ; quarter rows: stile base sq = mblk*8 + 2*ks ; wave w handles q = 3w..3w+2 (w<6): sr = q/9, dt = q%9
        s_lshl_b32 s32, s27, 3
        s_lshl_b32 s33, s38, 1
        s_add_u32 s32, s32, s33                  ; sq
        s_mul_i32 s33, s24, 3                    ; q0 = 3w
        s_cmp_ge_u32 s33, 9
        s_cselect_b32 s34, 1, 0                  ; sr
        s_mul_i32 s35, s34, 9
        s_sub_u32 s35, s33, s35                  ; dt0 (0,3,6)
        s_add_u32 s39, s32, s34
        s_mul_i32 s66, s28, 9
        s_add_u32 s66, s66, s35
        v_and_b32 v20, 15, v1
        s_lshl_b32 s36, s39, 4
        v_add_u32 v20, s36, v20
        v_mul_u32_u24 v20, 1152, v20
        v_lshrrev_b32 v21, 4, v1
        v_lshl_add_u32 v20, v21, 3, v20
        s_lshl_b32 s36, s66, 5
        v_add_u32 v20, s36, v20
        ; partial offset (split 0): (stile*36 + dtile_g0)*1024 + lane*16
        s_mul_i32 s36, s39, 36
        s_add_u32 s36, s36, s66
        s_lshl_b32 s36, s36, 10
        v_lshlrev_b32 v21, 4, v1
        v_add_u32 v21, s36, v21                  ; v21
        ; own tile LDS addr: FREG + q0*1024 + lane*16
        s_lshl_b32 s36, s33, 10
        v_lshlrev_b32 v22, 4, v1
        v_add_u32 v22, s36, v22                  ; v22
        v_lshrrev_b32 v23, 1, v0
        v_and_b32 v24, 1, v0
        s_mul_i32 s36, s28, 144
        v_add_u32 v25, s36, v23
        v_lshlrev_b32 v25, 12, v25
        v_lshl_add_u32 v25, v24, 5, v25
        s_lshl_b32 s36, s32, 5
        v_add_u32 v25, s36, v25                  ; v25 global
        v_mul_u32_u24 v26, 96, v23
        v_lshl_add_u32 v26, v24, 5, v26
        v_add_u32 v26, {YREG}, v26
        v_lshrrev_b32 v27, 2, v1
        s_lshl_b32 s36, s35, 4
        v_add_u32 v27, s36, v27
        v_mul_u32_u24 v27, 96, v27
        v_and_b32 v28, 3, v1
        v_lshl_add_u32 v27, v28, 3, v27
        s_lshl_b32 s36, s34, 5
        s_add_u32 s36, s36, {YREG}
        v_add_u32 v27, s36, v27                  ; v27
        s_waitcnt vmcnt(0) lgkmcnt(0)
        s_barrier                                ; B3
        s_cmp_lg_u32 s24, 0
        s_cbranch_scc1 g2_nopoll
        s_lshl_b32 s36, s27, 2
        s_add_u32 s36, s36, s28
        s_lshl_b32 s36, s36, 6                   ; *64 B
        v_mov_b32 v31, s36
        s_lshl_b32 s37, s38, 2
        s_add_u32 s37, s37, s36
        v_mov_b32 v32, s37
        v_mov_b32 v33, 1
        s_mov_b64 exec, 1
        buffer_store_dword v33, v32, s[76:79], 0 offen sc1
        s_mov_b32 s36, 0xffffffff
        s_mov_b32 s37, 0xf
        s_mov_b64 exec, s[36:37]                 ; 36 lanes
        s_mul_i32 s36, s28, 576
        s_add_u32 s36, s36, 0x2000
        v_lshlrev_b32 v30, 4, v1
        v_add_u32 v30, s36, v30
        s_mov_b32 s67, 0
        """)
        a.label("g2_poll")
        a(f"""
        buffer_load_dwordx4 v[48:51], v30, s[76:79], 0 offen sc1
        buffer_load_dwordx4 v[52:55], v31, s[76:79], 0 offen sc1
        s_waitcnt vmcnt(0)
        v_min_u32 v48, v48, v49
        v_min_u32 v50, v50, v51
        v_min_u32 v52, v52, v53
        v_min_u32 v54, v54, v55
        v_min_u32 v48, v48, v50
        v_min_u32 v52, v52, v54
        v_min_u32 v48, v48, v52
        v_cmp_eq_u32 vcc, 0, v48
        s_add_u32 s67, s67, 1
        s_cmp_ge_u32 s67, 0x400000
        s_cbranch_scc1 g2_polldone
        s_cmp_eq_u64 vcc, 0
        s_cbranch_scc1 g2_polldone
        s_sleep 2
        s_branch g2_poll
        """)
        a.label("g2_polldone")
        a("s_mov_b64 exec, -1")
        a.label("g2_nopoll")
        a("""
        s_mul_i32 s36, s39, 18
        s_lshl_b32 s36, s36, 10
        v_lshlrev_b32 v29, 4, v1
        v_add_u32 v29, s36, v29
        """)
        for j in range(3):
            a(f"""
            s_add_u32 s36, s66, {j}
            s_lshr_b32 s37, s36, 1
            s_lshl_b32 s37, s37, 10
            s_and_b32 s36, s36, 1
            s_lshl_b32 s36, s36, 3
            s_add_u32 s36, s36, s37
            buffer_load_dwordx2 v[{36+4*j}:{37+4*j}], v20, s[40:43], 0 offen offset:{32*j}
            buffer_load_dwordx2 v[{38+4*j}:{39+4*j}], v29, s[68:71], s36 offen
            """)
        a("""
        s_barrier                                ; B4
        v_cmp_gt_u32 vcc, 288, v0
        s_and_saveexec_b64 s[82:83], vcc
        s_cbranch_execz g2_noy
        buffer_load_dwordx4 v[48:51], v25, s[72:75], 0 offen sc1
        buffer_load_dwordx4 v[52:55], v25, s[72:75], 0 offen offset:16 sc1
        s_waitcnt vmcnt(0)
        ds_write_b128 v26, v[48:51]
        ds_write_b128 v26, v[52:55] offset:16
        """)
        a.label("g2_noy")
        a("s_mov_b64 exec, s[82:83]")
        a("s_cmp_ge_u32 s24, 6")
        a("s_cbranch_scc1 g2_skipld")
        for i in range(1, 4):
            a(f"""
            s_add_u32 s36, s38, {i}
            s_and_b32 s36, s36, 3
            s_mul_i32 s36, s36, {128*36*1024}
            """)
            for j in range(3):
                r = 56 + 12*(i-1) + 4*j
                a(f"buffer_load_dwordx4 v[{r}:{r+3}], v21, s[20:23], s36 offen offset:{1024*j} sc1")
        for j in range(3):
            a(f"ds_read_b128 v[{92+4*j}:{95+4*j}], v22 offset:{1024*j}")
        a.label("g2_skipld")
        a("s_waitcnt lgkmcnt(0)")
        a("s_barrier                                ; B5")
        a("s_cmp_ge_u32 s24, 6")
        a("s_cbranch_scc1 g2_done")
        for j in range(3):
            a(f"ds_read_b64_tr_b16 v[{104+2*j}:{105+2*j}], v27 offset:{16*96*j}")
        a("s_waitcnt vmcnt(0) lgkmcnt(0)")
        for j in range(3):
            P = 92 + 4*j; X = 36 + 4*j; XN = 38 + 4*j; Y = 104 + 2*j
            for i in range(3):
                o = 56 + 12*i + 4*j
                for e in range(4):
                    a(f"v_add_f32 v{P+e}, v{P+e}, v{o+e}")
            a(f"""
            v_cvt_pk_bf16_f32 v112, v{P}, v{P+1}
            v_cvt_pk_bf16_f32 v113, v{P+2}, v{P+3}
            v_lshlrev_b32 v116, 16, v{XN}
            v_and_b32 v117, 0xffff0000, v{XN}
            v_lshlrev_b32 v118, 16, v{XN+1}
            v_and_b32 v119, 0xffff0000, v{XN+1}
            v_lshlrev_b32 v120, 16, v{Y}
            v_and_b32 v121, 0xffff0000, v{Y}
            v_lshlrev_b32 v122, 16, v{Y+1}
            v_and_b32 v123, 0xffff0000, v{Y+1}
            v_mul_f32 v116, v116, v120
            v_mul_f32 v117, v117, v121
            v_mul_f32 v118, v118, v122
            v_mul_f32 v119, v119, v123
            v_cvt_pk_bf16_f32 v114, v116, v117
            v_cvt_pk_bf16_f32 v115, v118, v119
            v_lshlrev_b32 v116, 16, v{X}
            v_and_b32 v117, 0xffff0000, v{X}
            v_lshlrev_b32 v118, 16, v{X+1}
            v_and_b32 v119, 0xffff0000, v{X+1}
            v_lshlrev_b32 v120, 16, v114
            v_and_b32 v121, 0xffff0000, v114
            v_lshlrev_b32 v122, 16, v115
            v_and_b32 v123, 0xffff0000, v115
            v_add_f32 v116, v116, v120
            v_add_f32 v117, v117, v121
            v_add_f32 v118, v118, v122
            v_add_f32 v119, v119, v123
            v_cvt_pk_bf16_f32 v114, v116, v117
            v_cvt_pk_bf16_f32 v115, v118, v119
            v_lshlrev_b32 v116, 16, v114
            v_and_b32 v117, 0xffff0000, v114
            v_lshlrev_b32 v118, 16, v115
            v_and_b32 v119, 0xffff0000, v115
            v_lshlrev_b32 v120, 16, v112
            v_and_b32 v121, 0xffff0000, v112
            v_lshlrev_b32 v122, 16, v113
            v_and_b32 v123, 0xffff0000, v113
            v_add_f32 v116, v116, v120
            v_add_f32 v117, v117, v121
            v_add_f32 v118, v118, v122
            v_add_f32 v119, v119, v123
            v_cvt_pk_bf16_f32 v{P}, v116, v117
            v_cvt_pk_bf16_f32 v{P+1}, v118, v119
            buffer_store_dwordx2 v[{P}:{P+1}], v20, s[44:47], 0 offen offset:{32*j}
            """)
        a("s_endpgm")

    CB = [12728, 0, 4160, 8320]
    UOFF = 16896
    UZ = 31
    CREG = CONV_REG
    a.label("conv_start")
    a(f"s_cmp_ge_u32 s24, {CONV_PER_WG}")
    a("s_cbranch_scc1 g2_done")
    srd(a, 12, 4, 5, SZ_ACT, WS_KVT)
    srd(a, 16, 8, 9, SZ_ACT)
    srd(a, 20, 4, 5, SZ_ACT, WS_Y2T)
    srd(a, 40, 10, 11, 576*2)
    a(f"""
    s_sub_u32 s25, s2, 256
    s_mul_i32 s25, s25, {CONV_PER_WG}
    s_add_u32 s25, s25, s24                  ; channel d
    s_mul_i32 s30, s24, {CREG}
    s_lshl_b32 s31, s25, 12                  ; d*4096
    v_lshlrev_b32 v2, 4, v1                  ; lane*16
    v_add_u32 v3, s30, v2
    s_lshl_b32 s32, s25, 1
    v_mov_b32 v8, s32
    buffer_load_ushort v9, v8, s[40:43], 0 offen
    """)
    for i in range(4):
        a(f"s_add_u32 s33, s31, {i*1024}")
        a(f"buffer_load_dwordx4 v[{32+4*i}:{35+4*i}], v2, s[12:15], s33 offen")
        a(f"buffer_load_dwordx4 v[{48+6*i}:{51+6*i}], v2, s[16:19], s33 offen")
        a(f"buffer_load_dwordx2 v[{52+6*i}:{53+6*i}], v2, s[16:19], s33 offen offset:16")
    a(f"""
    v_mov_b32 v4, 0
    v_mov_b32 v5, 0
    v_mov_b32 v6, 0
    v_mov_b32 v7, 0
    ds_write_b128 v3, v[4:7] offset:{UOFF}
    ds_write_b128 v3, v[4:7] offset:{UOFF+1024}
    ds_write_b128 v3, v[4:7] offset:{UOFF+2048}
    s_mov_b64 exec, 0xf
    ds_write_b128 v3, v[4:7] offset:{CB[1]}
    ds_write_b128 v3, v[4:7] offset:{CB[2]}
    ds_write_b128 v3, v[4:7] offset:{CB[3]}
    ds_write_b64 v3, v[4:5] offset:{CB[0]}
    ds_write_b64 v3, v[4:5] offset:{CB[0]+8}
    s_mov_b64 exec, -1
    v_lshrrev_b32 v20, 2, v1
    v_mul_u32_u24 v20, 80, v20
    v_and_b32 v21, 3, v1
    v_lshl_add_u32 v20, v21, 4, v20
    v_add_u32 v20, s30, v20
    v_and_b32 v10, 31, v1                    ; r / n
    v_lshrrev_b32 v11, 5, v1                 ; kh
    v_lshlrev_b32 v12, 3, v11
    v_sub_u32 v12, v10, v12
    v_add_u32 v12, 9, v12
    v_and_b32 v13, 3, v12                    ; t
    v_sub_u32 v12, v12, v13
    v_lshlrev_b32 v12, 1, v12
    v_add_u32 v14, -1, v13                   ; t-1 (t=0 -> -1)
    v_mul_u32_u24 v15, 4160, v14
    v_cmp_eq_u32 vcc, 0, v13
    v_mov_b32 v16, {CB[0]}
    s_nop 1
    v_cndmask_b32 v15, v15, v16, vcc
    v_add_u32 v12, v12, v15
    v_add_u32 v12, s30, v12
    v_mul_u32_u24 v13, 80, v10
    v_lshl_add_u32 v13, v11, 4, v13
    v_add_u32 v13, {UOFF}, v13
    v_add_u32 v13, s30, v13
    v_add_u32 v14, {32*80}, v13
    s_waitcnt vmcnt(0) lgkmcnt(0)
    v_lshlrev_b32 v9, 16, v9                 ; D as f32
    """)
    for i in range(4):
        a(f"ds_write_b128 v20, v[{32+4*i}:{35+4*i}] offset:{UOFF + (UZ + 16*i)*80}")
    a(f"""
    s_mov_b64 exec, 1
    v_lshlrev_b32 v22, 16, v48               ; K0<<16
    v_alignbit_b32 v23, v49, v48, 16
    ds_write_b32 v3, v22 offset:{CB[1]+60}
    ds_write_b32 v3, v48 offset:{CB[2]+60}
    ds_write_b32 v3, v22 offset:{CB[3]+56}
    ds_write_b32 v3, v23 offset:{CB[3]+60}
    s_mov_b64 exec, -1
    """)
    for i in range(4):
        d = 48 + 6*i
        a(f"""
        v_alignbit_b32 v72, v{d+1}, v{d}, 16
        v_alignbit_b32 v73, v{d+2}, v{d+1}, 16
        v_alignbit_b32 v74, v{d+3}, v{d+2}, 16
        v_alignbit_b32 v75, v{d+4}, v{d+3}, 16
        v_mov_b32 v76, v73
        v_mov_b32 v77, v74
        v_mov_b32 v78, v75
        v_alignbit_b32 v79, v{d+5}, v{d+4}, 16
        v_mov_b32 v80, v{d+1}
        v_mov_b32 v81, v{d+2}
        v_mov_b32 v82, v{d+3}
        v_mov_b32 v83, v{d+4}
        ds_write_b64 v3, v[{d}:{d+1}] offset:{CB[0] + 64 + 1024*i}
        ds_write_b64 v3, v[{d+2}:{d+3}] offset:{CB[0] + 72 + 1024*i}
        ds_write_b128 v3, v[72:75] offset:{CB[1] + 64 + 1024*i}
        ds_write_b128 v3, v[80:83] offset:{CB[2] + 64 + 1024*i}
        ds_write_b128 v3, v[76:79] offset:{CB[3] + 64 + 1024*i}
        s_waitcnt lgkmcnt(0)
        s_nop 0
        """)
    a("s_waitcnt lgkmcnt(0)")
    P = 3
    CA = 16; CB0 = 32; CB1 = 48; C0 = 64; C1 = 80
    def nreads(i): return 4 if i <= 63 else 3
    def boff(o):
        if o % 2 == 0:
            p = o // 2; return (UZ - p)*80
        else:
            p = (o - 1)//2; return (UZ - p - 1)*80 + 32
    def cread(i):
        o = i - 1; sl = i % P
        a(f"ds_read_b64 v[{CA+4*sl}:{CA+4*sl+1}], v12 offset:{32*i}")
        a(f"ds_read_b64 v[{CA+4*sl+2}:{CA+4*sl+3}], v12 offset:{32*i+8}")
        if boff(o) >= 0: a(f"ds_read_b128 v[{CB1+4*sl}:{CB1+4*sl+3}], v14 offset:{boff(o)}")
        else: a(f"ds_read_b128 v[{CB1+4*sl}:{CB1+4*sl+3}], v13 offset:{boff(o) + 32*80}")
        if i <= 63:
            a(f"ds_read_b128 v[{CB0+4*sl}:{CB0+4*sl+3}], v13 offset:{boff(o)}")
    for i in range(P): cread(i)
    for i in range(128):
        sl = i % P
        younger = sum(nreads(j) for j in range(i+1, min(128, i+P)))
        a(f"s_waitcnt lgkmcnt({younger})")
        c1 = f"v[{C1}:{C1+15}]"; c0 = f"v[{C0}:{C0+15}]"
        a(f"v_mfma_f32_32x32x16_bf16 {c1}, v[{CA+4*sl}:{CA+4*sl+3}], v[{CB1+4*sl}:{CB1+4*sl+3}], {c1 if i>0 else '0'}")
        if i <= 63:
            a(f"v_mfma_f32_32x32x16_bf16 {c0}, v[{CA+4*sl}:{CA+4*sl+3}], v[{CB0+4*sl}:{CB0+4*sl+3}], {c0 if i>0 else '0'}")
        if i + P < 128: cread(i + P)
    a(f"""
    v_mul_u32_u24 v15, 80, v10
    v_lshlrev_b32 v16, 3, v11
    v_sub_u32 v16, 8, v16
    v_add_u32 v15, v15, v16
    v_add_u32 v15, {UOFF + UZ*80}, v15
    v_add_u32 v15, s30, v15
    v_lshlrev_b32 v16, 6, v10
    v_lshl_add_u32 v16, v11, 3, v16
    v_add_u32 v16, s31, v16
    """)
    for T in range(2):
        for q in range(4):
            r = 100 + 2*(T*4+q)
            a(f"ds_read_b64 v[{r}:{r+1}], v15 offset:{2560*T + 16*q}")
    a("s_nop 7")
    a("s_nop 3")
    a("s_waitcnt lgkmcnt(0)")
    for T in range(2):
        C = C0 if T == 0 else C1
        for q in range(4):
            r = 100 + 2*(T*4+q); c = C + 4*q
            a(f"""
            v_and_b32 v20, 0xffff0000, v{r+1}
            v_lshlrev_b32 v21, 16, v{r+1}
            v_and_b32 v22, 0xffff0000, v{r}
            v_lshlrev_b32 v23, 16, v{r}
            v_mul_f32 v20, v20, v9
            v_mul_f32 v21, v21, v9
            v_mul_f32 v22, v22, v9
            v_mul_f32 v23, v23, v9
            v_cvt_pk_bf16_f32 v24, v20, v21
            v_cvt_pk_bf16_f32 v25, v22, v23
            v_cvt_pk_bf16_f32 v26, v{c}, v{c+1}
            v_cvt_pk_bf16_f32 v27, v{c+2}, v{c+3}
            v_lshlrev_b32 v20, 16, v24
            v_and_b32 v21, 0xffff0000, v24
            v_lshlrev_b32 v22, 16, v25
            v_and_b32 v23, 0xffff0000, v25
            v_lshlrev_b32 v28, 16, v26
            v_and_b32 v29, 0xffff0000, v26
            v_lshlrev_b32 v30, 16, v27
            v_and_b32 v31, 0xffff0000, v27
            v_add_f32 v20, v20, v28
            v_add_f32 v21, v21, v29
            v_add_f32 v22, v22, v30
            v_add_f32 v23, v23, v31
            v_cvt_pk_bf16_f32 v{r}, v20, v21
            v_cvt_pk_bf16_f32 v{r+1}, v22, v23
            buffer_store_dwordx2 v[{r}:{r+1}], v16, s[20:23], 0 offen offset:{2048*T + 16*q} sc1
            """)
    if FUSE_FINAL:
        srd(a, 76, 4, 5, 0x3000, WS_FLAG)
        a("""
        s_lshl_b32 s35, s25, 2
        s_add_u32 s35, s35, 0x2000
        v_mov_b32 v30, s35
        v_mov_b32 v31, 1
        s_waitcnt vmcnt(0)
        s_mov_b64 exec, 1
        buffer_store_dword v31, v30, s[76:79], 0 offen sc1
        """)
    a.label("g2_done")
    a("s_endpgm")

def gen_k4(a, G):
    srd = G["srd"]
    WS_XN = G["WS_XN"]; WS_PART = G["WS_PART"]; WS_Y2T = G["WS_Y2T"]
    SZ_ACT = G["SZ_ACT"]; SZ_PART = G["SZ_PART"]
    G["kernel_header"](a, "final_kernel")
    a(f"""
    s_load_dwordx2 s[4:5], s[0:1], 96        ; ws
    s_load_dwordx2 s[6:7], s[0:1], 0         ; q (x)
    s_load_dwordx2 s[8:9], s[0:1], 80        ; out
    s_cmp_ge_u32 s2, 288
    s_cbranch_scc1 k4_done
    s_mov_b32 s34, 0x1c71c71d
    s_mul_hi_u32 s35, s2, s34                ; sgrp = b/9
    s_mul_i32 s36, s35, 9
    s_sub_u32 s36, s2, s36                   ; dgrp
    v_lshrrev_b32 v1, 6, v0
    s_nop 0
    v_readfirstlane_b32 s24, v1              ; wave
    v_and_b32 v1, 63, v0
    s_waitcnt lgkmcnt(0)
    """)
    srd(a, 12, 4, 5, SZ_ACT, WS_Y2T)
    srd(a, 16, 4, 5, SZ_PART, WS_PART)
    srd(a, 20, 4, 5, SZ_ACT, WS_XN)
    srd(a, 40, 6, 7, SZ_ACT)
    srd(a, 44, 8, 9, SZ_ACT)
    a(f"""
    v_lshrrev_b32 v2, 2, v0
    v_and_b32 v3, 3, v0
    s_lshl_b32 s37, s36, 6                   ; 64*dgrp
    v_add_u32 v4, s37, v2
    v_lshlrev_b32 v4, 12, v4
    v_lshl_add_u32 v4, v3, 5, v4
    s_lshl_b32 s38, s35, 7                   ; 128*sgrp
    v_add_u32 v4, s38, v4
    buffer_load_dwordx4 v[8:11], v4, s[12:15], 0 offen
    buffer_load_dwordx4 v[12:15], v4, s[12:15], 0 offen offset:16
    v_mul_u32_u24 v5, 160, v2
    v_lshl_add_u32 v5, v3, 5, v5
    s_lshl_b32 s25, s35, 2
    s_add_u32 s25, s25, s24
    ; partial offset: (stile*36 + 4*dgrp)*1024 + lane*16   (+ks*128*36*1024, +dt*1024)
    s_mul_i32 s26, s25, 36
    s_lshl_b32 s27, s36, 2
    s_add_u32 s26, s26, s27
    s_lshl_b32 s26, s26, {9 if BF16_PART else 10}
    v_lshlrev_b32 v6, {3 if BF16_PART else 4}, v1
    v_add_u32 v6, s26, v6
    v_and_b32 v7, 15, v1
    s_lshl_b32 s27, s25, 4
    v_add_u32 v7, s27, v7
    v_mul_u32_u24 v7, 1152, v7
    v_lshrrev_b32 v16, 4, v1
    v_lshl_add_u32 v7, v16, 3, v7
    s_lshl_b32 s27, s36, 7
    v_add_u32 v7, s27, v7
    ; xn offset: ((stile*18 + 2*dgrp)*64 + lane)*16  (+ (dt>>1)*1024 + (dt&1)*8)
    s_mul_i32 s27, s25, 18
    s_lshl_b32 s28, s36, 1
    s_add_u32 s27, s27, s28
    s_lshl_b32 s27, s27, 10
    v_lshlrev_b32 v17, 4, v1
    v_add_u32 v17, s27, v17
    v_lshrrev_b32 v18, 2, v1
    v_mul_u32_u24 v18, 160, v18
    v_and_b32 v19, 3, v1
    v_lshl_add_u32 v18, v19, 3, v18
    s_lshl_b32 s27, s24, 5
    v_add_u32 v18, s27, v18
    """)
    for dt in range(4):
        for ks in range(4):
            if BF16_PART:
                a(f"s_mov_b32 s27, {ks*128*36*512 + dt*512}")
                a(f"buffer_load_dwordx2 v[{24+16*dt+4*ks}:{25+16*dt+4*ks}], v6, s[16:19], s27 offen")
            else:
                a(f"s_mov_b32 s27, {ks*128*36*1024 + dt*1024}")
                a(f"buffer_load_dwordx4 v[{24+16*dt+4*ks}:{27+16*dt+4*ks}], v6, s[16:19], s27 offen")
        a(f"buffer_load_dwordx2 v[{88+4*dt}:{89+4*dt}], v7, s[40:43], 0 offen offset:{dt*32}")
        a(f"buffer_load_dwordx2 v[{90+4*dt}:{91+4*dt}], v17, s[20:23], 0 offen offset:{(dt>>1)*1024 + (dt&1)*8}")
    a("""
    s_waitcnt vmcnt(24)
    ds_write_b128 v5, v[8:11]
    ds_write_b128 v5, v[12:15] offset:16
    s_waitcnt lgkmcnt(0)
    s_barrier
    """)
    for dt in range(4):
        a(f"ds_read_b64_tr_b16 v[{104+2*dt}:{105+2*dt}], v18 offset:{dt*2560}")
    for dt in range(4):
        P = 24 + 16*dt; X = 88 + 4*dt; XN = 90 + 4*dt; Y = 104 + 2*dt
        a(f"s_waitcnt vmcnt({18 - 6*dt}) lgkmcnt({3-dt})")
        if BF16_PART:
            for ks in range(4):
                q = P + 4*ks
                a(f"v_and_b32 v{q+3}, 0xffff0000, v{q+1}")
                a(f"v_lshlrev_b32 v{q+2}, 16, v{q+1}")
                a(f"v_and_b32 v{q+1}, 0xffff0000, v{q}")
                a(f"v_lshlrev_b32 v{q}, 16, v{q}")
        for i in range(4):
            a(f"v_add_f32 v{P+i}, v{P+i}, v{P+4+i}")
            a(f"v_add_f32 v{P+8+i}, v{P+8+i}, v{P+12+i}")
            a(f"v_add_f32 v{P+i}, v{P+i}, v{P+8+i}")
        a(f"""
        v_cvt_pk_bf16_f32 v112, v{P}, v{P+1}
        v_cvt_pk_bf16_f32 v113, v{P+2}, v{P+3}
        v_lshlrev_b32 v116, 16, v{XN}
        v_and_b32 v117, 0xffff0000, v{XN}
        v_lshlrev_b32 v118, 16, v{XN+1}
        v_and_b32 v119, 0xffff0000, v{XN+1}
        v_lshlrev_b32 v120, 16, v{Y}
        v_and_b32 v121, 0xffff0000, v{Y}
        v_lshlrev_b32 v122, 16, v{Y+1}
        v_and_b32 v123, 0xffff0000, v{Y+1}
        v_mul_f32 v116, v116, v120
        v_mul_f32 v117, v117, v121
        v_mul_f32 v118, v118, v122
        v_mul_f32 v119, v119, v123
        v_cvt_pk_bf16_f32 v114, v116, v117
        v_cvt_pk_bf16_f32 v115, v118, v119
        v_lshlrev_b32 v116, 16, v{X}
        v_and_b32 v117, 0xffff0000, v{X}
        v_lshlrev_b32 v118, 16, v{X+1}
        v_and_b32 v119, 0xffff0000, v{X+1}
        v_lshlrev_b32 v120, 16, v114
        v_and_b32 v121, 0xffff0000, v114
        v_lshlrev_b32 v122, 16, v115
        v_and_b32 v123, 0xffff0000, v115
        v_add_f32 v116, v116, v120
        v_add_f32 v117, v117, v121
        v_add_f32 v118, v118, v122
        v_add_f32 v119, v119, v123
        v_cvt_pk_bf16_f32 v114, v116, v117
        v_cvt_pk_bf16_f32 v115, v118, v119
        v_lshlrev_b32 v116, 16, v114
        v_and_b32 v117, 0xffff0000, v114
        v_lshlrev_b32 v118, 16, v115
        v_and_b32 v119, 0xffff0000, v115
        v_lshlrev_b32 v120, 16, v112
        v_and_b32 v121, 0xffff0000, v112
        v_lshlrev_b32 v122, 16, v113
        v_and_b32 v123, 0xffff0000, v113
        v_add_f32 v116, v116, v120
        v_add_f32 v117, v117, v121
        v_add_f32 v118, v118, v122
        v_add_f32 v119, v119, v123
        v_cvt_pk_bf16_f32 v{P}, v116, v117
        v_cvt_pk_bf16_f32 v{P+1}, v118, v119
        """)
    for dt in range(4):
        P = 24 + 16*dt
        a(f"buffer_store_dwordx2 v[{P}:{P+1}], v7, s[44:47], 0 offen offset:{dt*32}")
    a.label("k4_done")
    a("s_endpgm")
```

```python
import sys

NAME = "parallel_sum__ssm_conv_h3__glu_gated_bilinear__prompt"
S, D, F = 2048, 576, 4608
WS_XN   = 0
WS_KVT  = 0x240000
WS_H    = 0x480000
WS_Y2T  = 0x1680000
WS_PART = 0x18C0000
SZ_ACT  = S * D * 2
SZ_H    = S * F * 2
SZ_PART = 4 * S * D * 4
SZ_W    = D * F * 2

class A:
    def __init__(self):
        self.l = []
    def __call__(self, s):
        for line in s.strip("\n").split("\n"):
            self.l.append("    " + line.strip())
    def label(self, s):
        self.l.append(s + ":")
    def raw(self, s):
        self.l.append(s)
    def text(self):
        return "\n".join(self.l) + "\n"

def srd(a, dst, lo, hi, size, off=0):
    if off:
        a(f"s_add_u32 s{dst}, s{lo}, {off}")
        a(f"s_addc_u32 s{dst+1}, s{hi}, 0")
    else:
        a(f"s_mov_b32 s{dst}, s{lo}")
        a(f"s_mov_b32 s{dst+1}, s{hi}")
    a(f"s_mov_b32 s{dst+2}, {size}")
    a(f"s_mov_b32 s{dst+3}, 0x00020000")

def kernel_header(a, name):
    a.raw(f".globl {name}")
    a.raw(".p2align 8")
    a.raw(f".type {name},@function")
    a.label(name)

def kd(name, vgpr, sgpr):
    acc = (vgpr + 3) // 4 * 4
    return f""".amdhsa_kernel {name}
  .amdhsa_next_free_vgpr {vgpr}
  .amdhsa_next_free_sgpr {sgpr}
  .amdhsa_accum_offset {acc}
  .amdhsa_group_segment_fixed_size 0
  .amdhsa_kernarg_size 104
  .amdhsa_user_sgpr_count 2
  .amdhsa_user_sgpr_kernarg_segment_ptr 1
  .amdhsa_system_sgpr_workgroup_id_x 1
.end_amdhsa_kernel
"""

N_LN_WG = 64
N_KV_WG = 144
def gen_prep(a):
    kernel_header(a, "prep_kernel")
    a(f"""
    s_load_dwordx2 s[4:5], s[0:1], 0
    s_load_dwordx2 s[6:7], s[0:1], 8
    s_load_dwordx2 s[8:9], s[0:1], 16
    s_load_dwordx2 s[10:11], s[0:1], 24
    s_load_dwordx2 s[12:13], s[0:1], 96
    s_cmp_ge_u32 s2, {N_LN_WG + N_KV_WG}
    s_cbranch_scc1 prep_done
    s_waitcnt lgkmcnt(0)
    s_cmp_ge_u32 s2, {N_LN_WG}
    s_cbranch_scc1 prep_kv
    """)
    srd(a, 16, 4, 5, SZ_ACT)
    srd(a, 20, 12, 13, SZ_ACT, WS_XN)
    srd(a, 28, 12, 13, 0x3000, 0x2B00000)
    a("""
    s_cmp_lg_u32 s2, 0
    s_cbranch_scc1 prep_noz
    v_mul_u32_u24 v1, 48, v0
    v_mov_b32 v4, 0
    v_mov_b32 v5, 0
    v_mov_b32 v6, 0
    v_mov_b32 v7, 0
    buffer_store_dwordx4 v[4:7], v1, s[28:31], 0 offen
    buffer_store_dwordx4 v[4:7], v1, s[28:31], 0 offen offset:16
    buffer_store_dwordx4 v[4:7], v1, s[28:31], 0 offen offset:32
    s_nop 1
    """)
    a.label("prep_noz")
    a(f"""
    s_lshl_b32 s3, s2, 5
    v_lshrrev_b32 v1, 3, v0
    v_add_u32 v1, s3, v1                     ; row
    v_and_b32 v2, 7, v0                      ; j
    s_movk_i32 s24, 1152
    v_mul_lo_u32 v3, v1, s24
    v_lshl_add_u32 v3, v2, 4, v3
    """)
    for i in range(9):
        a(f"buffer_load_dwordx4 v[{8+4*i}:{11+4*i}], v3, s[16:19], 0 offen offset:{i*128}")
    a(f"""
    v_lshrrev_b32 v4, 4, v1                  ; stile
    v_mul_u32_u24 v4, 18, v4
    v_lshrrev_b32 v5, 2, v2                  ; j>>2
    v_add_u32 v4, v4, v5
    v_lshlrev_b32 v4, 10, v4                 ; *(1024)
    v_and_b32 v5, 1, v2                      ; j&1
    v_lshlrev_b32 v5, 5, v5                  ; 2*(j&1)*16
    v_and_b32 v6, 15, v1                     ; srow
    v_add_u32 v5, v5, v6
    v_lshl_add_u32 v4, v5, 4, v4
    v_bfe_u32 v5, v2, 1, 1                   ; (j>>1)&1
    v_lshl_add_u32 v4, v5, 3, v4
    s_waitcnt vmcnt(0)
    """)
    X = 48
    for i in range(36):
        a(f"v_lshlrev_b32 v{X+2*i}, 16, v{8+i}")
        a(f"v_and_b32 v{X+2*i+1}, 0xffff0000, v{8+i}")
    for c in range(4):
        a(f"v_add_f32 v{120+c}, v{X+c}, v{X+4+c}")
    for i in range(2, 18):
        for c in range(4):
            a(f"v_add_f32 v{120+c}, v{120+c}, v{X+4*i+c}")
    a("""
    v_add_f32 v120, v120, v121
    v_add_f32 v122, v122, v123
    v_add_f32 v120, v120, v122
    s_nop 1
    v_add_f32_dpp v121, v120, v120 quad_perm:[1,0,3,2] row_mask:0xf bank_mask:0xf
    s_nop 1
    v_add_f32_dpp v120, v121, v121 quad_perm:[2,3,0,1] row_mask:0xf bank_mask:0xf
    s_nop 1
    v_add_f32_dpp v121, v120, v120 row_half_mirror row_mask:0xf bank_mask:0xf
    s_mov_b32 s25, 0x3ae38e39               ; 1/576
    v_mul_f32 v124, s25, v121
    """)
    for c in range(4):
        a(f"v_sub_f32 v125, v{X+c}, v124")
        a(f"v_mul_f32 v{120+c}, v125, v125")
    for i in range(1, 18):
        for c in range(4):
            a(f"v_sub_f32 v125, v{X+4*i+c}, v124")
            a(f"v_fmac_f32 v{120+c}, v125, v125")
    a("""
    v_add_f32 v120, v120, v121
    v_add_f32 v122, v122, v123
    v_add_f32 v120, v120, v122
    s_nop 1
    v_add_f32_dpp v121, v120, v120 quad_perm:[1,0,3,2] row_mask:0xf bank_mask:0xf
    s_nop 1
    v_add_f32_dpp v120, v121, v121 quad_perm:[2,3,0,1] row_mask:0xf bank_mask:0xf
    s_nop 1
    v_add_f32_dpp v121, v120, v120 row_half_mirror row_mask:0xf bank_mask:0xf
    v_mul_f32 v125, s25, v121
    v_cvt_pk_bf16_f32 v126, v124, v125
    v_lshlrev_b32 v124, 16, v126            ; m
    v_and_b32 v125, 0xffff0000, v126        ; v
    s_mov_b32 s26, 0x3727c5ac               ; 1e-5
    v_add_f32 v125, s26, v125
    v_cvt_pk_bf16_f32 v125, v125, v125
    v_lshlrev_b32 v125, 16, v125
    v_sqrt_f32 v125, v125
    s_nop 0
    v_cvt_pk_bf16_f32 v125, v125, v125
    v_lshlrev_b32 v125, 16, v125            ; den
    v_rcp_f32 v126, v125                    ; r
    s_nop 0
    """)
    for i in range(36):
        x0, x1 = X + 2*i, X + 2*i + 1
        a(f"""
        v_sub_f32 v{x0}, v{x0}, v124
        v_sub_f32 v{x1}, v{x1}, v124
        v_cvt_pk_bf16_f32 v127, v{x0}, v{x1}
        v_lshlrev_b32 v{x0}, 16, v127
        v_and_b32 v{x1}, 0xffff0000, v127
        v_mul_f32 v120, v{x0}, v126
        v_mul_f32 v121, v{x1}, v126
        v_fma_f32 v122, -v120, v125, v{x0}
        v_fma_f32 v123, -v121, v125, v{x1}
        v_fmac_f32 v120, v122, v126
        v_fmac_f32 v121, v123, v126
        v_cvt_pk_bf16_f32 v{8+i}, v120, v121
        """)
    for i in range(9):
        a(f"s_movk_i32 s27, {i*2048}")
        a(f"buffer_store_dwordx2 v[{8+4*i}:{9+4*i}], v4, s[20:23], s27 offen")
        a(f"buffer_store_dwordx2 v[{10+4*i}:{11+4*i}], v4, s[20:23], s27 offen offset:256")
    a("s_endpgm")

    a.label("prep_kv")
    srd(a, 16, 6, 7, SZ_ACT)
    srd(a, 20, 8, 9, SZ_ACT)
    srd(a, 24, 10, 11, D*4*2)
    srd(a, 28, 12, 13, SZ_ACT, WS_KVT)
    a(f"""
    v_lshrrev_b32 v1, 6, v0
    s_nop 0
    v_readfirstlane_b32 s32, v1
    s_sub_u32 s33, s2, {N_LN_WG}
    s_lshl_b32 s33, s33, 2
    s_add_u32 s33, s33, s32                  ; W 0..575
    s_mov_b32 s34, 0x1c71c71d                ; ceil(2^32/9)
    s_mul_hi_u32 s35, s33, s34               ; sgroup = W/9
    s_mul_i32 s36, s35, 9
    s_sub_u32 s36, s33, s36                  ; dgroup = W%9
    v_and_b32 v1, 63, v0                     ; lane
    v_and_b32 v2, 7, v1                      ; dchunk
    v_lshrrev_b32 v3, 3, v1                  ; sblk
    s_lshl_b32 s37, s35, 5                   ; sgroup*32
    v_lshl_add_u32 v3, v3, 2, s37            ; s0
    s_lshl_b32 s38, s36, 7
    v_lshl_add_u32 v4, v2, 4, s38
    s_movk_i32 s39, 1152
    v_mul_lo_u32 v5, v3, s39
    v_add_u32 v5, v5, v4                     ; s0*1152 + d0*2
    v_subrev_u32 v6, {3*1152}, v5
    """)
    a("buffer_load_dwordx4 v[16:19], v6, s[16:19], 0 offen")
    a("buffer_load_dwordx4 v[20:23], v6, s[16:19], 0 offen offset:1152")
    a("buffer_load_dwordx4 v[24:27], v6, s[16:19], 0 offen offset:2304")
    for r in range(4):
        a(f"buffer_load_dwordx4 v[{28+4*r}:{31+4*r}], v5, s[16:19], 0 offen offset:{r*1152}")
    for r in range(4):
        a(f"buffer_load_dwordx4 v[{44+4*r}:{47+4*r}], v5, s[20:23], 0 offen offset:{r*1152}")
    a("v_lshlrev_b32 v7, 2, v4")
    for r in range(4):
        a(f"buffer_load_dwordx4 v[{60+4*r}:{63+4*r}], v7, s[24:27], 0 offen offset:{r*16}")
    a("""
    v_lshlrev_b32 v8, 11, v4                 ; d0*2*2048
    v_and_b32 v9, 0xfffffff8, v3
    v_lshl_add_u32 v8, v9, 1, v8
    v_and_b32 v9, 4, v3
    v_lshlrev_b32 v9, 1, v9                  ; 8 if s0&4
    v_sub_u32 v9, 8, v9                      ; 8 - that
    v_add_u32 v8, v8, v9
    s_waitcnt vmcnt(0)
    """)
    KF = 80
    WF = 96
    VF = 104
    AC = 112
    PR = 120
    T  = 122
    OUT = 124
    for p in range(4):
        for r in range(7):
            a(f"v_lshlrev_b32 v{KF+2*r}, 16, v{16+4*r+p}")
            a(f"v_and_b32 v{KF+2*r+1}, 0xffff0000, v{16+4*r+p}")
        for r in range(4):
            a(f"v_lshlrev_b32 v{VF+2*r}, 16, v{44+4*r+p}")
            a(f"v_and_b32 v{VF+2*r+1}, 0xffff0000, v{44+4*r+p}")
        for c in range(2):
            ch = 2*p + c
            a(f"v_lshlrev_b32 v{WF+4*c+0}, 16, v{60+2*ch}")
            a(f"v_and_b32 v{WF+4*c+1}, 0xffff0000, v{60+2*ch}")
            a(f"v_lshlrev_b32 v{WF+4*c+2}, 16, v{61+2*ch}")
            a(f"v_and_b32 v{WF+4*c+3}, 0xffff0000, v{61+2*ch}")
        for r in range(4):
            for t in range(4):
                a(f"v_mul_f32 v{PR}, v{KF+2*(r+t)}, v{WF+3-t}")
                a(f"v_mul_f32 v{PR+1}, v{KF+2*(r+t)+1}, v{WF+4+3-t}")
                a(f"v_cvt_pk_bf16_f32 v{T}, v{PR}, v{PR+1}")
                if t == 0:
                    a(f"v_lshlrev_b32 v{AC+2*r}, 16, v{T}")
                    a(f"v_and_b32 v{AC+2*r+1}, 0xffff0000, v{T}")
                else:
                    a(f"v_lshlrev_b32 v{PR}, 16, v{T}")
                    a(f"v_and_b32 v{PR+1}, 0xffff0000, v{T}")
                    a(f"v_add_f32 v{PR}, v{AC+2*r}, v{PR}")
                    a(f"v_add_f32 v{PR+1}, v{AC+2*r+1}, v{PR+1}")
                    a(f"v_cvt_pk_bf16_f32 v{T}, v{PR}, v{PR+1}")
                    a(f"v_lshlrev_b32 v{AC+2*r}, 16, v{T}")
                    a(f"v_and_b32 v{AC+2*r+1}, 0xffff0000, v{T}")
            a(f"v_mul_f32 v{AC+2*r}, v{AC+2*r}, v{VF+2*r}")
            a(f"v_mul_f32 v{AC+2*r+1}, v{AC+2*r+1}, v{VF+2*r+1}")
        for c in range(2):
            a(f"v_cvt_pk_bf16_f32 v{OUT+2*c}, v{AC+6+c}, v{AC+4+c}")
            a(f"v_cvt_pk_bf16_f32 v{OUT+2*c+1}, v{AC+2+c}, v{AC+0+c}")
        for c in range(2):
            ch = 2*p + c
            a(f"s_movk_i32 s40, {ch*4096 & 0xffff}" if ch*4096 < 32768 else f"s_mov_b32 s40, {ch*4096}")
            a(f"buffer_store_dwordx2 v[{OUT+2*c}:{OUT+2*c+1}], v8, s[28:31], s40 offen")
        a("s_nop 1")
    a.label("prep_done")
    a("s_endpgm")

P2_LN = 512
import os as _os
P2_KV = 0 if _os.environ.get('KV_IN_G1') else 288
P2_PF = 0
def gen_prep2(a):
    kernel_header(a, "prep_kernel")
    a(f"""
    s_load_dwordx2 s[4:5], s[0:1], 0
    s_load_dwordx2 s[6:7], s[0:1], 8
    s_load_dwordx2 s[8:9], s[0:1], 16
    s_load_dwordx2 s[10:11], s[0:1], 24
    s_load_dwordx2 s[12:13], s[0:1], 96
    s_load_dwordx2 s[48:49], s[0:1], 56
    s_load_dwordx2 s[50:51], s[0:1], 64
    s_cmp_ge_u32 s2, {P2_LN + P2_KV + P2_PF}
    s_cbranch_scc1 prep_done
    v_lshrrev_b32 v1, 6, v0
    s_nop 0
    v_readfirstlane_b32 s24, v1              ; wave
    v_and_b32 v1, 63, v0                     ; lane
    s_waitcnt lgkmcnt(0)
    s_cmp_ge_u32 s2, {P2_LN + P2_KV}
    s_cbranch_scc1 prep_pf
    s_cmp_ge_u32 s2, {P2_KV}
    s_cbranch_scc0 prep_kv
    """)
    srd(a, 16, 4, 5, SZ_ACT)
    srd(a, 20, 12, 13, SZ_ACT, WS_XN)
    a(f"""
    s_sub_u32 s30, s2, {P2_KV}
    s_lshl_b32 s30, s30, 2
    s_add_u32 s30, s30, s24                  ; row
    s_mul_i32 s31, s30, 1152
    v_lshlrev_b32 v12, 3, v1
    v_add_u32 v12, s31, v12
    v_mov_b32 v18, 0
    v_mov_b32 v19, 0
    buffer_load_dwordx2 v[14:15], v12, s[16:19], 0 offen
    buffer_load_dwordx2 v[16:17], v12, s[16:19], 0 offen offset:512
    s_mov_b64 exec, 0xffff
    buffer_load_dwordx2 v[18:19], v12, s[16:19], 0 offen offset:1024
    s_mov_b64 exec, -1
    s_lshr_b32 s31, s30, 4
    s_mul_i32 s31, s31, {18*1024}
    s_and_b32 s32, s30, 15
    s_lshl_b32 s32, s32, 4
    s_add_u32 s31, s31, s32
    v_lshrrev_b32 v13, 3, v1
    v_lshlrev_b32 v13, 10, v13
    v_and_b32 v20, 3, v1
    v_lshl_add_u32 v13, v20, 8, v13
    v_bfe_u32 v20, v1, 2, 1
    v_lshl_add_u32 v13, v20, 3, v13
    v_add_u32 v13, s31, v13
    s_waitcnt vmcnt(0)
    """)
    F = 20
    for i in range(6):
        a(f"v_lshlrev_b32 v{F+2*i}, 16, v{14+i}")
        a(f"v_and_b32 v{F+2*i+1}, 0xffff0000, v{14+i}")
    def wave_sum(r, t):
        a(f"""
        s_nop 1
        v_add_f32_dpp v{t}, v{r}, v{r} quad_perm:[1,0,3,2] row_mask:0xf bank_mask:0xf
        s_nop 1
        v_add_f32_dpp v{r}, v{t}, v{t} quad_perm:[2,3,0,1] row_mask:0xf bank_mask:0xf
        s_nop 1
        v_add_f32_dpp v{t}, v{r}, v{r} row_half_mirror row_mask:0xf bank_mask:0xf
        s_nop 1
        v_add_f32_dpp v{r}, v{t}, v{t} row_mirror row_mask:0xf bank_mask:0xf
        s_nop 0
        v_readlane_b32 s40, v{r}, 0
        v_readlane_b32 s41, v{r}, 16
        v_readlane_b32 s42, v{r}, 32
        v_readlane_b32 s43, v{r}, 48
        s_nop 1
        v_mov_b32 v{r}, s40
        v_add_f32 v{r}, s41, v{r}
        v_add_f32 v{r}, s42, v{r}
        v_add_f32 v{r}, s43, v{r}
        """)
    a(f"v_add_f32 v34, v{F}, v{F+1}")
    for i in range(2, 12): a(f"v_add_f32 v34, v34, v{F+i}")
    wave_sum(34, 35)
    a(f"""
    s_mov_b32 s44, 0x3ae38e39
    v_mul_f32 v36, s44, v34
    v_sub_f32 v37, v{F}, v36
    v_mul_f32 v34, v37, v37
    """)
    for i in range(1, 8):
        a(f"v_sub_f32 v37, v{F+i}, v36")
        a(f"v_fmac_f32 v34, v37, v37")
    a("s_mov_b64 exec, 0xffff")
    for i in range(8, 12):
        a(f"v_sub_f32 v37, v{F+i}, v36")
        a(f"v_fmac_f32 v34, v37, v37")
    a("s_mov_b64 exec, -1")
    wave_sum(34, 35)
    a(f"""
    v_mul_f32 v37, s44, v34
    v_cvt_pk_bf16_f32 v38, v36, v37
    v_lshlrev_b32 v36, 16, v38
    v_and_b32 v37, 0xffff0000, v38
    s_mov_b32 s45, 0x3727c5ac
    v_add_f32 v37, s45, v37
    v_cvt_pk_bf16_f32 v37, v37, v37
    v_lshlrev_b32 v37, 16, v37
    v_sqrt_f32 v37, v37
    s_nop 0
    v_cvt_pk_bf16_f32 v37, v37, v37
    v_lshlrev_b32 v37, 16, v37
    v_rcp_f32 v38, v37
    s_nop 0
    """)
    for i in range(6):
        x0, x1 = F + 2*i, F + 2*i + 1
        a(f"""
        v_sub_f32 v{x0}, v{x0}, v36
        v_sub_f32 v{x1}, v{x1}, v36
        v_cvt_pk_bf16_f32 v39, v{x0}, v{x1}
        v_lshlrev_b32 v{x0}, 16, v39
        v_and_b32 v{x1}, 0xffff0000, v39
        v_mul_f32 v40, v{x0}, v38
        v_mul_f32 v41, v{x1}, v38
        v_fma_f32 v42, -v40, v37, v{x0}
        v_fma_f32 v43, -v41, v37, v{x1}
        v_fmac_f32 v40, v42, v38
        v_fmac_f32 v41, v43, v38
        v_cvt_pk_bf16_f32 v{14+i}, v40, v41
        """)
    a(f"""
    s_movk_i32 s40, 8192
    s_movk_i32 s41, 16384
    buffer_store_dwordx2 v[14:15], v13, s[20:23], 0 offen
    buffer_store_dwordx2 v[16:17], v13, s[20:23], s40 offen
    s_mov_b64 exec, 0xffff
    buffer_store_dwordx2 v[18:19], v13, s[20:23], s41 offen
    s_endpgm
    """)
    a.label("prep_kv")
    srd(a, 16, 6, 7, SZ_ACT)
    srd(a, 20, 8, 9, SZ_ACT)
    srd(a, 28, 10, 11, D*4*2)
    srd(a, 32, 12, 13, SZ_ACT, WS_KVT)
    a(f"""
    s_lshl_b32 s40, s2, 2
    s_add_u32 s40, s40, s24                  ; u (0..1151)
    s_mov_b32 s41, 0x1c71c71d
    s_mul_hi_u32 s42, s40, s41               ; sgroup
    s_mul_i32 s43, s42, 9
    s_sub_u32 s43, s40, s43                  ; dgroup
    v_and_b32 v2, 7, v1
    v_lshrrev_b32 v3, 3, v1
    s_lshl_b32 s44, s42, 4
    v_lshl_add_u32 v3, v3, 1, s44            ; s0
    s_lshl_b32 s44, s43, 7
    v_lshl_add_u32 v4, v2, 4, s44            ; d0*2
    s_movk_i32 s45, 1152
    v_mul_lo_u32 v5, v3, s45
    v_add_u32 v5, v5, v4
    v_subrev_u32 v6, {3*1152}, v5
    v_subrev_u32 v7, {2*1152}, v5
    v_subrev_u32 v8, {1*1152}, v5
    buffer_load_dwordx4 v[12:15], v6, s[16:19], 0 offen
    buffer_load_dwordx4 v[16:19], v7, s[16:19], 0 offen
    buffer_load_dwordx4 v[20:23], v8, s[16:19], 0 offen
    buffer_load_dwordx4 v[24:27], v5, s[16:19], 0 offen
    buffer_load_dwordx4 v[28:31], v5, s[16:19], 0 offen offset:1152
    buffer_load_dwordx4 v[32:35], v5, s[20:23], 0 offen
    buffer_load_dwordx4 v[36:39], v5, s[20:23], 0 offen offset:1152
    v_lshlrev_b32 v9, 2, v4
    buffer_load_dwordx4 v[40:43], v9, s[28:31], 0 offen
    buffer_load_dwordx4 v[44:47], v9, s[28:31], 0 offen offset:16
    buffer_load_dwordx4 v[48:51], v9, s[28:31], 0 offen offset:32
    buffer_load_dwordx4 v[52:55], v9, s[28:31], 0 offen offset:48
    v_lshlrev_b32 v10, 11, v4
    v_and_b32 v11, 0xfffffff8, v3
    v_lshl_add_u32 v10, v11, 1, v10
    v_and_b32 v11, 7, v3
    v_sub_u32 v11, 6, v11
    v_lshl_add_u32 v10, v11, 1, v10
    s_waitcnt vmcnt(0)
    """)
    KF = 56; WF = 66; VF = 74; AC = 78; PR = 82; T = 84; OUT = 86
    for p in range(4):
        for r in range(5):
            a(f"v_lshlrev_b32 v{KF+2*r}, 16, v{12+4*r+p}")
            a(f"v_and_b32 v{KF+2*r+1}, 0xffff0000, v{12+4*r+p}")
        for r in range(2):
            a(f"v_lshlrev_b32 v{VF+2*r}, 16, v{32+4*r+p}")
            a(f"v_and_b32 v{VF+2*r+1}, 0xffff0000, v{32+4*r+p}")
        for c in range(2):
            ch = 2*p + c
            a(f"v_lshlrev_b32 v{WF+4*c+0}, 16, v{40+2*ch}")
            a(f"v_and_b32 v{WF+4*c+1}, 0xffff0000, v{40+2*ch}")
            a(f"v_lshlrev_b32 v{WF+4*c+2}, 16, v{41+2*ch}")
            a(f"v_and_b32 v{WF+4*c+3}, 0xffff0000, v{41+2*ch}")
        for r in range(2):
            for t in range(4):
                a(f"v_mul_f32 v{PR}, v{KF+2*(r+t)}, v{WF+3-t}")
                a(f"v_mul_f32 v{PR+1}, v{KF+2*(r+t)+1}, v{WF+4+3-t}")
                a(f"v_cvt_pk_bf16_f32 v{T}, v{PR}, v{PR+1}")
                if t == 0:
                    a(f"v_lshlrev_b32 v{AC+2*r}, 16, v{T}")
                    a(f"v_and_b32 v{AC+2*r+1}, 0xffff0000, v{T}")
                else:
                    a(f"v_lshlrev_b32 v{PR}, 16, v{T}")
                    a(f"v_and_b32 v{PR+1}, 0xffff0000, v{T}")
                    a(f"v_add_f32 v{PR}, v{AC+2*r}, v{PR}")
                    a(f"v_add_f32 v{PR+1}, v{AC+2*r+1}, v{PR+1}")
                    a(f"v_cvt_pk_bf16_f32 v{T}, v{PR}, v{PR+1}")
                    a(f"v_lshlrev_b32 v{AC+2*r}, 16, v{T}")
                    a(f"v_and_b32 v{AC+2*r+1}, 0xffff0000, v{T}")
            a(f"v_mul_f32 v{AC+2*r}, v{AC+2*r}, v{VF+2*r}")
            a(f"v_mul_f32 v{AC+2*r+1}, v{AC+2*r+1}, v{VF+2*r+1}")
        for c in range(2):
            ch = 2*p + c
            a(f"v_cvt_pk_bf16_f32 v{OUT+2*p+c}, v{AC+2+c}, v{AC+0+c}")
            a(f"s_mov_b32 s46, {ch*4096}")
            a(f"buffer_store_dword v{OUT+2*p+c}, v10, s[32:35], s46 offen")
    a("s_endpgm")
    a.label("prep_pf")
    a(f"""
    s_sub_u32 s30, s2, {P2_LN + P2_KV}
    s_cmp_ge_u32 s30, 128
    s_cselect_b32 s48, s50, s48
    s_cselect_b32 s49, s51, s49
    s_and_b32 s30, s30, 127
    s_mul_i32 s30, s30, 41472
    s_mul_i32 s31, s24, 10368
    s_add_u32 s30, s30, s31
    v_lshlrev_b32 v2, 4, v1
    v_add_u32 v2, s30, v2
    """)
    srd(a, 16, 48, 49, SZ_W)
    for j in range(3):
        for i in range(4 if j < 2 else 3):
            a(f"buffer_load_dwordx4 v[{8+4*i}:{11+4*i}], v2, s[16:19], 0 offen offset:{i*1024}")
        a("v_add_u32 v2, 4096, v2")
    a.label("prep_done")
    a("s_endpgm")

HEADER = open("cdna_kernels/%s.s.ref" % NAME).read().split("; Override launch geometry")[0]

def main():
    a = A()
    launches = []
    kds = []
    import os
    if not os.environ.get("FUSE_PREP"):
        gen_prep(a); launches.append(("prep_kernel", N_LN_WG + N_KV_WG, 256, 0)); kds.append(kd("prep_kernel", 128, 48))
    import gen2
    gen2.add(a, launches, kds, globals())
    out = HEADER
    for (k, g, b, l) in launches:
        out += f"; @launch kernel={k} grid=({g},1,1) block=({b},1,1) lds={l}\n"
    out += '.amdgcn_target "amdgcn-amd-amdhsa--gfx950"\n.text\n'
    out += a.text()
    out += '.section .rodata,"a"\n'
    for k in kds:
        out += ".p2align 6\n" + k
    open(sys.argv[1] if len(sys.argv) > 1 else "cdna_kernels/%s.s" % NAME, "w").write(out)

if __name__ == "__main__":
    main()
```

```python
def add(a, launches, kds, G):
    gen_gemm1(a, G); launches.append(("gemm1_kernel", 256, 512, 4*G1_STG)); kds.append(G["kd"]("gemm1_kernel", 256, 102))
    try:
        import gen3
        gen3.add(a, launches, kds, G)
    except ImportError:
        pass

G1_STG = 16384 + 18432

import os
G1_NODMA = os.environ.get('G1_NODMA')
G1_NOMFMA = os.environ.get('G1_NOMFMA')
G1_NOBAR = os.environ.get('G1_NOBAR')
G1_STAMP = os.environ.get('G1_STAMP')
FUSE_PREP = bool(os.environ.get('FUSE_PREP'))
PREFETCH = not os.environ.get('NO_PREFETCH')
KV_IN_G1 = bool(os.environ.get('KV_IN_G1'))
G1_BAR2 = bool(os.environ.get('G1_BAR2'))
G1_LA = 1 if os.environ.get('G1_LA1') else 0
G1_NOREAD = os.environ.get('G1_NOREAD')
def gen_gemm1(a, G):
    srd = G["srd"]; WS_XN = G["WS_XN"]; WS_H = G["WS_H"]; SZ_ACT = G["SZ_ACT"]; SZ_H = G["SZ_H"]; SZ_W = G["SZ_W"]
    G["kernel_header"](a, "gemm1_kernel")
    STG = G1_STG
    NST = 18
    a(f"""
    s_load_dwordx2 s[4:5], s[0:1], 96
    s_load_dwordx2 s[6:7], s[0:1], 56
    s_load_dwordx2 s[8:9], s[0:1], 64
    s_load_dwordx2 s[60:61], s[0:1], 0       ; x
    s_load_dwordx2 s[62:63], s[0:1], 8       ; k
    s_load_dwordx2 s[64:65], s[0:1], 16      ; v
    s_load_dwordx2 s[66:67], s[0:1], 24      ; shift_k
    s_load_dwordx2 s[68:69], s[0:1], 88
    s_load_dwordx2 s[96:97], s[0:1], 72
    s_load_dwordx2 s[98:99], s[0:1], 32
    s_cmp_ge_u32 s2, 256
    s_cbranch_scc1 g1_done
    s_memtime s[48:49]
    v_lshrrev_b32 v1, 6, v0
    s_nop 0
    v_readfirstlane_b32 s24, v1              ; wave
    v_and_b32 v1, 63, v0                     ; lane
    s_and_b32 s25, s24, 3                    ; mw
    s_lshr_b32 s26, s24, 2                   ; gu
    s_and_b32 s28, s2, 7
    s_lshl_b32 s28, s28, 2
    s_lshr_b32 s27, s2, 3                    ; idx
    s_and_b32 s29, s27, 3
    s_add_u32 s28, s28, s29                  ; nblk
    s_lshr_b32 s27, s27, 2                   ; mblk
    s_waitcnt lgkmcnt(0)
    s_cmp_eq_u32 s26, 0
    s_cselect_b32 s6, s6, s8
    s_cselect_b32 s7, s7, s9
    """)
    srd(a, 12, 4, 5, SZ_ACT, WS_XN)
    srd(a, 16, 6, 7, SZ_W)
    srd(a, 20, 4, 5, SZ_H, WS_H)
    a(f"""
    s_lshl_b32 s32, s27, 4                   ; mblk*16
    s_lshl_b32 s33, s24, 1                   ; 2w
    s_add_u32 s32, s32, s33
    s_mul_i32 s32, s32, {18*1024}
    v_lshlrev_b32 v2, 4, v1
    v_add_u32 v2, s32, v2                    ; voffA0
    v_add_u32 v3, {18*1024}, v2              ; voffA1
    s_lshl_b32 s33, s25, 3                   ; 8*mw
    s_mul_i32 s33, s33, 9216
    s_mul_i32 s34, s28, 288
    s_add_u32 s33, s33, s34
    """)
    for i in range(3):
        a(f"""
        v_add_u32 v20, {64*i}, v1            ; q
        v_mul_u32_u24 v21, 3641, v20
        v_lshrrev_b32 v21, 16, v21           ; row = q/18
        v_mul_u32_u24 v22, 18, v21
        v_sub_u32 v22, v20, v22              ; c
        v_mul_u32_u24 v21, 9216, v21
        v_lshl_add_u32 v21, v22, 4, v21
        v_add_u32 v{4+i}, s33, v21
        """)
    a(f"""
    s_lshl_b32 s30, s24, 11                  ; w*2048
    s_mul_i32 s31, s26, 9216
    s_mul_i32 s34, s25, 2304
    s_add_u32 s31, s31, s34
    s_add_u32 s31, s31, 16384
    s_lshl_b32 s34, s25, 12                  ; mw*4096
    v_lshlrev_b32 v8, 4, v1
    v_add_u32 v8, s34, v8                    ; vA[0]
    v_lshrrev_b32 v12, 2, v1
    v_mul_u32_u24 v12, 288, v12
    v_and_b32 v13, 3, v1
    v_lshl_add_u32 v12, v13, 3, v12
    s_mul_i32 s34, s26, 9216
    s_add_u32 s34, s34, 16384
    v_add_u32 v12, s34, v12                  ; vB[0]
    """)
    for b in range(1, 4):
        a(f"v_add_u32 v{8+b}, {b*STG}, v8")
        a(f"v_add_u32 v{12+b}, {b*STG}, v12")
    a(f"""
    s_lshl_b32 s34, s27, 4
    s_lshl_b32 s35, s25, 2
    s_add_u32 s34, s34, s35                  ; mblk*16+4mw
    s_mul_i32 s34, s34, 144
    s_mul_i32 s35, s28, 9
    s_lshr_b32 s35, s35, 1
    s_add_u32 s34, s34, s35
    s_lshl_b32 s34, s34, 10
    v_lshlrev_b32 v16, 4, v1
    v_add_u32 v16, s34, v16                  ; voffH
    s_mul_i32 s34, s24, 9216
    v_lshlrev_b32 v17, 3, v1
    v_add_u32 v17, s34, v17
    s_xor_b32 s35, s24, 4
    s_mul_i32 s35, s35, 9216
    v_lshlrev_b32 v18, 3, v1
    v_add_u32 v18, s35, v18
    """)
    AF = [44, 60]
    BF = 76
    ACC = 112
    def acc(mt, ft): return ACC + 4*(mt*9 + ft)

    def dma_piece(t, i):
        b = t % 4
        if i == 0:
            a(f"s_mov_b32 s36, {t*1024}")
            a(f"s_add_u32 m0, s30, {b*STG}")
            a(f"s_mov_b32 s37, {t*294912}")
            a("buffer_load_dwordx4 v2, s[12:15], s36 offen lds")
        elif i == 1:
            a(f"s_add_u32 m0, s30, {b*STG + 1024}")
            a("s_nop 0")
            a("buffer_load_dwordx4 v3, s[12:15], s36 offen lds")
        elif i == 2:
            a(f"s_add_u32 m0, s31, {b*STG}")
            a("s_nop 0")
            a("buffer_load_dwordx4 v4, s[16:19], s37 offen lds")
        elif i == 3:
            a(f"s_add_u32 m0, s31, {b*STG + 1024}")
            a("s_nop 0")
            a("buffer_load_dwordx4 v5, s[16:19], s37 offen lds")
        else:
            a(f"s_add_u32 m0, s31, {b*STG + 2048}")
            a("s_mov_b64 exec, 0xffff")
            a("buffer_load_dwordx4 v6, s[16:19], s37 offen lds")
            a("s_mov_b64 exec, -1")
    def dma(t):
        for i in range(5): dma_piece(t, i)

    def readA(t):
        b = t % 4; r = AF[t % 2]
        for mt in range(4):
            a(f"ds_read_b128 v[{r+4*mt}:{r+4*mt+3}], v{8+b} offset:{mt*1024}")
    def readB(t, ft):
        b = t % 4; r = BF + 4*ft
        a(f"ds_read_b64_tr_b16 v[{r}:{r+1}], v{12+b} offset:{ft*32}")
        a(f"ds_read_b64_tr_b16 v[{r+2}:{r+3}], v{12+b} offset:{4608 + ft*32}")

    if not FUSE_PREP:
        dma(0); dma(1); dma(2)
        if G1_LA: dma(3)
        a(f"s_waitcnt vmcnt({15 if G1_LA else 10})")
        a("s_barrier")
    else:
        def bdma():
            for t in range(3):
                a(f"s_mov_b32 s37, {t*294912}")
                for i in (2, 3, 4): dma_piece(t, i)
        gen_ln_kv(a, G, bdma)
        for t in range(3):
            for i in (0, 1): dma_piece(t, i)
        a("s_waitcnt vmcnt(4)")
        a("s_barrier")
    if G1_STAMP: a("s_memtime s[50:51]"); a("s_waitcnt lgkmcnt(0)")
    readA(0)
    for ft in range(9): readB(0, ft)
    for t in range(NST):
        last = (t == NST-1)
        if t == 0: a("s_waitcnt lgkmcnt(0)")
        for ft in range(9):
            if t > 0:
                a(f"s_waitcnt lgkmcnt({12 if not last else min(15, 2*(8-ft))})")
            for mt in range(4):
                c = f"v[{acc(mt,ft)}:{acc(mt,ft)+3}]"
                src_c = c if t > 0 else "0"
                a(f"v_mfma_f32_16x16x32_bf16 {c}, v[{BF+4*ft}:{BF+4*ft+3}], v[{AF[t%2]+4*mt}:{AF[t%2]+4*mt+3}], {src_c}")
            if not last:
                if ft == 0:
                    if not G1_BAR2:
                        if G1_LA:
                            nyoung = 5*len([x for x in (t+2, t+3) if x < NST])
                            a(f"s_waitcnt vmcnt({nyoung}) lgkmcnt(0)")
                        else:
                            a(f"s_waitcnt vmcnt({2 if (t == 0 and FUSE_PREP) else (5 if t+2 < NST else 0)})")
                        a("s_barrier")
                    elif t % 2 == 0:
                        a("s_waitcnt vmcnt(0)")
                        a("s_barrier")
                    readA(t+1)
                    if t == NST-2 and PREFETCH:
                        srd(a, 76, 96, 97, SZ_W)
                        srd(a, 80, 98, 99, SZ_ACT)
                        a("""
                        s_and_b32 s84, s2, 3
                        s_mul_i32 s84, s84, 1327104
                        s_lshr_b32 s85, s2, 3
                        s_mul_i32 s85, s85, 41472
                        s_add_u32 s84, s84, s85
                        s_mul_i32 s85, s24, 5184
                        s_add_u32 s84, s84, s85
                        v_lshlrev_b32 v20, 4, v1
                        v_add_u32 v20, s84, v20
                        s_mul_i32 s84, s2, 9216
                        s_lshl_b32 s85, s24, 11
                        s_add_u32 s84, s84, s85
                        v_lshlrev_b32 v21, 4, v1
                        v_add_u32 v21, s84, v21
                        """)
                        for i in range(4):
                            a(f"buffer_load_dwordx4 v[32:35], v20, s[76:79], 0 offen offset:{i*1024}")
                        a("v_add_u32 v20, 4096, v20")
                        for i in range(2):
                            a(f"buffer_load_dwordx4 v[32:35], v20, s[76:79], 0 offen offset:{i*1024}")
                        for i in range(2):
                            a(f"buffer_load_dwordx4 v[36:39], v21, s[80:83], 0 offen offset:{i*1024}")
                readB(t+1, ft)
                if 1 <= ft <= 5 and t + 3 + G1_LA < NST: dma_piece(t+3+G1_LA, ft-1)
    if KV_IN_G1: gen_kv_issue(a, G, "g1_kvskip")
    a("s_nop 7")
    a("s_nop 7")
    if G1_STAMP: a("s_memtime s[52:53]"); a("s_waitcnt lgkmcnt(0)")
    a("s_barrier")
    for mt in range(4):
        for ft in range(9):
            c = acc(mt, ft)
            a(f"v_cvt_pk_bf16_f32 v{c}, v{c}, v{c+1}")
            a(f"v_cvt_pk_bf16_f32 v{c+1}, v{c+2}, v{c+3}")
    a("s_and_b32 s36, s28, 1")
    a("s_lshl_b32 s36, s36, 1")
    a("s_add_u32 s36, s36, s26")
    a("s_cmp_eq_u32 s36, 1")
    a("s_cbranch_scc1 g1_ep1")
    a("s_cmp_eq_u32 s36, 2")
    a("s_cbranch_scc1 g1_ep2")
    a("s_cmp_eq_u32 s36, 3")
    a("s_cbranch_scc1 g1_ep3")
    for var in range(4):
        gu = var & 1; odd = var >> 1
        if var > 0: a.label(f"g1_ep{var}")
        send = [2, 3] if gu == 0 else [0, 1]
        keep = [0, 1] if gu == 0 else [2, 3]
        for i, mt in enumerate(send):
            for ft in range(9):
                c = acc(mt, ft)
                a(f"ds_write_b64 v17, v[{c}:{c+1}] offset:{(i*9+ft)*512}")
        a("s_waitcnt lgkmcnt(0)")
        a("s_barrier")
        for i, mt in enumerate(keep):
            for ft in range(9):
                c = acc(mt, ft)
                a(f"ds_read_b64 v[{c+2}:{c+3}], v18 offset:{(i*9+ft)*512}")
        n = 0
        def prod(c, dst):
            a(f"""
            v_lshlrev_b32 v20, 16, v{c}
            v_and_b32 v21, 0xffff0000, v{c}
            v_lshlrev_b32 v22, 16, v{c+1}
            v_and_b32 v23, 0xffff0000, v{c+1}
            v_lshlrev_b32 v24, 16, v{c+2}
            v_and_b32 v25, 0xffff0000, v{c+2}
            v_lshlrev_b32 v26, 16, v{c+3}
            v_and_b32 v27, 0xffff0000, v{c+3}
            v_mul_f32 v20, v20, v24
            v_mul_f32 v21, v21, v25
            v_mul_f32 v22, v22, v26
            v_mul_f32 v23, v23, v27
            v_cvt_pk_bf16_f32 v{dst}, v20, v21
            v_cvt_pk_bf16_f32 v{dst+1}, v22, v23
            """)
        for i, mt in enumerate(keep):
            groups = [[0,1],[2,3],[4,5],[6,7],[8]] if not odd else [[0],[1,2],[3,4],[5,6],[7,8]]
            for gi, g in enumerate(groups):
                c0 = acc(mt, g[0])
                n += len(g)
                a(f"s_waitcnt lgkmcnt({min(15, 18-n)})")
                prod(c0, c0)
                if len(g) == 2:
                    prod(acc(mt, g[1]), c0+2)
                    a(f"s_mov_b32 s36, {mt*147456 + gi*1024}")
                    a(f"buffer_store_dwordx4 v[{c0}:{c0+3}], v16, s[20:23], s36 offen sc1")
                else:
                    a(f"s_mov_b32 s36, {mt*147456 + gi*1024 + (8 if odd else 0)}")
                    a(f"buffer_store_dwordx2 v[{c0}:{c0+1}], v16, s[20:23], s36 offen sc1")
        if G1_STAMP:
            a("s_waitcnt vmcnt(0)")
            a("s_memtime s[54:55]")
            a("s_waitcnt lgkmcnt(0)")
            a("s_sub_u32 s50, s50, s48")
            a("s_sub_u32 s52, s52, s48")
            a("s_sub_u32 s54, s54, s48")
            a("v_mov_b32 v20, s50")
            a("v_mov_b32 v21, s52")
            a("v_mov_b32 v22, s54")
            a("v_mov_b32 v23, 0")
            a("s_lshl_b32 s36, s2, 3")
            a("s_add_u32 s36, s36, s24")
            a("s_lshl_b32 s36, s36, 4")
            a("s_add_u32 s36, s36, 0x2F00000")
            a("v_mov_b32 v24, s36")
            a("s_add_u32 s56, s4, 0")
            a("s_addc_u32 s57, s5, 0")
            a("s_mov_b32 s58, 0x3000000")
            a("s_mov_b32 s59, 0x00020000")
            a("s_mov_b64 exec, 1")
            a("buffer_store_dwordx4 v[20:23], v24, s[56:59], 0 offen")
        a("s_branch g1_kvtail" if KV_IN_G1 else "s_endpgm")
    if KV_IN_G1:
        a.label("g1_kvtail")
        gen_kv_compute(a, G, "g1_done")
    else:
        a.label("g1_done")
    a("s_endpgm")


def gen_ln_kv(a, G, dma_cb):
    srd = G["srd"]; SZ_ACT = G["SZ_ACT"]; WS_KVT = G["WS_KVT"]
    srd(a, 72, 60, 61, SZ_ACT)
    srd(a, 76, 68, 69, 256)
    a(f"""
    s_lshl_b32 s70, s2, 3
    s_add_u32 s70, s70, s24                  ; row
    s_mul_i32 s71, s70, 1152
    v_lshlrev_b32 v112, 3, v1
    v_add_u32 v112, s71, v112
    v_mov_b32 v118, 0
    v_mov_b32 v119, 0
    buffer_load_dwordx2 v[114:115], v112, s[72:75], 0 offen
    buffer_load_dwordx2 v[116:117], v112, s[72:75], 0 offen offset:512
    s_mov_b64 exec, 0xffff
    buffer_load_dwordx2 v[118:119], v112, s[72:75], 0 offen offset:1024
    s_mov_b64 exec, -1
    s_lshr_b32 s71, s70, 4
    s_mul_i32 s71, s71, {18*1024}
    s_and_b32 s80, s70, 15
    s_lshl_b32 s80, s80, 4
    s_add_u32 s71, s71, s80
    v_lshrrev_b32 v113, 3, v1
    v_lshlrev_b32 v113, 10, v113
    v_and_b32 v120, 3, v1
    v_lshl_add_u32 v113, v120, 8, v113
    v_bfe_u32 v120, v1, 2, 1
    v_lshl_add_u32 v113, v120, 3, v113
    v_add_u32 v113, s71, v113
    """)
    dma_cb()
    a("s_waitcnt vmcnt(9)")
    srd(a, 40, 62, 63, SZ_ACT)
    srd(a, 84, 64, 65, SZ_ACT)
    srd(a, 88, 66, 67, 576*4*2)
    srd(a, 92, 4, 5, SZ_ACT, WS_KVT)
    a(f"""
    s_lshl_b32 s44, s24, 8
    s_add_u32 s44, s44, s2                   ; u
    s_cmp_ge_u32 s44, 1152
    s_cbranch_scc1 g1_nokv0
    s_mov_b32 s45, 0x1c71c71d
    s_mul_hi_u32 s46, s44, s45               ; sgroup = u/9
    s_mul_i32 s47, s46, 9
    s_sub_u32 s47, s44, s47                  ; dgroup
    v_and_b32 v144, 7, v1                    ; dchunk
    v_lshrrev_b32 v145, 3, v1                ; sblk
    s_lshl_b32 s38, s46, 4
    v_lshl_add_u32 v145, v145, 1, s38        ; s0
    s_lshl_b32 s38, s47, 7
    v_lshl_add_u32 v146, v144, 4, s38        ; d0*2
    s_movk_i32 s39, 1152
    v_mul_lo_u32 v147, v145, s39
    v_add_u32 v147, v147, v146
    v_subrev_u32 v148, {3*1152}, v147
    v_subrev_u32 v149, {2*1152}, v147
    v_subrev_u32 v150, {1*1152}, v147
    buffer_load_dwordx4 v[152:155], v148, s[40:43], 0 offen
    buffer_load_dwordx4 v[156:159], v149, s[40:43], 0 offen
    buffer_load_dwordx4 v[160:163], v150, s[40:43], 0 offen
    buffer_load_dwordx4 v[164:167], v147, s[40:43], 0 offen
    buffer_load_dwordx4 v[168:171], v147, s[40:43], 0 offen offset:1152
    buffer_load_dwordx4 v[172:175], v147, s[84:87], 0 offen
    buffer_load_dwordx4 v[176:179], v147, s[84:87], 0 offen offset:1152
    v_lshlrev_b32 v149, 2, v146
    buffer_load_dwordx4 v[180:183], v149, s[88:91], 0 offen
    buffer_load_dwordx4 v[184:187], v149, s[88:91], 0 offen offset:16
    buffer_load_dwordx4 v[188:191], v149, s[88:91], 0 offen offset:32
    buffer_load_dwordx4 v[192:195], v149, s[88:91], 0 offen offset:48
    v_lshlrev_b32 v150, 11, v146
    v_and_b32 v151, 0xfffffff8, v145
    v_lshl_add_u32 v150, v151, 1, v150
    v_and_b32 v151, 7, v145
    v_sub_u32 v151, 6, v151
    v_lshl_add_u32 v150, v151, 1, v150
    """)
    a.label("g1_nokv0")
    F = 120
    for i in range(6):
        a(f"v_lshlrev_b32 v{F+2*i}, 16, v{114+i}")
        a(f"v_and_b32 v{F+2*i+1}, 0xffff0000, v{114+i}")
    def wave_sum(r, t):
        a(f"""
        s_nop 1
        v_add_f32_dpp v{t}, v{r}, v{r} quad_perm:[1,0,3,2] row_mask:0xf bank_mask:0xf
        s_nop 1
        v_add_f32_dpp v{r}, v{t}, v{t} quad_perm:[2,3,0,1] row_mask:0xf bank_mask:0xf
        s_nop 1
        v_add_f32_dpp v{t}, v{r}, v{r} row_half_mirror row_mask:0xf bank_mask:0xf
        s_nop 1
        v_add_f32_dpp v{r}, v{t}, v{t} row_mirror row_mask:0xf bank_mask:0xf
        s_nop 0
        v_readlane_b32 s80, v{r}, 0
        v_readlane_b32 s81, v{r}, 16
        v_readlane_b32 s82, v{r}, 32
        v_readlane_b32 s83, v{r}, 48
        s_nop 1
        v_mov_b32 v{r}, s80
        v_add_f32 v{r}, s81, v{r}
        v_add_f32 v{r}, s82, v{r}
        v_add_f32 v{r}, s83, v{r}
        """)
    a(f"v_add_f32 v134, v{F}, v{F+1}")
    for i in range(2, 12): a(f"v_add_f32 v134, v134, v{F+i}")
    wave_sum(134, 135)
    a(f"""
    s_mov_b32 s84, 0x3ae38e39
    v_mul_f32 v136, s84, v134                ; mean
    v_sub_f32 v137, v{F}, v136
    v_mul_f32 v134, v137, v137
    """)
    for i in range(1, 8):
        a(f"v_sub_f32 v137, v{F+i}, v136")
        a(f"v_fmac_f32 v134, v137, v137")
    a("s_mov_b64 exec, 0xffff")
    for i in range(8, 12):
        a(f"v_sub_f32 v137, v{F+i}, v136")
        a(f"v_fmac_f32 v134, v137, v137")
    a("s_mov_b64 exec, -1")
    wave_sum(134, 135)
    a(f"""
    v_mul_f32 v137, s84, v134                ; var
    v_cvt_pk_bf16_f32 v138, v136, v137
    v_lshlrev_b32 v136, 16, v138             ; m
    v_and_b32 v137, 0xffff0000, v138
    s_mov_b32 s85, 0x3727c5ac
    v_add_f32 v137, s85, v137
    v_cvt_pk_bf16_f32 v137, v137, v137
    v_lshlrev_b32 v137, 16, v137
    v_sqrt_f32 v137, v137
    s_nop 0
    v_cvt_pk_bf16_f32 v137, v137, v137
    v_lshlrev_b32 v137, 16, v137             ; den
    v_rcp_f32 v138, v137
    s_nop 0
    """)
    for i in range(6):
        x0, x1 = F + 2*i, F + 2*i + 1
        a(f"""
        v_sub_f32 v{x0}, v{x0}, v136
        v_sub_f32 v{x1}, v{x1}, v136
        v_cvt_pk_bf16_f32 v139, v{x0}, v{x1}
        v_lshlrev_b32 v{x0}, 16, v139
        v_and_b32 v{x1}, 0xffff0000, v139
        v_mul_f32 v140, v{x0}, v138
        v_mul_f32 v141, v{x1}, v138
        v_fma_f32 v142, -v140, v137, v{x0}
        v_fma_f32 v143, -v141, v137, v{x1}
        v_fmac_f32 v140, v142, v138
        v_fmac_f32 v141, v143, v138
        v_cvt_pk_bf16_f32 v{114+i}, v140, v141
        """)
    a(f"""
    s_movk_i32 s80, 8192
    s_movk_i32 s81, 16384
    buffer_store_dwordx2 v[114:115], v113, s[12:15], 0 offen sc1
    buffer_store_dwordx2 v[116:117], v113, s[12:15], s80 offen sc1
    s_mov_b64 exec, 0xffff
    buffer_store_dwordx2 v[118:119], v113, s[12:15], s81 offen sc1
    s_mov_b64 exec, -1
    s_waitcnt vmcnt(0)
    s_barrier
    s_cmp_lg_u32 s24, 0
    s_cbranch_scc1 g1_noflag
    v_mov_b32 v112, s2
    v_mov_b32 v113, 1
    s_mov_b64 exec, 1
    buffer_store_byte v113, v112, s[76:79], 0 offen sc1
    s_mov_b64 exec, -1
    """)
    a.label("g1_noflag")
    a("s_cmp_ge_u32 s44, 1152")
    a("s_cbranch_scc1 g1_nokv")
    KF = 200; WF = 210; VF = 218; AC = 222; PR = 226; T = 228; OUT = 230
    for p in range(4):
        for r in range(5):
            a(f"v_lshlrev_b32 v{KF+2*r}, 16, v{152+4*r+p}")
            a(f"v_and_b32 v{KF+2*r+1}, 0xffff0000, v{152+4*r+p}")
        for r in range(2):
            a(f"v_lshlrev_b32 v{VF+2*r}, 16, v{172+4*r+p}")
            a(f"v_and_b32 v{VF+2*r+1}, 0xffff0000, v{172+4*r+p}")
        for c in range(2):
            ch = 2*p + c
            a(f"v_lshlrev_b32 v{WF+4*c+0}, 16, v{180+2*ch}")
            a(f"v_and_b32 v{WF+4*c+1}, 0xffff0000, v{180+2*ch}")
            a(f"v_lshlrev_b32 v{WF+4*c+2}, 16, v{181+2*ch}")
            a(f"v_and_b32 v{WF+4*c+3}, 0xffff0000, v{181+2*ch}")
        for r in range(2):
            for t in range(4):
                a(f"v_mul_f32 v{PR}, v{KF+2*(r+t)}, v{WF+3-t}")
                a(f"v_mul_f32 v{PR+1}, v{KF+2*(r+t)+1}, v{WF+4+3-t}")
                a(f"v_cvt_pk_bf16_f32 v{T}, v{PR}, v{PR+1}")
                if t == 0:
                    a(f"v_lshlrev_b32 v{AC+2*r}, 16, v{T}")
                    a(f"v_and_b32 v{AC+2*r+1}, 0xffff0000, v{T}")
                else:
                    a(f"v_lshlrev_b32 v{PR}, 16, v{T}")
                    a(f"v_and_b32 v{PR+1}, 0xffff0000, v{T}")
                    a(f"v_add_f32 v{PR}, v{AC+2*r}, v{PR}")
                    a(f"v_add_f32 v{PR+1}, v{AC+2*r+1}, v{PR+1}")
                    a(f"v_cvt_pk_bf16_f32 v{T}, v{PR}, v{PR+1}")
                    a(f"v_lshlrev_b32 v{AC+2*r}, 16, v{T}")
                    a(f"v_and_b32 v{AC+2*r+1}, 0xffff0000, v{T}")
            a(f"v_mul_f32 v{AC+2*r}, v{AC+2*r}, v{VF+2*r}")
            a(f"v_mul_f32 v{AC+2*r+1}, v{AC+2*r+1}, v{VF+2*r+1}")
        for c in range(2):
            ch = 2*p + c
            a(f"v_cvt_pk_bf16_f32 v{OUT+2*p+c}, v{AC+2+c}, v{AC+0+c}")
            a(f"s_mov_b32 s38, {ch*4096}")
            a(f"buffer_store_dword v{OUT+2*p+c}, v150, s[92:95], s38 offen")
    a.label("g1_nokv")
    a(f"""
    s_cmp_lg_u32 s24, 0
    s_cbranch_scc1 g1_nopoll
    s_lshl_b32 s70, s27, 5
    v_mov_b32 v112, s70
    s_mov_b64 exec, 1
    s_mov_b32 s71, 0
    s_mov_b32 s86, 0x01010101
    """)
    a.label("g1_poll")
    a(f"""
    buffer_load_dwordx4 v[116:119], v112, s[76:79], 0 offen sc1
    buffer_load_dwordx4 v[120:123], v112, s[76:79], 0 offen offset:16 sc1
    s_waitcnt vmcnt(0)
    v_and_b32 v116, v116, v117
    v_and_b32 v118, v118, v119
    v_and_b32 v120, v120, v121
    v_and_b32 v122, v122, v123
    v_and_b32 v116, v116, v118
    v_and_b32 v120, v120, v122
    v_and_b32 v116, v116, v120
    s_nop 0
    v_readfirstlane_b32 s80, v116
    s_add_u32 s71, s71, 1
    s_cmp_ge_u32 s71, 0x400000
    s_cbranch_scc1 g1_polldone
    s_cmp_eq_u32 s80, s86
    s_cbranch_scc1 g1_polldone
    s_sleep 12
    s_branch g1_poll
    """)
    a.label("g1_polldone")
    a("s_mov_b64 exec, -1")
    a("buffer_inv sc1")
    a("s_waitcnt vmcnt(0)")
    a.label("g1_nopoll")
    a("s_barrier")


def gen_kv_issue(a, G, skip_label):
    srd = G["srd"]; SZ_ACT = G["SZ_ACT"]; WS_KVT = G["WS_KVT"]
    srd(a, 72, 62, 63, SZ_ACT)
    srd(a, 84, 64, 65, SZ_ACT)
    srd(a, 88, 66, 67, 576*4*2)
    srd(a, 92, 4, 5, SZ_ACT, WS_KVT)
    D = 44
    a(f"""
    s_lshl_b32 s40, s24, 8
    s_add_u32 s40, s40, s2                   ; u
    s_mov_b32 s41, 0x1c71c71d
    s_mul_hi_u32 s42, s40, s41               ; sgroup
    s_mul_i32 s43, s42, 9
    s_sub_u32 s43, s40, s43                  ; dgroup
    v_and_b32 v28, 7, v1
    v_lshrrev_b32 v29, 3, v1
    s_lshl_b32 s44, s42, 4
    v_lshl_add_u32 v29, v29, 1, s44          ; s0
    s_lshl_b32 s44, s43, 7
    v_lshl_add_u32 v30, v28, 4, s44          ; d0*2
    s_movk_i32 s45, 1152
    v_mul_lo_u32 v31, v29, s45
    v_add_u32 v31, v31, v30
    v_subrev_u32 v40, {3*1152}, v31
    v_subrev_u32 v41, {2*1152}, v31
    v_subrev_u32 v42, {1*1152}, v31
    v_lshlrev_b32 v43, 2, v30
    v_lshlrev_b32 v19, 11, v30
    v_and_b32 v28, 0xfffffff8, v29
    v_lshl_add_u32 v19, v28, 1, v19
    v_and_b32 v28, 7, v29
    v_sub_u32 v28, 6, v28
    v_lshl_add_u32 v19, v28, 1, v19
    s_cmp_ge_u32 s40, 1152
    s_cbranch_scc1 {skip_label}
    buffer_load_dwordx4 v[{D}:{D+3}], v40, s[72:75], 0 offen
    buffer_load_dwordx4 v[{D+4}:{D+7}], v41, s[72:75], 0 offen
    buffer_load_dwordx4 v[{D+8}:{D+11}], v42, s[72:75], 0 offen
    buffer_load_dwordx4 v[{D+12}:{D+15}], v31, s[72:75], 0 offen
    buffer_load_dwordx4 v[{D+16}:{D+19}], v31, s[72:75], 0 offen offset:1152
    buffer_load_dwordx4 v[{D+20}:{D+23}], v31, s[84:87], 0 offen
    buffer_load_dwordx4 v[{D+24}:{D+27}], v31, s[84:87], 0 offen offset:1152
    buffer_load_dwordx4 v[{D+28}:{D+31}], v43, s[88:91], 0 offen
    buffer_load_dwordx4 v[{D+32}:{D+35}], v43, s[88:91], 0 offen offset:16
    buffer_load_dwordx4 v[{D+36}:{D+39}], v43, s[88:91], 0 offen offset:32
    buffer_load_dwordx4 v[{D+40}:{D+43}], v43, s[88:91], 0 offen offset:48
    """)
    a.label(skip_label)

def gen_kv_compute(a, G, skip_label):
    D = 44
    a("s_cmp_ge_u32 s40, 1152")
    a(f"s_cbranch_scc1 {skip_label}")
    a("s_waitcnt vmcnt(10)")
    B = 88
    KF = B; WF = B+10; VF = B+18; AC = B+22; PR = B+26; T = B+28; OUT = B+30
    for p in range(4):
        for r in range(5):
            a(f"v_lshlrev_b32 v{KF+2*r}, 16, v{D+4*r+p}")
            a(f"v_and_b32 v{KF+2*r+1}, 0xffff0000, v{D+4*r+p}")
        for r in range(2):
            a(f"v_lshlrev_b32 v{VF+2*r}, 16, v{D+20+4*r+p}")
            a(f"v_and_b32 v{VF+2*r+1}, 0xffff0000, v{D+20+4*r+p}")
        for c in range(2):
            ch = 2*p + c
            a(f"v_lshlrev_b32 v{WF+4*c+0}, 16, v{D+28+2*ch}")
            a(f"v_and_b32 v{WF+4*c+1}, 0xffff0000, v{D+28+2*ch}")
            a(f"v_lshlrev_b32 v{WF+4*c+2}, 16, v{D+29+2*ch}")
            a(f"v_and_b32 v{WF+4*c+3}, 0xffff0000, v{D+29+2*ch}")
        for r in range(2):
            for t in range(4):
                a(f"v_mul_f32 v{PR}, v{KF+2*(r+t)}, v{WF+3-t}")
                a(f"v_mul_f32 v{PR+1}, v{KF+2*(r+t)+1}, v{WF+4+3-t}")
                a(f"v_cvt_pk_bf16_f32 v{T}, v{PR}, v{PR+1}")
                if t == 0:
                    a(f"v_lshlrev_b32 v{AC+2*r}, 16, v{T}")
                    a(f"v_and_b32 v{AC+2*r+1}, 0xffff0000, v{T}")
                else:
                    a(f"v_lshlrev_b32 v{PR}, 16, v{T}")
                    a(f"v_and_b32 v{PR+1}, 0xffff0000, v{T}")
                    a(f"v_add_f32 v{PR}, v{AC+2*r}, v{PR}")
                    a(f"v_add_f32 v{PR+1}, v{AC+2*r+1}, v{PR+1}")
                    a(f"v_cvt_pk_bf16_f32 v{T}, v{PR}, v{PR+1}")
                    a(f"v_lshlrev_b32 v{AC+2*r}, 16, v{T}")
                    a(f"v_and_b32 v{AC+2*r+1}, 0xffff0000, v{T}")
            a(f"v_mul_f32 v{AC+2*r}, v{AC+2*r}, v{VF+2*r}")
            a(f"v_mul_f32 v{AC+2*r+1}, v{AC+2*r+1}, v{VF+2*r+1}")
        for c in range(2):
            ch = 2*p + c
            a(f"v_cvt_pk_bf16_f32 v{OUT+2*p+c}, v{AC+2+c}, v{AC+0+c}")
            a(f"s_mov_b32 s46, {ch*4096}")
            a(f"buffer_store_dword v{OUT+2*p+c}, v19, s[92:95], s46 offen")
    a.label(skip_label)
```

```python
import os
G2_STAMP = os.environ.get('G2_STAMP')
FUSE_FINAL = bool(os.environ.get('FUSE_FINAL'))
BF16_PART = bool(os.environ.get('BF16_PART'))
G2_STG = 18432
WS_FLAG = 0x2B00000
CONV_REG = 24512
CONV_PER_WG = int(os.environ.get("CPW", "3"))
K3_LDS = 73728
N_CONV = 576 // CONV_PER_WG
def add(a, launches, kds, G):
    gen_k3(a, G); launches.append(("gemm2_kernel", 256 + N_CONV, 512, K3_LDS)); kds.append(G["kd"]("gemm2_kernel", 128, 96))
    if not FUSE_FINAL:
        gen_k4(a, G); launches.append(("final_kernel", 288, 256, 10240)); kds.append(G["kd"]("final_kernel", 128, 64))

def gen_k3(a, G):
    srd = G["srd"]
    WS_H = G["WS_H"]; WS_PART = G["WS_PART"]; WS_KVT = G["WS_KVT"]; WS_Y2T = G["WS_Y2T"]
    SZ_ACT = G["SZ_ACT"]; SZ_H = G["SZ_H"]; SZ_W = G["SZ_W"]; SZ_PART = G["SZ_PART"]
    G["kernel_header"](a, "gemm2_kernel")
    STG = G2_STG
    NST = 18
    a(f"""
    s_load_dwordx2 s[4:5], s[0:1], 96        ; ws
    s_load_dwordx2 s[6:7], s[0:1], 72        ; w_down
    s_load_dwordx2 s[8:9], s[0:1], 32        ; ssm_k
    s_load_dwordx2 s[10:11], s[0:1], 40      ; ssm_D
    s_load_dwordx2 s[60:61], s[0:1], 0       ; x
    s_load_dwordx2 s[62:63], s[0:1], 80      ; out
    s_load_dwordx2 s[64:65], s[0:1], 88
    s_cmp_ge_u32 s2, {256+N_CONV}
    s_cbranch_scc1 g2_done
    s_memtime s[48:49]
    v_lshrrev_b32 v1, 6, v0
    s_nop 0
    v_readfirstlane_b32 s24, v1              ; wave
    v_and_b32 v1, 63, v0                     ; lane
    s_waitcnt lgkmcnt(0)
    s_cmp_ge_u32 s2, 256
    s_cbranch_scc1 conv_start
    s_and_b32 s25, s24, 3                    ; mw
    s_lshr_b32 s26, s24, 2                   ; kg
    s_and_b32 s29, s2, 7                     ; xcd
    s_and_b32 s38, s29, 3                    ; ks
    s_lshr_b32 s29, s29, 2                   ; mhalf
    s_lshr_b32 s27, s2, 3                    ; idx
    s_and_b32 s28, s27, 3                    ; nblk
    s_lshr_b32 s27, s27, 2
    s_lshl_b32 s29, s29, 3
    s_add_u32 s27, s27, s29                  ; mblk (0..15)
    """)
    srd(a, 12, 4, 5, SZ_H, WS_H)
    srd(a, 16, 6, 7, SZ_W)
    srd(a, 20, 4, 5, SZ_PART, WS_PART)
    a(f"""
    ; A (h) offsets: (st*144 + ks*36 + kg)*1024 + lane*16
    s_lshl_b32 s32, s27, 3
    s_lshl_b32 s33, s25, 1
    s_add_u32 s32, s32, s33
    s_mul_i32 s33, s32, {144*1024}
    s_mul_i32 s34, s38, {36*1024}
    s_add_u32 s33, s33, s34
    s_lshl_b32 s34, s26, 10
    s_add_u32 s33, s33, s34
    v_lshlrev_b32 v2, 4, v1
    v_add_u32 v2, s33, v2
    v_add_u32 v3, {144*1024}, v2
    s_mul_i32 s33, s38, 1152
    s_lshl_b32 s34, s24, 3
    s_add_u32 s33, s33, s34
    s_mul_i32 s33, s33, 1152
    s_mul_i32 s34, s28, 288
    s_add_u32 s33, s33, s34
    """)
    for i in range(3):
        a(f"""
        v_add_u32 v20, {64*i}, v1
        v_mul_u32_u24 v21, 3641, v20
        v_lshrrev_b32 v21, 16, v21
        v_mul_u32_u24 v22, 18, v21
        v_sub_u32 v22, v20, v22
        v_mul_u32_u24 v21, 1152, v21
        v_lshl_add_u32 v21, v22, 4, v21
        v_add_u32 v{4+i}, s33, v21
        """)
    a(f"""
    s_mul_i32 s31, s24, 2304
    v_lshrrev_b32 v8, 2, v1
    v_mul_u32_u24 v8, 288, v8
    v_and_b32 v9, 3, v1
    v_lshl_add_u32 v8, v9, 3, v8
    s_mul_i32 s34, s26, 9216
    v_add_u32 v8, s34, v8                    ; vB[0]
    """)
    for b in range(1, 4):
        a(f"v_add_u32 v{8+b}, {b*STG}, v8")
    a(f"""
    """)
    NA = 4
    AS = [12, 20, 28, 36]
    RB = 3
    BR = 44
    ACC = 56
    def acc(mt, dt): return ACC + 4*(mt*9 + dt)
    def dma_piece(t, i):
        b = t % 4
        if i == 0:
            a(f"s_mov_b32 s37, {t*64*1152}")
            a(f"s_add_u32 m0, s31, {b*STG}")
            a("s_nop 0")
            a("buffer_load_dwordx4 v4, s[16:19], s37 offen lds")
        elif i == 1:
            a(f"s_add_u32 m0, s31, {b*STG + 1024}")
            a("s_nop 0")
            a("buffer_load_dwordx4 v5, s[16:19], s37 offen lds")
        else:
            a(f"s_add_u32 m0, s31, {b*STG + 2048}")
            a("s_mov_b64 exec, 0xffff")
            a("buffer_load_dwordx4 v6, s[16:19], s37 offen lds")
            a("s_mov_b64 exec, -1")
    def dma(t):
        for i in range(3): dma_piece(t, i)
    def loadA_piece(t, i):
        r = AS[t % NA]
        if i == 0:
            a(f"s_mov_b32 s36, {t*2048}")
            a(f"buffer_load_dwordx4 v[{r}:{r+3}], v2, s[12:15], s36 offen")
        else:
            a(f"buffer_load_dwordx4 v[{r+4}:{r+7}], v3, s[12:15], s36 offen")
    def loadA(t):
        loadA_piece(t, 0); loadA_piece(t, 1)
    def readB(n):
        t = n // 9; dt = n % 9; b = t % 4; r = BR + 4*(n % RB)
        a(f"ds_read_b64_tr_b16 v[{r}:{r+1}], v{8+b} offset:{dt*32}")
        a(f"ds_read_b64_tr_b16 v[{r+2}:{r+3}], v{8+b} offset:{4608 + dt*32}")
    loadA(0); dma(0); loadA(1); dma(1); loadA(2); dma(2)
    a("s_waitcnt vmcnt(10)")
    a("s_barrier")
    if G2_STAMP: a("s_memtime s[50:51]"); a("s_waitcnt lgkmcnt(0)")
    for n in range(RB): readB(n)
    NT = 9*NST
    for t in range(NST):
        def cnt(lo):
            return sum(5 for x in range(lo, t+3) if x <= NST-1)
        if t <= 2:
            nA = 3 + cnt(t+1) if t < 3 else 0
            a(f"s_waitcnt vmcnt({min(nA, 63)})")
        else:
            a(f"s_waitcnt vmcnt({cnt(t+1)})")
        for dt in range(9):
            n = 9*t + dt
            younger = min(RB-1, NT-1-n)
            a(f"s_waitcnt lgkmcnt({2*younger})")
            br = BR + 4*(n % RB)
            for mt in range(2):
                c = f"v[{acc(mt,dt)}:{acc(mt,dt)+3}]"
                src_c = c if t > 0 else "0"
                ar = AS[t % NA] + 4*mt
                a(f"v_mfma_f32_16x16x32_bf16 {c}, v[{br}:{br+3}], v[{ar}:{ar+3}], {src_c}")
            if dt == 1 and t < NST-1:
                if t + 1 <= 2: nD = cnt(t+2)
                else: nD = 2 + cnt(t+2)
                a(f"s_waitcnt vmcnt({nD})")
                a("s_barrier")
            if n + RB < NT: readB(n + RB)
            if t + 3 < NST:
                if 2 <= dt <= 4: dma_piece(t+3, dt-2)
                if 5 <= dt <= 6: loadA_piece(t+3, dt-5)
    a(("""
    v_and_b32 v1, 63, v0
    ; partial store offset: ((ks*128 + st0 + kg)*36 + nblk*9)*1024 + lane*16   (keep mt = kg)
    s_lshl_b32 s34, s38, 7
    s_add_u32 s34, s34, s32
    s_add_u32 s34, s34, s26
    s_mul_i32 s34, s34, 36
    s_mul_i32 s35, s28, 9
    s_add_u32 s34, s34, s35
    s_lshl_b32 s34, s34, PSH
    v_lshlrev_b32 v12, PLS, v1
    v_add_u32 v12, s34, v12
    s_mul_i32 s34, s24, 9216
    v_lshlrev_b32 v13, 4, v1
    v_add_u32 v13, s34, v13                  ; own exchange region
    s_xor_b32 s35, s24, 4
    s_mul_i32 s35, s35, 9216
    v_lshlrev_b32 v14, 4, v1
    v_add_u32 v14, s35, v14                  ; partner region
    """).replace("PSH", "9" if BF16_PART else "10").replace("PLS", "3" if BF16_PART else "4"))
    a("s_nop 7")
    if G2_STAMP: a("s_memtime s[52:53]"); a("s_waitcnt lgkmcnt(0)")
    a("s_barrier")
    a("s_cmp_eq_u32 s26, 0")
    a("s_cbranch_scc0 g2_ep1")
    FREG = 0
    YREG = 18432
    for kg in range(2):
        if kg == 1: a.label("g2_ep1")
        send = 1 - kg; keep = kg
        for dt in range(9):
            c = acc(send, dt)
            a(f"ds_write_b128 v13, v[{c}:{c+3}] offset:{dt*1024}")
        a("s_waitcnt lgkmcnt(0)")
        a("s_barrier")
        for dt in range(9):
            c = acc(send, dt)
            a(f"ds_read_b128 v[{c}:{c+3}], v14 offset:{dt*1024}")
        for dt in range(9):
            c = acc(send, dt); k = acc(keep, dt)
            a(f"s_waitcnt lgkmcnt({8-dt})")
            for i in range(4):
                a(f"v_add_f32 v{k+i}, v{k+i}, v{c+i}")
            if not FUSE_FINAL and not BF16_PART:
                a(f"s_mov_b32 s36, {dt*1024}")
                a(f"buffer_store_dwordx4 v[{k}:{k+3}], v12, s[20:23], s36 offen sc1")
            if not FUSE_FINAL and BF16_PART:
                a(f"v_cvt_pk_bf16_f32 v{k}, v{k}, v{k+1}")
                a(f"v_cvt_pk_bf16_f32 v{k+1}, v{k+2}, v{k+3}")
                a(f"s_mov_b32 s36, {dt*512}")
                a(f"buffer_store_dwordx2 v[{k}:{k+1}], v12, s[20:23], s36 offen sc1")
        if not FUSE_FINAL:
            if G2_STAMP:
                a("""
                s_waitcnt vmcnt(0)
                s_memtime s[54:55]
                s_waitcnt lgkmcnt(0)
                s_sub_u32 s50, s50, s48
                s_sub_u32 s52, s52, s48
                s_sub_u32 s54, s54, s48
                v_mov_b32 v20, s50
                v_mov_b32 v21, s52
                v_mov_b32 v22, s54
                v_mov_b32 v23, 0
                s_lshl_b32 s36, s2, 3
                s_add_u32 s36, s36, s24
                s_lshl_b32 s36, s36, 4
                s_add_u32 s36, s36, 0x2F80000
                v_mov_b32 v24, s36
                s_add_u32 s56, s4, 0
                s_addc_u32 s57, s5, 0
                s_mov_b32 s58, 0x3000000
                s_mov_b32 s59, 0x00020000
                s_mov_b64 exec, 1
                buffer_store_dwordx4 v[20:23], v24, s[56:59], 0 offen
                """)
            a("s_endpgm")
            continue
        a("s_barrier")
        a("s_cmp_eq_u32 s25, s38")
        a(f"s_cbranch_scc1 g2_own{kg}")
        for dt in range(9):
            k = acc(keep, dt)
            a(f"s_mov_b32 s36, {dt*1024}")
            a(f"buffer_store_dwordx4 v[{k}:{k+3}], v12, s[20:23], s36 offen sc1")
        a("s_branch g2_fin")
        a.label(f"g2_own{kg}")
        a("v_lshlrev_b32 v15, 4, v1")
        for dt in range(9):
            k = acc(keep, dt)
            a(f"ds_write_b128 v15, v[{k}:{k+3}] offset:{FREG + (kg*9+dt)*1024}")
        if kg == 0: a("s_branch g2_fin")
    if FUSE_FINAL:
        a.label("g2_fin")
        srd(a, 40, 60, 61, SZ_ACT)
        srd(a, 44, 62, 63, SZ_ACT)
        srd(a, 68, 4, 5, SZ_ACT, G["WS_XN"])
        srd(a, 72, 4, 5, SZ_ACT, WS_Y2T)
        srd(a, 76, 4, 5, 0x3000, WS_FLAG)
        a(f"""
        ; quarter rows: stile base sq = mblk*8 + 2*ks ; wave w handles q = 3w..3w+2 (w<6): sr = q/9, dt = q%9
        s_lshl_b32 s32, s27, 3
        s_lshl_b32 s33, s38, 1
        s_add_u32 s32, s32, s33                  ; sq
        s_mul_i32 s33, s24, 3                    ; q0 = 3w
        s_cmp_ge_u32 s33, 9
        s_cselect_b32 s34, 1, 0                  ; sr
        s_mul_i32 s35, s34, 9
        s_sub_u32 s35, s33, s35                  ; dt0 (0,3,6)
        s_add_u32 s39, s32, s34
        s_mul_i32 s66, s28, 9
        s_add_u32 s66, s66, s35
        v_and_b32 v20, 15, v1
        s_lshl_b32 s36, s39, 4
        v_add_u32 v20, s36, v20
        v_mul_u32_u24 v20, 1152, v20
        v_lshrrev_b32 v21, 4, v1
        v_lshl_add_u32 v20, v21, 3, v20
        s_lshl_b32 s36, s66, 5
        v_add_u32 v20, s36, v20
        ; partial offset (split 0): (stile*36 + dtile_g0)*1024 + lane*16
        s_mul_i32 s36, s39, 36
        s_add_u32 s36, s36, s66
        s_lshl_b32 s36, s36, 10
        v_lshlrev_b32 v21, 4, v1
        v_add_u32 v21, s36, v21                  ; v21
        ; own tile LDS addr: FREG + q0*1024 + lane*16
        s_lshl_b32 s36, s33, 10
        v_lshlrev_b32 v22, 4, v1
        v_add_u32 v22, s36, v22                  ; v22
        v_lshrrev_b32 v23, 1, v0
        v_and_b32 v24, 1, v0
        s_mul_i32 s36, s28, 144
        v_add_u32 v25, s36, v23
        v_lshlrev_b32 v25, 12, v25
        v_lshl_add_u32 v25, v24, 5, v25
        s_lshl_b32 s36, s32, 5
        v_add_u32 v25, s36, v25                  ; v25 global
        v_mul_u32_u24 v26, 96, v23
        v_lshl_add_u32 v26, v24, 5, v26
        v_add_u32 v26, {YREG}, v26
        v_lshrrev_b32 v27, 2, v1
        s_lshl_b32 s36, s35, 4
        v_add_u32 v27, s36, v27
        v_mul_u32_u24 v27, 96, v27
        v_and_b32 v28, 3, v1
        v_lshl_add_u32 v27, v28, 3, v27
        s_lshl_b32 s36, s34, 5
        s_add_u32 s36, s36, {YREG}
        v_add_u32 v27, s36, v27                  ; v27
        s_waitcnt vmcnt(0) lgkmcnt(0)
        s_barrier                                ; B3
        s_cmp_lg_u32 s24, 0
        s_cbranch_scc1 g2_nopoll
        s_lshl_b32 s36, s27, 2
        s_add_u32 s36, s36, s28
        s_lshl_b32 s36, s36, 6                   ; *64 B
        v_mov_b32 v31, s36
        s_lshl_b32 s37, s38, 2
        s_add_u32 s37, s37, s36
        v_mov_b32 v32, s37
        v_mov_b32 v33, 1
        s_mov_b64 exec, 1
        buffer_store_dword v33, v32, s[76:79], 0 offen sc1
        s_mov_b32 s36, 0xffffffff
        s_mov_b32 s37, 0xf
        s_mov_b64 exec, s[36:37]                 ; 36 lanes
        s_mul_i32 s36, s28, 576
        s_add_u32 s36, s36, 0x2000
        v_lshlrev_b32 v30, 4, v1
        v_add_u32 v30, s36, v30
        s_mov_b32 s67, 0
        """)
        a.label("g2_poll")
        a(f"""
        buffer_load_dwordx4 v[48:51], v30, s[76:79], 0 offen sc1
        buffer_load_dwordx4 v[52:55], v31, s[76:79], 0 offen sc1
        s_waitcnt vmcnt(0)
        v_min_u32 v48, v48, v49
        v_min_u32 v50, v50, v51
        v_min_u32 v52, v52, v53
        v_min_u32 v54, v54, v55
        v_min_u32 v48, v48, v50
        v_min_u32 v52, v52, v54
        v_min_u32 v48, v48, v52
        v_cmp_eq_u32 vcc, 0, v48
        s_add_u32 s67, s67, 1
        s_cmp_ge_u32 s67, 0x400000
        s_cbranch_scc1 g2_polldone
        s_cmp_eq_u64 vcc, 0
        s_cbranch_scc1 g2_polldone
        s_sleep 2
        s_branch g2_poll
        """)
        a.label("g2_polldone")
        a("s_mov_b64 exec, -1")
        a.label("g2_nopoll")
        a("""
        s_mul_i32 s36, s39, 18
        s_lshl_b32 s36, s36, 10
        v_lshlrev_b32 v29, 4, v1
        v_add_u32 v29, s36, v29
        """)
        for j in range(3):
            a(f"""
            s_add_u32 s36, s66, {j}
            s_lshr_b32 s37, s36, 1
            s_lshl_b32 s37, s37, 10
            s_and_b32 s36, s36, 1
            s_lshl_b32 s36, s36, 3
            s_add_u32 s36, s36, s37
            buffer_load_dwordx2 v[{36+4*j}:{37+4*j}], v20, s[40:43], 0 offen offset:{32*j}
            buffer_load_dwordx2 v[{38+4*j}:{39+4*j}], v29, s[68:71], s36 offen
            """)
        a("""
        s_barrier                                ; B4
        v_cmp_gt_u32 vcc, 288, v0
        s_and_saveexec_b64 s[82:83], vcc
        s_cbranch_execz g2_noy
        buffer_load_dwordx4 v[48:51], v25, s[72:75], 0 offen sc1
        buffer_load_dwordx4 v[52:55], v25, s[72:75], 0 offen offset:16 sc1
        s_waitcnt vmcnt(0)
        ds_write_b128 v26, v[48:51]
        ds_write_b128 v26, v[52:55] offset:16
        """)
        a.label("g2_noy")
        a("s_mov_b64 exec, s[82:83]")
        a("s_cmp_ge_u32 s24, 6")
        a("s_cbranch_scc1 g2_skipld")
        for i in range(1, 4):
            a(f"""
            s_add_u32 s36, s38, {i}
            s_and_b32 s36, s36, 3
            s_mul_i32 s36, s36, {128*36*1024}
            """)
            for j in range(3):
                r = 56 + 12*(i-1) + 4*j
                a(f"buffer_load_dwordx4 v[{r}:{r+3}], v21, s[20:23], s36 offen offset:{1024*j} sc1")
        for j in range(3):
            a(f"ds_read_b128 v[{92+4*j}:{95+4*j}], v22 offset:{1024*j}")
        a.label("g2_skipld")
        a("s_waitcnt lgkmcnt(0)")
        a("s_barrier                                ; B5")
        a("s_cmp_ge_u32 s24, 6")
        a("s_cbranch_scc1 g2_done")
        for j in range(3):
            a(f"ds_read_b64_tr_b16 v[{104+2*j}:{105+2*j}], v27 offset:{16*96*j}")
        a("s_waitcnt vmcnt(0) lgkmcnt(0)")
        for j in range(3):
            P = 92 + 4*j; X = 36 + 4*j; XN = 38 + 4*j; Y = 104 + 2*j
            for i in range(3):
                o = 56 + 12*i + 4*j
                for e in range(4):
                    a(f"v_add_f32 v{P+e}, v{P+e}, v{o+e}")
            a(f"""
            v_cvt_pk_bf16_f32 v112, v{P}, v{P+1}
            v_cvt_pk_bf16_f32 v113, v{P+2}, v{P+3}
            v_lshlrev_b32 v116, 16, v{XN}
            v_and_b32 v117, 0xffff0000, v{XN}
            v_lshlrev_b32 v118, 16, v{XN+1}
            v_and_b32 v119, 0xffff0000, v{XN+1}
            v_lshlrev_b32 v120, 16, v{Y}
            v_and_b32 v121, 0xffff0000, v{Y}
            v_lshlrev_b32 v122, 16, v{Y+1}
            v_and_b32 v123, 0xffff0000, v{Y+1}
            v_mul_f32 v116, v116, v120
            v_mul_f32 v117, v117, v121
            v_mul_f32 v118, v118, v122
            v_mul_f32 v119, v119, v123
            v_cvt_pk_bf16_f32 v114, v116, v117
            v_cvt_pk_bf16_f32 v115, v118, v119
            v_lshlrev_b32 v116, 16, v{X}
            v_and_b32 v117, 0xffff0000, v{X}
            v_lshlrev_b32 v118, 16, v{X+1}
            v_and_b32 v119, 0xffff0000, v{X+1}
            v_lshlrev_b32 v120, 16, v114
            v_and_b32 v121, 0xffff0000, v114
            v_lshlrev_b32 v122, 16, v115
            v_and_b32 v123, 0xffff0000, v115
            v_add_f32 v116, v116, v120
            v_add_f32 v117, v117, v121
            v_add_f32 v118, v118, v122
            v_add_f32 v119, v119, v123
            v_cvt_pk_bf16_f32 v114, v116, v117
            v_cvt_pk_bf16_f32 v115, v118, v119
            v_lshlrev_b32 v116, 16, v114
            v_and_b32 v117, 0xffff0000, v114
            v_lshlrev_b32 v118, 16, v115
            v_and_b32 v119, 0xffff0000, v115
            v_lshlrev_b32 v120, 16, v112
            v_and_b32 v121, 0xffff0000, v112
            v_lshlrev_b32 v122, 16, v113
            v_and_b32 v123, 0xffff0000, v113
            v_add_f32 v116, v116, v120
            v_add_f32 v117, v117, v121
            v_add_f32 v118, v118, v122
            v_add_f32 v119, v119, v123
            v_cvt_pk_bf16_f32 v{P}, v116, v117
            v_cvt_pk_bf16_f32 v{P+1}, v118, v119
            buffer_store_dwordx2 v[{P}:{P+1}], v20, s[44:47], 0 offen offset:{32*j}
            """)
        a("s_endpgm")

    CB = [12728, 0, 4160, 8320]
    UOFF = 16896
    UZ = 31
    CREG = CONV_REG
    a.label("conv_start")
    a(f"s_cmp_ge_u32 s24, {2*CONV_PER_WG}")
    a("s_cbranch_scc1 g2_done")
    srd(a, 12, 4, 5, SZ_ACT, WS_KVT)
    srd(a, 16, 8, 9, SZ_ACT)
    srd(a, 20, 4, 5, SZ_ACT, WS_Y2T)
    srd(a, 40, 10, 11, 576*2)
    a(f"""
    s_lshr_b32 s26, s24, 1
    s_and_b32 s27, s24, 1                    ; parity
    s_sub_u32 s25, s2, 256
    s_mul_i32 s25, s25, {CONV_PER_WG}
    s_add_u32 s25, s25, s26                  ; channel d
    s_mul_i32 s30, s26, {CREG}
    s_lshl_b32 s31, s25, 12                  ; d*4096
    s_lshl_b32 s28, s27, 11
    v_lshlrev_b32 v2, 4, v1                  ; lane*16
    v_add_u32 v3, s30, v2
    v_add_u32 v4, s28, v3
    s_lshl_b32 s32, s25, 1
    v_mov_b32 v8, s32
    buffer_load_ushort v9, v8, s[40:43], 0 offen
    s_add_u32 s34, s31, s28
    """)
    for i in range(2):
        a(f"s_add_u32 s33, s34, {i*1024}")
        a(f"buffer_load_dwordx4 v[{32+4*i}:{35+4*i}], v2, s[12:15], s33 offen")
        a(f"buffer_load_dwordx4 v[{48+6*i}:{51+6*i}], v2, s[16:19], s33 offen")
        a(f"buffer_load_dwordx2 v[{52+6*i}:{53+6*i}], v2, s[16:19], s33 offen offset:16")
    a(f"""
    v_mov_b32 v60, 0
    v_mov_b32 v61, 0
    v_mov_b32 v62, 0
    v_mov_b32 v63, 0
    s_cmp_lg_u32 s27, 0
    s_cbranch_scc1 conv_nozero
    ds_write_b128 v3, v[60:63] offset:{UOFF}
    ds_write_b128 v3, v[60:63] offset:{UOFF+1024}
    ds_write_b128 v3, v[60:63] offset:{UOFF+2048}
    s_mov_b64 exec, 0xf
    ds_write_b128 v3, v[60:63] offset:{CB[1]}
    ds_write_b128 v3, v[60:63] offset:{CB[2]}
    ds_write_b128 v3, v[60:63] offset:{CB[3]}
    ds_write_b64 v3, v[60:61] offset:{CB[0]}
    ds_write_b64 v3, v[60:61] offset:{CB[0]+8}
    s_mov_b64 exec, -1
    """)
    a.label("conv_nozero")
    a(f"""
    v_lshrrev_b32 v20, 2, v1
    v_mul_u32_u24 v20, 80, v20
    v_and_b32 v21, 3, v1
    v_lshl_add_u32 v20, v21, 4, v20
    v_add_u32 v20, s30, v20
    s_mul_i32 s33, s27, {32*80}
    v_add_u32 v20, s33, v20
    v_and_b32 v10, 31, v1                    ; r / n
    v_lshrrev_b32 v11, 5, v1                 ; kh
    v_lshlrev_b32 v12, 3, v11
    v_sub_u32 v12, v10, v12
    v_add_u32 v12, 9, v12
    v_and_b32 v13, 3, v12                    ; t
    v_sub_u32 v12, v12, v13
    v_lshlrev_b32 v12, 1, v12
    v_add_u32 v14, -1, v13
    v_mul_u32_u24 v15, 4160, v14
    v_cmp_eq_u32 vcc, 0, v13
    v_mov_b32 v16, {CB[0]}
    s_nop 1
    v_cndmask_b32 v15, v15, v16, vcc
    v_add_u32 v12, v12, v15
    v_add_u32 v12, s30, v12
    v_mul_u32_u24 v13, 80, v10
    v_lshl_add_u32 v13, v11, 4, v13
    v_add_u32 v13, {UOFF}, v13
    v_add_u32 v13, s30, v13
    v_add_u32 v14, {32*80}, v13
    s_waitcnt vmcnt(0) lgkmcnt(0)
    v_lshlrev_b32 v9, 16, v9                 ; D as f32
    """)
    for i in range(2):
        a(f"ds_write_b128 v20, v[{32+4*i}:{35+4*i}] offset:{UOFF + (UZ + 16*i)*80}")
    a(f"""
    s_cmp_lg_u32 s27, 0
    s_cbranch_scc1 conv_nospec
    s_mov_b64 exec, 1
    v_lshlrev_b32 v22, 16, v48               ; K0<<16
    v_alignbit_b32 v23, v49, v48, 16
    ds_write_b32 v3, v22 offset:{CB[1]+60}
    ds_write_b32 v3, v48 offset:{CB[2]+60}
    ds_write_b32 v3, v22 offset:{CB[3]+56}
    ds_write_b32 v3, v23 offset:{CB[3]+60}
    s_mov_b64 exec, -1
    """)
    a.label("conv_nospec")
    for i in range(2):
        d = 48 + 6*i
        a(f"""
        v_alignbit_b32 v72, v{d+1}, v{d}, 16
        v_alignbit_b32 v73, v{d+2}, v{d+1}, 16
        v_alignbit_b32 v74, v{d+3}, v{d+2}, 16
        v_alignbit_b32 v75, v{d+4}, v{d+3}, 16
        v_mov_b32 v76, v73
        v_mov_b32 v77, v74
        v_mov_b32 v78, v75
        v_alignbit_b32 v79, v{d+5}, v{d+4}, 16
        v_mov_b32 v80, v{d+1}
        v_mov_b32 v81, v{d+2}
        v_mov_b32 v82, v{d+3}
        v_mov_b32 v83, v{d+4}
        ds_write_b64 v4, v[{d}:{d+1}] offset:{CB[0] + 64 + 1024*i}
        ds_write_b64 v4, v[{d+2}:{d+3}] offset:{CB[0] + 72 + 1024*i}
        ds_write_b128 v4, v[72:75] offset:{CB[1] + 64 + 1024*i}
        ds_write_b128 v4, v[80:83] offset:{CB[2] + 64 + 1024*i}
        ds_write_b128 v4, v[76:79] offset:{CB[3] + 64 + 1024*i}
        s_waitcnt lgkmcnt(0)
        """)
    a("s_barrier")
    if G2_STAMP: a("s_memtime s[50:51]"); a("s_waitcnt lgkmcnt(0)")
    P = 3
    CA = 16; CB0 = 32; CB1 = 48; C0 = 64; C1 = 80
    def nreads(i): return 4 if i <= 63 else 3
    def boff(o):
        if o % 2 == 0:
            p = o // 2; return (UZ - p)*80
        else:
            p = (o - 1)//2; return (UZ - p - 1)*80 + 32
    def cread(i, sl):
        o = i - 1
        a(f"ds_read_b64 v[{CA+4*sl}:{CA+4*sl+1}], v12 offset:{32*i}")
        a(f"ds_read_b64 v[{CA+4*sl+2}:{CA+4*sl+3}], v12 offset:{32*i+8}")
        if boff(o) >= 0: a(f"ds_read_b128 v[{CB1+4*sl}:{CB1+4*sl+3}], v14 offset:{boff(o)}")
        else: a(f"ds_read_b128 v[{CB1+4*sl}:{CB1+4*sl+3}], v13 offset:{boff(o) + 32*80}")
        if i <= 63:
            a(f"ds_read_b128 v[{CB0+4*sl}:{CB0+4*sl+3}], v13 offset:{boff(o)}")
    a("s_cmp_lg_u32 s27, 0")
    a("s_cbranch_scc1 conv_odd")
    for par in range(2):
        if par == 1: a.label("conv_odd")
        steps = list(range(par, 128, 2))
        for j in range(P): cread(steps[j], j)
        for j, i in enumerate(steps):
            sl = j % P
            younger = sum(nreads(x) for x in steps[j+1:j+P])
            a(f"s_waitcnt lgkmcnt({younger})")
            c1 = f"v[{C1}:{C1+15}]"; c0 = f"v[{C0}:{C0+15}]"
            a(f"v_mfma_f32_32x32x16_bf16 {c1}, v[{CA+4*sl}:{CA+4*sl+3}], v[{CB1+4*sl}:{CB1+4*sl+3}], {c1 if j>0 else '0'}")
            if i <= 63:
                a(f"v_mfma_f32_32x32x16_bf16 {c0}, v[{CA+4*sl}:{CA+4*sl+3}], v[{CB0+4*sl}:{CB0+4*sl+3}], {c0 if j>0 else '0'}")
            if j + P < len(steps): cread(steps[j+P], (j+P) % P)
        a("s_nop 7")
        a("s_nop 7")
        if G2_STAMP: a("s_memtime s[52:53]"); a("s_waitcnt lgkmcnt(0)")
        a("s_barrier")
        if par == 1:
            for q in range(8):
                a(f"ds_write_b128 v3, v[{C0+4*q}:{C0+4*q+3}] offset:{q*1024}")
            a("s_waitcnt lgkmcnt(0)")
            a("s_barrier")
            a("s_endpgm")
        else:
            a("s_barrier")
            for q in range(8):
                a(f"ds_read_b128 v[{16+4*q}:{19+4*q}], v3 offset:{q*1024}")
            for q in range(8):
                a(f"s_waitcnt lgkmcnt({7-q})")
                for e in range(4):
                    a(f"v_add_f32 v{C0+4*q+e}, v{C0+4*q+e}, v{16+4*q+e}")
            a("s_branch conv_epi")
    a.label("conv_epi")
    a(f"""
    v_mul_u32_u24 v15, 80, v10
    v_lshlrev_b32 v16, 3, v11
    v_sub_u32 v16, 8, v16
    v_add_u32 v15, v15, v16
    v_add_u32 v15, {UOFF + UZ*80}, v15
    v_add_u32 v15, s30, v15
    v_lshlrev_b32 v16, 6, v10
    v_lshl_add_u32 v16, v11, 3, v16
    v_add_u32 v17, s30, v16
    v_add_u32 v16, s31, v2
    """)
    for T in range(2):
        for q in range(4):
            r = 100 + 2*(T*4+q)
            a(f"ds_read_b64 v[{r}:{r+1}], v15 offset:{2560*T + 16*q}")
    a("s_nop 7")
    a("s_nop 3")
    a("s_waitcnt lgkmcnt(0)")
    for T in range(2):
        C = C0 if T == 0 else C1
        for q in range(4):
            r = 100 + 2*(T*4+q); c = C + 4*q
            a(f"""
            v_and_b32 v20, 0xffff0000, v{r+1}
            v_lshlrev_b32 v21, 16, v{r+1}
            v_and_b32 v22, 0xffff0000, v{r}
            v_lshlrev_b32 v23, 16, v{r}
            v_mul_f32 v20, v20, v9
            v_mul_f32 v21, v21, v9
            v_mul_f32 v22, v22, v9
            v_mul_f32 v23, v23, v9
            v_cvt_pk_bf16_f32 v24, v20, v21
            v_cvt_pk_bf16_f32 v25, v22, v23
            v_cvt_pk_bf16_f32 v26, v{c}, v{c+1}
            v_cvt_pk_bf16_f32 v27, v{c+2}, v{c+3}
            v_lshlrev_b32 v20, 16, v24
            v_and_b32 v21, 0xffff0000, v24
            v_lshlrev_b32 v22, 16, v25
            v_and_b32 v23, 0xffff0000, v25
            v_lshlrev_b32 v28, 16, v26
            v_and_b32 v29, 0xffff0000, v26
            v_lshlrev_b32 v30, 16, v27
            v_and_b32 v31, 0xffff0000, v27
            v_add_f32 v20, v20, v28
            v_add_f32 v21, v21, v29
            v_add_f32 v22, v22, v30
            v_add_f32 v23, v23, v31
            v_cvt_pk_bf16_f32 v{r}, v20, v21
            v_cvt_pk_bf16_f32 v{r+1}, v22, v23
            ds_write_b64 v17, v[{r}:{r+1}] offset:{2048*T + 16*q}
            """)
    a("s_waitcnt lgkmcnt(0)")
    for i in range(4):
        a(f"ds_read_b128 v[{32+4*i}:{35+4*i}], v3 offset:{1024*i}")
    for i in range(4):
        a(f"s_waitcnt lgkmcnt({3-i})")
        a(f"buffer_store_dwordx4 v[{32+4*i}:{35+4*i}], v16, s[20:23], 0 offen offset:{1024*i}" + (" sc1" if FUSE_FINAL else ""))
    if G2_STAMP:
        a("""
        s_waitcnt vmcnt(0)
        s_memtime s[54:55]
        s_waitcnt lgkmcnt(0)
        s_sub_u32 s54, s54, s48
        s_sub_u32 s50, s50, s48
        s_sub_u32 s52, s52, s48
        v_mov_b32 v20, s54
        v_mov_b32 v21, s50
        v_mov_b32 v22, s52
        v_mov_b32 v23, 0
        s_lshl_b32 s36, s25, 4
        s_add_u32 s36, s36, 0x2FC0000
        v_mov_b32 v24, s36
        s_add_u32 s56, s4, 0
        s_addc_u32 s57, s5, 0
        s_mov_b32 s58, 0x3000000
        s_mov_b32 s59, 0x00020000
        s_mov_b64 exec, 1
        buffer_store_dwordx4 v[20:23], v24, s[56:59], 0 offen
        """)
    if FUSE_FINAL:
        srd(a, 76, 4, 5, 0x3000, WS_FLAG)
        a("""
        s_lshl_b32 s35, s25, 2
        s_add_u32 s35, s35, 0x2000
        v_mov_b32 v30, s35
        v_mov_b32 v31, 1
        s_waitcnt vmcnt(0)
        s_mov_b64 exec, 1
        buffer_store_dword v31, v30, s[76:79], 0 offen sc1
        """)
    a.label("g2_done")
    a("s_endpgm")

def gen_k4(a, G):
    srd = G["srd"]
    WS_XN = G["WS_XN"]; WS_PART = G["WS_PART"]; WS_Y2T = G["WS_Y2T"]
    SZ_ACT = G["SZ_ACT"]; SZ_PART = G["SZ_PART"]
    G["kernel_header"](a, "final_kernel")
    a(f"""
    s_load_dwordx2 s[4:5], s[0:1], 96        ; ws
    s_load_dwordx2 s[6:7], s[0:1], 0         ; q (x)
    s_load_dwordx2 s[8:9], s[0:1], 80        ; out
    s_cmp_ge_u32 s2, 288
    s_cbranch_scc1 k4_done
    s_mov_b32 s34, 0x1c71c71d
    s_mul_hi_u32 s35, s2, s34                ; sgrp = b/9
    s_mul_i32 s36, s35, 9
    s_sub_u32 s36, s2, s36                   ; dgrp
    v_lshrrev_b32 v1, 6, v0
    s_nop 0
    v_readfirstlane_b32 s24, v1              ; wave
    v_and_b32 v1, 63, v0
    s_waitcnt lgkmcnt(0)
    """)
    srd(a, 12, 4, 5, SZ_ACT, WS_Y2T)
    srd(a, 16, 4, 5, SZ_PART, WS_PART)
    srd(a, 20, 4, 5, SZ_ACT, WS_XN)
    srd(a, 40, 6, 7, SZ_ACT)
    srd(a, 44, 8, 9, SZ_ACT)
    a(f"""
    v_lshrrev_b32 v2, 2, v0
    v_and_b32 v3, 3, v0
    s_lshl_b32 s37, s36, 6                   ; 64*dgrp
    v_add_u32 v4, s37, v2
    v_lshlrev_b32 v4, 12, v4
    v_lshl_add_u32 v4, v3, 5, v4
    s_lshl_b32 s38, s35, 7                   ; 128*sgrp
    v_add_u32 v4, s38, v4
    buffer_load_dwordx4 v[8:11], v4, s[12:15], 0 offen
    buffer_load_dwordx4 v[12:15], v4, s[12:15], 0 offen offset:16
    v_mul_u32_u24 v5, 160, v2
    v_lshl_add_u32 v5, v3, 5, v5
    s_lshl_b32 s25, s35, 2
    s_add_u32 s25, s25, s24
    ; partial offset: (stile*36 + 4*dgrp)*1024 + lane*16   (+ks*128*36*1024, +dt*1024)
    s_mul_i32 s26, s25, 36
    s_lshl_b32 s27, s36, 2
    s_add_u32 s26, s26, s27
    s_lshl_b32 s26, s26, {9 if BF16_PART else 10}
    v_lshlrev_b32 v6, {3 if BF16_PART else 4}, v1
    v_add_u32 v6, s26, v6
    v_and_b32 v7, 15, v1
    s_lshl_b32 s27, s25, 4
    v_add_u32 v7, s27, v7
    v_mul_u32_u24 v7, 1152, v7
    v_lshrrev_b32 v16, 4, v1
    v_lshl_add_u32 v7, v16, 3, v7
    s_lshl_b32 s27, s36, 7
    v_add_u32 v7, s27, v7
    ; xn offset: ((stile*18 + 2*dgrp)*64 + lane)*16  (+ (dt>>1)*1024 + (dt&1)*8)
    s_mul_i32 s27, s25, 18
    s_lshl_b32 s28, s36, 1
    s_add_u32 s27, s27, s28
    s_lshl_b32 s27, s27, 10
    v_lshlrev_b32 v17, 4, v1
    v_add_u32 v17, s27, v17
    v_lshrrev_b32 v18, 2, v1
    v_mul_u32_u24 v18, 160, v18
    v_and_b32 v19, 3, v1
    v_lshl_add_u32 v18, v19, 3, v18
    s_lshl_b32 s27, s24, 5
    v_add_u32 v18, s27, v18
    """)
    for dt in range(4):
        for ks in range(4):
            if BF16_PART:
                a(f"s_mov_b32 s27, {ks*128*36*512 + dt*512}")
                a(f"buffer_load_dwordx2 v[{24+16*dt+4*ks}:{25+16*dt+4*ks}], v6, s[16:19], s27 offen")
            else:
                a(f"s_mov_b32 s27, {ks*128*36*1024 + dt*1024}")
                a(f"buffer_load_dwordx4 v[{24+16*dt+4*ks}:{27+16*dt+4*ks}], v6, s[16:19], s27 offen")
        a(f"buffer_load_dwordx2 v[{88+4*dt}:{89+4*dt}], v7, s[40:43], 0 offen offset:{dt*32}")
        a(f"buffer_load_dwordx2 v[{90+4*dt}:{91+4*dt}], v17, s[20:23], 0 offen offset:{(dt>>1)*1024 + (dt&1)*8}")
    a("""
    s_waitcnt vmcnt(24)
    ds_write_b128 v5, v[8:11]
    ds_write_b128 v5, v[12:15] offset:16
    s_waitcnt lgkmcnt(0)
    s_barrier
    """)
    for dt in range(4):
        a(f"ds_read_b64_tr_b16 v[{104+2*dt}:{105+2*dt}], v18 offset:{dt*2560}")
    for dt in range(4):
        P = 24 + 16*dt; X = 88 + 4*dt; XN = 90 + 4*dt; Y = 104 + 2*dt
        a(f"s_waitcnt vmcnt({18 - 6*dt}) lgkmcnt({3-dt})")
        if BF16_PART:
            for ks in range(4):
                q = P + 4*ks
                a(f"v_and_b32 v{q+3}, 0xffff0000, v{q+1}")
                a(f"v_lshlrev_b32 v{q+2}, 16, v{q+1}")
                a(f"v_and_b32 v{q+1}, 0xffff0000, v{q}")
                a(f"v_lshlrev_b32 v{q}, 16, v{q}")
        for i in range(4):
            a(f"v_add_f32 v{P+i}, v{P+i}, v{P+4+i}")
            a(f"v_add_f32 v{P+8+i}, v{P+8+i}, v{P+12+i}")
            a(f"v_add_f32 v{P+i}, v{P+i}, v{P+8+i}")
        a(f"""
        v_cvt_pk_bf16_f32 v112, v{P}, v{P+1}
        v_cvt_pk_bf16_f32 v113, v{P+2}, v{P+3}
        v_lshlrev_b32 v116, 16, v{XN}
        v_and_b32 v117, 0xffff0000, v{XN}
        v_lshlrev_b32 v118, 16, v{XN+1}
        v_and_b32 v119, 0xffff0000, v{XN+1}
        v_lshlrev_b32 v120, 16, v{Y}
        v_and_b32 v121, 0xffff0000, v{Y}
        v_lshlrev_b32 v122, 16, v{Y+1}
        v_and_b32 v123, 0xffff0000, v{Y+1}
        v_mul_f32 v116, v116, v120
        v_mul_f32 v117, v117, v121
        v_mul_f32 v118, v118, v122
        v_mul_f32 v119, v119, v123
        v_cvt_pk_bf16_f32 v114, v116, v117
        v_cvt_pk_bf16_f32 v115, v118, v119
        v_lshlrev_b32 v116, 16, v{X}
        v_and_b32 v117, 0xffff0000, v{X}
        v_lshlrev_b32 v118, 16, v{X+1}
        v_and_b32 v119, 0xffff0000, v{X+1}
        v_lshlrev_b32 v120, 16, v114
        v_and_b32 v121, 0xffff0000, v114
        v_lshlrev_b32 v122, 16, v115
        v_and_b32 v123, 0xffff0000, v115
        v_add_f32 v116, v116, v120
        v_add_f32 v117, v117, v121
        v_add_f32 v118, v118, v122
        v_add_f32 v119, v119, v123
        v_cvt_pk_bf16_f32 v114, v116, v117
        v_cvt_pk_bf16_f32 v115, v118, v119
        v_lshlrev_b32 v116, 16, v114
        v_and_b32 v117, 0xffff0000, v114
        v_lshlrev_b32 v118, 16, v115
        v_and_b32 v119, 0xffff0000, v115
        v_lshlrev_b32 v120, 16, v112
        v_and_b32 v121, 0xffff0000, v112
        v_lshlrev_b32 v122, 16, v113
        v_and_b32 v123, 0xffff0000, v113
        v_add_f32 v116, v116, v120
        v_add_f32 v117, v117, v121
        v_add_f32 v118, v118, v122
        v_add_f32 v119, v119, v123
        v_cvt_pk_bf16_f32 v{P}, v116, v117
        v_cvt_pk_bf16_f32 v{P+1}, v118, v119
        """)
    for dt in range(4):
        P = 24 + 16*dt
        a(f"buffer_store_dwordx2 v[{P}:{P+1}], v7, s[44:47], 0 offen offset:{dt*32}")
    a.label("k4_done")
    a("s_endpgm")
```

```python
import os
G2_STAMP = os.environ.get('G2_STAMP')
FUSE_FINAL = bool(os.environ.get('FUSE_FINAL'))
BF16_PART = bool(os.environ.get('BF16_PART'))
G2_STG = 18432
WS_FLAG = 0x2B00000
CONV_REG = 24512
CONV_PER_WG = int(os.environ.get("CPW", "3"))
K3_LDS = 73728
N_CONV = 576 // CONV_PER_WG
def add(a, launches, kds, G):
    gen_k3(a, G); launches.append(("gemm2_kernel", 256 + N_CONV, 512, K3_LDS)); kds.append(G["kd"]("gemm2_kernel", 128, 96))
    if not FUSE_FINAL:
        gen_k4(a, G); launches.append(("final_kernel", 288, 256, 19456)); kds.append(G["kd"]("final_kernel", 128, 64))

def gen_k3(a, G):
    srd = G["srd"]
    WS_H = G["WS_H"]; WS_PART = G["WS_PART"]; WS_KVT = G["WS_KVT"]; WS_Y2T = G["WS_Y2T"]
    SZ_ACT = G["SZ_ACT"]; SZ_H = G["SZ_H"]; SZ_W = G["SZ_W"]; SZ_PART = G["SZ_PART"]
    G["kernel_header"](a, "gemm2_kernel")
    STG = G2_STG
    NST = 18
    a(f"""
    s_load_dwordx2 s[4:5], s[0:1], 96        ; ws
    s_load_dwordx2 s[6:7], s[0:1], 72        ; w_down
    s_load_dwordx2 s[8:9], s[0:1], 32        ; ssm_k
    s_load_dwordx2 s[10:11], s[0:1], 40      ; ssm_D
    s_load_dwordx2 s[60:61], s[0:1], 0       ; x
    s_load_dwordx2 s[62:63], s[0:1], 80      ; out
    s_load_dwordx2 s[64:65], s[0:1], 88
    s_cmp_ge_u32 s2, {256+N_CONV}
    s_cbranch_scc1 g2_done
    s_memtime s[48:49]
    v_lshrrev_b32 v1, 6, v0
    s_nop 0
    v_readfirstlane_b32 s24, v1              ; wave
    v_and_b32 v1, 63, v0                     ; lane
    s_waitcnt lgkmcnt(0)
    s_cmp_ge_u32 s2, 256
    s_cbranch_scc1 conv_start
    s_and_b32 s25, s24, 3                    ; mw
    s_lshr_b32 s26, s24, 2                   ; kg
    s_and_b32 s29, s2, 7                     ; xcd
    s_and_b32 s38, s29, 3                    ; ks
    s_lshr_b32 s29, s29, 2                   ; mhalf
    s_lshr_b32 s27, s2, 3                    ; idx
    s_and_b32 s28, s27, 3                    ; nblk
    s_lshr_b32 s27, s27, 2
    s_lshl_b32 s29, s29, 3
    s_add_u32 s27, s27, s29                  ; mblk (0..15)
    """)
    srd(a, 12, 4, 5, SZ_H, WS_H)
    srd(a, 16, 6, 7, SZ_W)
    srd(a, 20, 4, 5, SZ_PART, WS_PART)
    a(f"""
    ; A (h) offsets: (st*144 + ks*36 + kg)*1024 + lane*16
    s_lshl_b32 s32, s27, 3
    s_lshl_b32 s33, s25, 1
    s_add_u32 s32, s32, s33
    s_mul_i32 s33, s32, {144*1024}
    s_mul_i32 s34, s38, {36*1024}
    s_add_u32 s33, s33, s34
    s_lshl_b32 s34, s26, 10
    s_add_u32 s33, s33, s34
    v_lshlrev_b32 v2, 4, v1
    v_add_u32 v2, s33, v2
    v_add_u32 v3, {144*1024}, v2
    s_mul_i32 s33, s38, 1152
    s_lshl_b32 s34, s24, 3
    s_add_u32 s33, s33, s34
    s_mul_i32 s33, s33, 1152
    s_mul_i32 s34, s28, 288
    s_add_u32 s33, s33, s34
    """)
    for i in range(3):
        a(f"""
        v_add_u32 v20, {64*i}, v1
        v_mul_u32_u24 v21, 3641, v20
        v_lshrrev_b32 v21, 16, v21
        v_mul_u32_u24 v22, 18, v21
        v_sub_u32 v22, v20, v22
        v_mul_u32_u24 v21, 1152, v21
        v_lshl_add_u32 v21, v22, 4, v21
        v_add_u32 v{4+i}, s33, v21
        """)
    a(f"""
    s_mul_i32 s31, s24, 2304
    v_lshrrev_b32 v8, 2, v1
    v_mul_u32_u24 v8, 288, v8
    v_and_b32 v9, 3, v1
    v_lshl_add_u32 v8, v9, 3, v8
    s_mul_i32 s34, s26, 9216
    v_add_u32 v8, s34, v8                    ; vB[0]
    """)
    for b in range(1, 4):
        a(f"v_add_u32 v{8+b}, {b*STG}, v8")
    a(f"""
    """)
    NA = 4
    AS = [12, 20, 28, 36]
    RB = 3
    BR = 44
    ACC = 56
    def acc(mt, dt): return ACC + 4*(mt*9 + dt)
    def dma_piece(t, i):
        b = t % 4
        if i == 0:
            a(f"s_mov_b32 s37, {t*64*1152}")
            a(f"s_add_u32 m0, s31, {b*STG}")
            a("s_nop 0")
            a("buffer_load_dwordx4 v4, s[16:19], s37 offen lds")
        elif i == 1:
            a(f"s_add_u32 m0, s31, {b*STG + 1024}")
            a("s_nop 0")
            a("buffer_load_dwordx4 v5, s[16:19], s37 offen lds")
        else:
            a(f"s_add_u32 m0, s31, {b*STG + 2048}")
            a("s_mov_b64 exec, 0xffff")
            a("buffer_load_dwordx4 v6, s[16:19], s37 offen lds")
            a("s_mov_b64 exec, -1")
    def dma(t):
        for i in range(3): dma_piece(t, i)
    def loadA_piece(t, i):
        r = AS[t % NA]
        if i == 0:
            a(f"s_mov_b32 s36, {t*2048}")
            a(f"buffer_load_dwordx4 v[{r}:{r+3}], v2, s[12:15], s36 offen")
        else:
            a(f"buffer_load_dwordx4 v[{r+4}:{r+7}], v3, s[12:15], s36 offen")
    def loadA(t):
        loadA_piece(t, 0); loadA_piece(t, 1)
    def readB(n):
        t = n // 9; dt = n % 9; b = t % 4; r = BR + 4*(n % RB)
        a(f"ds_read_b64_tr_b16 v[{r}:{r+1}], v{8+b} offset:{dt*32}")
        a(f"ds_read_b64_tr_b16 v[{r+2}:{r+3}], v{8+b} offset:{4608 + dt*32}")
    loadA(0); dma(0); loadA(1); dma(1); loadA(2); dma(2)
    a("s_waitcnt vmcnt(10)")
    a("s_barrier")
    if G2_STAMP: a("s_memtime s[50:51]"); a("s_waitcnt lgkmcnt(0)")
    for n in range(RB): readB(n)
    NT = 9*NST
    for t in range(NST):
        def cnt(lo):
            return sum(5 for x in range(lo, t+3) if x <= NST-1)
        if t <= 2:
            nA = 3 + cnt(t+1) if t < 3 else 0
            a(f"s_waitcnt vmcnt({min(nA, 63)})")
        else:
            a(f"s_waitcnt vmcnt({cnt(t+1)})")
        for dt in range(9):
            n = 9*t + dt
            younger = min(RB-1, NT-1-n)
            a(f"s_waitcnt lgkmcnt({2*younger})")
            br = BR + 4*(n % RB)
            for mt in range(2):
                c = f"v[{acc(mt,dt)}:{acc(mt,dt)+3}]"
                src_c = c if t > 0 else "0"
                ar = AS[t % NA] + 4*mt
                a(f"v_mfma_f32_16x16x32_bf16 {c}, v[{br}:{br+3}], v[{ar}:{ar+3}], {src_c}")
            if dt == 1 and t < NST-1:
                if t + 1 <= 2: nD = cnt(t+2)
                else: nD = 2 + cnt(t+2)
                a(f"s_waitcnt vmcnt({nD})")
                a("s_barrier")
            if n + RB < NT: readB(n + RB)
            if t + 3 < NST:
                if 2 <= dt <= 4: dma_piece(t+3, dt-2)
                if 5 <= dt <= 6: loadA_piece(t+3, dt-5)
    a(("""
    v_and_b32 v1, 63, v0
    ; partial store offset: ((ks*128 + st0 + kg)*36 + nblk*9)*1024 + lane*16   (keep mt = kg)
    s_lshl_b32 s34, s38, 7
    s_add_u32 s34, s34, s32
    s_add_u32 s34, s34, s26
    s_mul_i32 s34, s34, 36
    s_mul_i32 s35, s28, 9
    s_add_u32 s34, s34, s35
    s_lshl_b32 s34, s34, PSH
    v_lshlrev_b32 v12, PLS, v1
    v_add_u32 v12, s34, v12
    s_mul_i32 s34, s24, 9216
    v_lshlrev_b32 v13, 4, v1
    v_add_u32 v13, s34, v13                  ; own exchange region
    s_xor_b32 s35, s24, 4
    s_mul_i32 s35, s35, 9216
    v_lshlrev_b32 v14, 4, v1
    v_add_u32 v14, s35, v14                  ; partner region
    """).replace("PSH", "9" if BF16_PART else "10").replace("PLS", "3" if BF16_PART else "4"))
    a("s_nop 7")
    if G2_STAMP: a("s_memtime s[52:53]"); a("s_waitcnt lgkmcnt(0)")
    a("s_barrier")
    a("s_cmp_eq_u32 s26, 0")
    a("s_cbranch_scc0 g2_ep1")
    FREG = 0
    YREG = 18432
    for kg in range(2):
        if kg == 1: a.label("g2_ep1")
        send = 1 - kg; keep = kg
        for dt in range(9):
            c = acc(send, dt)
            a(f"ds_write_b128 v13, v[{c}:{c+3}] offset:{dt*1024}")
        a("s_waitcnt lgkmcnt(0)")
        a("s_barrier")
        for dt in range(9):
            c = acc(send, dt)
            a(f"ds_read_b128 v[{c}:{c+3}], v14 offset:{dt*1024}")
        for dt in range(9):
            c = acc(send, dt); k = acc(keep, dt)
            a(f"s_waitcnt lgkmcnt({8-dt})")
            for i in range(4):
                a(f"v_add_f32 v{k+i}, v{k+i}, v{c+i}")
            if not FUSE_FINAL and not BF16_PART:
                a(f"s_mov_b32 s36, {dt*1024}")
                a(f"buffer_store_dwordx4 v[{k}:{k+3}], v12, s[20:23], s36 offen sc1")
            if not FUSE_FINAL and BF16_PART:
                a(f"v_cvt_pk_bf16_f32 v{k}, v{k}, v{k+1}")
                a(f"v_cvt_pk_bf16_f32 v{k+1}, v{k+2}, v{k+3}")
                a(f"s_mov_b32 s36, {dt*512}")
                a(f"buffer_store_dwordx2 v[{k}:{k+1}], v12, s[20:23], s36 offen sc1")
        if not FUSE_FINAL:
            if G2_STAMP:
                a("""
                s_waitcnt vmcnt(0)
                s_memtime s[54:55]
                s_waitcnt lgkmcnt(0)
                s_sub_u32 s50, s50, s48
                s_sub_u32 s52, s52, s48
                s_sub_u32 s54, s54, s48
                v_mov_b32 v20, s50
                v_mov_b32 v21, s52
                v_mov_b32 v22, s54
                v_mov_b32 v23, 0
                s_lshl_b32 s36, s2, 3
                s_add_u32 s36, s36, s24
                s_lshl_b32 s36, s36, 4
                s_add_u32 s36, s36, 0x2F80000
                v_mov_b32 v24, s36
                s_add_u32 s56, s4, 0
                s_addc_u32 s57, s5, 0
                s_mov_b32 s58, 0x3000000
                s_mov_b32 s59, 0x00020000
                s_mov_b64 exec, 1
                buffer_store_dwordx4 v[20:23], v24, s[56:59], 0 offen
                """)
            a("s_endpgm")
            continue
        a("s_barrier")
        a("s_cmp_eq_u32 s25, s38")
        a(f"s_cbranch_scc1 g2_own{kg}")
        for dt in range(9):
            k = acc(keep, dt)
            a(f"s_mov_b32 s36, {dt*1024}")
            a(f"buffer_store_dwordx4 v[{k}:{k+3}], v12, s[20:23], s36 offen sc1")
        a("s_branch g2_fin")
        a.label(f"g2_own{kg}")
        a("v_lshlrev_b32 v15, 4, v1")
        for dt in range(9):
            k = acc(keep, dt)
            a(f"ds_write_b128 v15, v[{k}:{k+3}] offset:{FREG + (kg*9+dt)*1024}")
        if kg == 0: a("s_branch g2_fin")
    if FUSE_FINAL:
        a.label("g2_fin")
        srd(a, 40, 60, 61, SZ_ACT)
        srd(a, 44, 62, 63, SZ_ACT)
        srd(a, 68, 4, 5, SZ_ACT, G["WS_XN"])
        srd(a, 72, 4, 5, SZ_ACT, WS_Y2T)
        srd(a, 76, 4, 5, 0x3000, WS_FLAG)
        a(f"""
        ; quarter rows: stile base sq = mblk*8 + 2*ks ; wave w handles q = 3w..3w+2 (w<6): sr = q/9, dt = q%9
        s_lshl_b32 s32, s27, 3
        s_lshl_b32 s33, s38, 1
        s_add_u32 s32, s32, s33                  ; sq
        s_mul_i32 s33, s24, 3                    ; q0 = 3w
        s_cmp_ge_u32 s33, 9
        s_cselect_b32 s34, 1, 0                  ; sr
        s_mul_i32 s35, s34, 9
        s_sub_u32 s35, s33, s35                  ; dt0 (0,3,6)
        s_add_u32 s39, s32, s34
        s_mul_i32 s66, s28, 9
        s_add_u32 s66, s66, s35
        v_and_b32 v20, 15, v1
        s_lshl_b32 s36, s39, 4
        v_add_u32 v20, s36, v20
        v_mul_u32_u24 v20, 1152, v20
        v_lshrrev_b32 v21, 4, v1
        v_lshl_add_u32 v20, v21, 3, v20
        s_lshl_b32 s36, s66, 5
        v_add_u32 v20, s36, v20
        ; partial offset (split 0): (stile*36 + dtile_g0)*1024 + lane*16
        s_mul_i32 s36, s39, 36
        s_add_u32 s36, s36, s66
        s_lshl_b32 s36, s36, 10
        v_lshlrev_b32 v21, 4, v1
        v_add_u32 v21, s36, v21                  ; v21
        ; own tile LDS addr: FREG + q0*1024 + lane*16
        s_lshl_b32 s36, s33, 10
        v_lshlrev_b32 v22, 4, v1
        v_add_u32 v22, s36, v22                  ; v22
        v_lshrrev_b32 v23, 1, v0
        v_and_b32 v24, 1, v0
        s_mul_i32 s36, s28, 144
        v_add_u32 v25, s36, v23
        v_lshlrev_b32 v25, 12, v25
        v_lshl_add_u32 v25, v24, 5, v25
        s_lshl_b32 s36, s32, 5
        v_add_u32 v25, s36, v25                  ; v25 global
        v_mul_u32_u24 v26, 96, v23
        v_lshl_add_u32 v26, v24, 5, v26
        v_add_u32 v26, {YREG}, v26
        v_lshrrev_b32 v27, 2, v1
        s_lshl_b32 s36, s35, 4
        v_add_u32 v27, s36, v27
        v_mul_u32_u24 v27, 96, v27
        v_and_b32 v28, 3, v1
        v_lshl_add_u32 v27, v28, 3, v27
        s_lshl_b32 s36, s34, 5
        s_add_u32 s36, s36, {YREG}
        v_add_u32 v27, s36, v27                  ; v27
        s_waitcnt vmcnt(0) lgkmcnt(0)
        s_barrier                                ; B3
        s_cmp_lg_u32 s24, 0
        s_cbranch_scc1 g2_nopoll
        s_lshl_b32 s36, s27, 2
        s_add_u32 s36, s36, s28
        s_lshl_b32 s36, s36, 6                   ; *64 B
        v_mov_b32 v31, s36
        s_lshl_b32 s37, s38, 2
        s_add_u32 s37, s37, s36
        v_mov_b32 v32, s37
        v_mov_b32 v33, 1
        s_mov_b64 exec, 1
        buffer_store_dword v33, v32, s[76:79], 0 offen sc1
        s_mov_b32 s36, 0xffffffff
        s_mov_b32 s37, 0xf
        s_mov_b64 exec, s[36:37]                 ; 36 lanes
        s_mul_i32 s36, s28, 576
        s_add_u32 s36, s36, 0x2000
        v_lshlrev_b32 v30, 4, v1
        v_add_u32 v30, s36, v30
        s_mov_b32 s67, 0
        """)
        a.label("g2_poll")
        a(f"""
        buffer_load_dwordx4 v[48:51], v30, s[76:79], 0 offen sc1
        buffer_load_dwordx4 v[52:55], v31, s[76:79], 0 offen sc1
        s_waitcnt vmcnt(0)
        v_min_u32 v48, v48, v49
        v_min_u32 v50, v50, v51
        v_min_u32 v52, v52, v53
        v_min_u32 v54, v54, v55
        v_min_u32 v48, v48, v50
        v_min_u32 v52, v52, v54
        v_min_u32 v48, v48, v52
        v_cmp_eq_u32 vcc, 0, v48
        s_add_u32 s67, s67, 1
        s_cmp_ge_u32 s67, 0x400000
        s_cbranch_scc1 g2_polldone
        s_cmp_eq_u64 vcc, 0
        s_cbranch_scc1 g2_polldone
        s_sleep 2
        s_branch g2_poll
        """)
        a.label("g2_polldone")
        a("s_mov_b64 exec, -1")
        a.label("g2_nopoll")
        a("""
        s_mul_i32 s36, s39, 18
        s_lshl_b32 s36, s36, 10
        v_lshlrev_b32 v29, 4, v1
        v_add_u32 v29, s36, v29
        """)
        for j in range(3):
            a(f"""
            s_add_u32 s36, s66, {j}
            s_lshr_b32 s37, s36, 1
            s_lshl_b32 s37, s37, 10
            s_and_b32 s36, s36, 1
            s_lshl_b32 s36, s36, 3
            s_add_u32 s36, s36, s37
            buffer_load_dwordx2 v[{36+4*j}:{37+4*j}], v20, s[40:43], 0 offen offset:{32*j}
            buffer_load_dwordx2 v[{38+4*j}:{39+4*j}], v29, s[68:71], s36 offen
            """)
        a("""
        s_barrier                                ; B4
        v_cmp_gt_u32 vcc, 288, v0
        s_and_saveexec_b64 s[82:83], vcc
        s_cbranch_execz g2_noy
        buffer_load_dwordx4 v[48:51], v25, s[72:75], 0 offen sc1
        buffer_load_dwordx4 v[52:55], v25, s[72:75], 0 offen offset:16 sc1
        s_waitcnt vmcnt(0)
        ds_write_b128 v26, v[48:51]
        ds_write_b128 v26, v[52:55] offset:16
        """)
        a.label("g2_noy")
        a("s_mov_b64 exec, s[82:83]")
        a("s_cmp_ge_u32 s24, 6")
        a("s_cbranch_scc1 g2_skipld")
        for i in range(1, 4):
            a(f"""
            s_add_u32 s36, s38, {i}
            s_and_b32 s36, s36, 3
            s_mul_i32 s36, s36, {128*36*1024}
            """)
            for j in range(3):
                r = 56 + 12*(i-1) + 4*j
                a(f"buffer_load_dwordx4 v[{r}:{r+3}], v21, s[20:23], s36 offen offset:{1024*j} sc1")
        for j in range(3):
            a(f"ds_read_b128 v[{92+4*j}:{95+4*j}], v22 offset:{1024*j}")
        a.label("g2_skipld")
        a("s_waitcnt lgkmcnt(0)")
        a("s_barrier                                ; B5")
        a("s_cmp_ge_u32 s24, 6")
        a("s_cbranch_scc1 g2_done")
        for j in range(3):
            a(f"ds_read_b64_tr_b16 v[{104+2*j}:{105+2*j}], v27 offset:{16*96*j}")
        a("s_waitcnt vmcnt(0) lgkmcnt(0)")
        for j in range(3):
            P = 92 + 4*j; X = 36 + 4*j; XN = 38 + 4*j; Y = 104 + 2*j
            for i in range(3):
                o = 56 + 12*i + 4*j
                for e in range(4):
                    a(f"v_add_f32 v{P+e}, v{P+e}, v{o+e}")
            a(f"""
            v_cvt_pk_bf16_f32 v112, v{P}, v{P+1}
            v_cvt_pk_bf16_f32 v113, v{P+2}, v{P+3}
            v_lshlrev_b32 v116, 16, v{XN}
            v_and_b32 v117, 0xffff0000, v{XN}
            v_lshlrev_b32 v118, 16, v{XN+1}
            v_and_b32 v119, 0xffff0000, v{XN+1}
            v_lshlrev_b32 v120, 16, v{Y}
            v_and_b32 v121, 0xffff0000, v{Y}
            v_lshlrev_b32 v122, 16, v{Y+1}
            v_and_b32 v123, 0xffff0000, v{Y+1}
            v_mul_f32 v116, v116, v120
            v_mul_f32 v117, v117, v121
            v_mul_f32 v118, v118, v122
            v_mul_f32 v119, v119, v123
            v_cvt_pk_bf16_f32 v114, v116, v117
            v_cvt_pk_bf16_f32 v115, v118, v119
            v_lshlrev_b32 v116, 16, v{X}
            v_and_b32 v117, 0xffff0000, v{X}
            v_lshlrev_b32 v118, 16, v{X+1}
            v_and_b32 v119, 0xffff0000, v{X+1}
            v_lshlrev_b32 v120, 16, v114
            v_and_b32 v121, 0xffff0000, v114
            v_lshlrev_b32 v122, 16, v115
            v_and_b32 v123, 0xffff0000, v115
            v_add_f32 v116, v116, v120
            v_add_f32 v117, v117, v121
            v_add_f32 v118, v118, v122
            v_add_f32 v119, v119, v123
            v_cvt_pk_bf16_f32 v114, v116, v117
            v_cvt_pk_bf16_f32 v115, v118, v119
            v_lshlrev_b32 v116, 16, v114
            v_and_b32 v117, 0xffff0000, v114
            v_lshlrev_b32 v118, 16, v115
            v_and_b32 v119, 0xffff0000, v115
            v_lshlrev_b32 v120, 16, v112
            v_and_b32 v121, 0xffff0000, v112
            v_lshlrev_b32 v122, 16, v113
            v_and_b32 v123, 0xffff0000, v113
            v_add_f32 v116, v116, v120
            v_add_f32 v117, v117, v121
            v_add_f32 v118, v118, v122
            v_add_f32 v119, v119, v123
            v_cvt_pk_bf16_f32 v{P}, v116, v117
            v_cvt_pk_bf16_f32 v{P+1}, v118, v119
            buffer_store_dwordx2 v[{P}:{P+1}], v20, s[44:47], 0 offen offset:{32*j}
            """)
        a("s_endpgm")

    CB = [12728, 0, 4160, 8320]
    UOFF = 16896
    UZ = 31
    CREG = CONV_REG
    a.label("conv_start")
    a(f"s_cmp_ge_u32 s24, {2*CONV_PER_WG}")
    a("s_cbranch_scc1 g2_done")
    srd(a, 12, 4, 5, SZ_ACT, WS_KVT)
    srd(a, 16, 8, 9, SZ_ACT)
    srd(a, 20, 4, 5, SZ_ACT, WS_Y2T)
    srd(a, 40, 10, 11, 576*2)
    a(f"""
    s_lshr_b32 s26, s24, 1
    s_and_b32 s27, s24, 1                    ; parity
    s_sub_u32 s25, s2, 256
    s_mul_i32 s25, s25, {CONV_PER_WG}
    s_add_u32 s25, s25, s26                  ; channel d
    s_mul_i32 s30, s26, {CREG}
    s_lshl_b32 s31, s25, 12                  ; d*4096
    s_lshl_b32 s28, s27, 11
    v_lshlrev_b32 v2, 4, v1                  ; lane*16
    v_add_u32 v3, s30, v2
    v_add_u32 v4, s28, v3
    s_lshl_b32 s32, s25, 1
    v_mov_b32 v8, s32
    buffer_load_ushort v9, v8, s[40:43], 0 offen
    s_add_u32 s34, s31, s28
    """)
    for i in range(2):
        a(f"s_add_u32 s33, s34, {i*1024}")
        a(f"buffer_load_dwordx4 v[{32+4*i}:{35+4*i}], v2, s[12:15], s33 offen")
        a(f"buffer_load_dwordx4 v[{48+6*i}:{51+6*i}], v2, s[16:19], s33 offen")
        a(f"buffer_load_dwordx2 v[{52+6*i}:{53+6*i}], v2, s[16:19], s33 offen offset:16")
    a(f"""
    v_mov_b32 v60, 0
    v_mov_b32 v61, 0
    v_mov_b32 v62, 0
    v_mov_b32 v63, 0
    s_cmp_lg_u32 s27, 0
    s_cbranch_scc1 conv_nozero
    ds_write_b128 v3, v[60:63] offset:{UOFF}
    ds_write_b128 v3, v[60:63] offset:{UOFF+1024}
    ds_write_b128 v3, v[60:63] offset:{UOFF+2048}
    s_mov_b64 exec, 0xf
    ds_write_b128 v3, v[60:63] offset:{CB[1]}
    ds_write_b128 v3, v[60:63] offset:{CB[2]}
    ds_write_b128 v3, v[60:63] offset:{CB[3]}
    ds_write_b64 v3, v[60:61] offset:{CB[0]}
    ds_write_b64 v3, v[60:61] offset:{CB[0]+8}
    s_mov_b64 exec, -1
    """)
    a.label("conv_nozero")
    a(f"""
    v_lshrrev_b32 v20, 2, v1
    v_mul_u32_u24 v20, 80, v20
    v_and_b32 v21, 3, v1
    v_lshl_add_u32 v20, v21, 4, v20
    v_add_u32 v20, s30, v20
    s_mul_i32 s33, s27, {32*80}
    v_add_u32 v20, s33, v20
    v_and_b32 v10, 31, v1                    ; r / n
    v_lshrrev_b32 v11, 5, v1                 ; kh
    v_lshlrev_b32 v12, 3, v11
    v_sub_u32 v12, v10, v12
    v_add_u32 v12, 9, v12
    v_and_b32 v13, 3, v12                    ; t
    v_sub_u32 v12, v12, v13
    v_lshlrev_b32 v12, 1, v12
    v_add_u32 v14, -1, v13
    v_mul_u32_u24 v15, 4160, v14
    v_cmp_eq_u32 vcc, 0, v13
    v_mov_b32 v16, {CB[0]}
    s_nop 1
    v_cndmask_b32 v15, v15, v16, vcc
    v_add_u32 v12, v12, v15
    v_add_u32 v12, s30, v12
    v_mul_u32_u24 v13, 80, v10
    v_lshl_add_u32 v13, v11, 4, v13
    v_add_u32 v13, {UOFF}, v13
    v_add_u32 v13, s30, v13
    v_add_u32 v14, {32*80}, v13
    s_waitcnt vmcnt(0) lgkmcnt(0)
    v_lshlrev_b32 v9, 16, v9                 ; D as f32
    """)
    for i in range(2):
        a(f"ds_write_b128 v20, v[{32+4*i}:{35+4*i}] offset:{UOFF + (UZ + 16*i)*80}")
    a(f"""
    s_cmp_lg_u32 s27, 0
    s_cbranch_scc1 conv_nospec
    s_mov_b64 exec, 1
    v_lshlrev_b32 v22, 16, v48               ; K0<<16
    v_alignbit_b32 v23, v49, v48, 16
    ds_write_b32 v3, v22 offset:{CB[1]+60}
    ds_write_b32 v3, v48 offset:{CB[2]+60}
    ds_write_b32 v3, v22 offset:{CB[3]+56}
    ds_write_b32 v3, v23 offset:{CB[3]+60}
    s_mov_b64 exec, -1
    """)
    a.label("conv_nospec")
    for i in range(2):
        d = 48 + 6*i
        a(f"""
        v_alignbit_b32 v72, v{d+1}, v{d}, 16
        v_alignbit_b32 v73, v{d+2}, v{d+1}, 16
        v_alignbit_b32 v74, v{d+3}, v{d+2}, 16
        v_alignbit_b32 v75, v{d+4}, v{d+3}, 16
        v_mov_b32 v76, v73
        v_mov_b32 v77, v74
        v_mov_b32 v78, v75
        v_alignbit_b32 v79, v{d+5}, v{d+4}, 16
        v_mov_b32 v80, v{d+1}
        v_mov_b32 v81, v{d+2}
        v_mov_b32 v82, v{d+3}
        v_mov_b32 v83, v{d+4}
        ds_write_b64 v4, v[{d}:{d+1}] offset:{CB[0] + 64 + 1024*i}
        ds_write_b64 v4, v[{d+2}:{d+3}] offset:{CB[0] + 72 + 1024*i}
        ds_write_b128 v4, v[72:75] offset:{CB[1] + 64 + 1024*i}
        ds_write_b128 v4, v[80:83] offset:{CB[2] + 64 + 1024*i}
        ds_write_b128 v4, v[76:79] offset:{CB[3] + 64 + 1024*i}
        s_waitcnt lgkmcnt(0)
        """)
    a("s_barrier")
    if G2_STAMP: a("s_memtime s[50:51]"); a("s_waitcnt lgkmcnt(0)")
    P = 3
    CA = 16; CB0 = 32; CB1 = 48; C0 = 64; C1 = 80
    def nreads(i): return 4 if i <= 63 else 3
    def boff(o):
        if o % 2 == 0:
            p = o // 2; return (UZ - p)*80
        else:
            p = (o - 1)//2; return (UZ - p - 1)*80 + 32
    def cread(i, sl):
        o = i - 1
        a(f"ds_read_b64 v[{CA+4*sl}:{CA+4*sl+1}], v12 offset:{32*i}")
        a(f"ds_read_b64 v[{CA+4*sl+2}:{CA+4*sl+3}], v12 offset:{32*i+8}")
        if boff(o) >= 0: a(f"ds_read_b128 v[{CB1+4*sl}:{CB1+4*sl+3}], v14 offset:{boff(o)}")
        else: a(f"ds_read_b128 v[{CB1+4*sl}:{CB1+4*sl+3}], v13 offset:{boff(o) + 32*80}")
        if i <= 63:
            a(f"ds_read_b128 v[{CB0+4*sl}:{CB0+4*sl+3}], v13 offset:{boff(o)}")
    a("s_cmp_lg_u32 s27, 0")
    a("s_cbranch_scc1 conv_odd")
    for par in range(2):
        if par == 1: a.label("conv_odd")
        steps = list(range(par, 128, 2))
        for j in range(P): cread(steps[j], j)
        for j, i in enumerate(steps):
            sl = j % P
            younger = sum(nreads(x) for x in steps[j+1:j+P])
            a(f"s_waitcnt lgkmcnt({younger})")
            c1 = f"v[{C1}:{C1+15}]"; c0 = f"v[{C0}:{C0+15}]"
            a(f"v_mfma_f32_32x32x16_bf16 {c1}, v[{CA+4*sl}:{CA+4*sl+3}], v[{CB1+4*sl}:{CB1+4*sl+3}], {c1 if j>0 else '0'}")
            if i <= 63:
                a(f"v_mfma_f32_32x32x16_bf16 {c0}, v[{CA+4*sl}:{CA+4*sl+3}], v[{CB0+4*sl}:{CB0+4*sl+3}], {c0 if j>0 else '0'}")
            if j + P < len(steps): cread(steps[j+P], (j+P) % P)
        a("s_nop 7")
        a("s_nop 7")
        if G2_STAMP: a("s_memtime s[52:53]"); a("s_waitcnt lgkmcnt(0)")
        a("s_barrier")
        if par == 1:
            for q in range(8):
                a(f"ds_write_b128 v3, v[{C0+4*q}:{C0+4*q+3}] offset:{q*1024}")
            a("s_waitcnt lgkmcnt(0)")
            a("s_barrier")
            a("s_endpgm")
        else:
            a("s_barrier")
            for q in range(8):
                a(f"ds_read_b128 v[{16+4*q}:{19+4*q}], v3 offset:{q*1024}")
            for q in range(8):
                a(f"s_waitcnt lgkmcnt({7-q})")
                for e in range(4):
                    a(f"v_add_f32 v{C0+4*q+e}, v{C0+4*q+e}, v{16+4*q+e}")
            a("s_branch conv_epi")
    a.label("conv_epi")
    a(f"""
    v_mul_u32_u24 v15, 80, v10
    v_lshlrev_b32 v16, 3, v11
    v_sub_u32 v16, 8, v16
    v_add_u32 v15, v15, v16
    v_add_u32 v15, {UOFF + UZ*80}, v15
    v_add_u32 v15, s30, v15
    v_lshlrev_b32 v16, 6, v10
    v_lshl_add_u32 v16, v11, 3, v16
    v_add_u32 v17, s30, v16
    v_add_u32 v16, s31, v2
    """)
    for T in range(2):
        for q in range(4):
            r = 100 + 2*(T*4+q)
            a(f"ds_read_b64 v[{r}:{r+1}], v15 offset:{2560*T + 16*q}")
    a("s_nop 7")
    a("s_nop 3")
    a("s_waitcnt lgkmcnt(0)")
    for T in range(2):
        C = C0 if T == 0 else C1
        for q in range(4):
            r = 100 + 2*(T*4+q); c = C + 4*q
            a(f"""
            v_and_b32 v20, 0xffff0000, v{r+1}
            v_lshlrev_b32 v21, 16, v{r+1}
            v_and_b32 v22, 0xffff0000, v{r}
            v_lshlrev_b32 v23, 16, v{r}
            v_mul_f32 v20, v20, v9
            v_mul_f32 v21, v21, v9
            v_mul_f32 v22, v22, v9
            v_mul_f32 v23, v23, v9
            v_cvt_pk_bf16_f32 v24, v20, v21
            v_cvt_pk_bf16_f32 v25, v22, v23
            v_cvt_pk_bf16_f32 v26, v{c}, v{c+1}
            v_cvt_pk_bf16_f32 v27, v{c+2}, v{c+3}
            v_lshlrev_b32 v20, 16, v24
            v_and_b32 v21, 0xffff0000, v24
            v_lshlrev_b32 v22, 16, v25
            v_and_b32 v23, 0xffff0000, v25
            v_lshlrev_b32 v28, 16, v26
            v_and_b32 v29, 0xffff0000, v26
            v_lshlrev_b32 v30, 16, v27
            v_and_b32 v31, 0xffff0000, v27
            v_add_f32 v20, v20, v28
            v_add_f32 v21, v21, v29
            v_add_f32 v22, v22, v30
            v_add_f32 v23, v23, v31
            v_cvt_pk_bf16_f32 v{r}, v20, v21
            v_cvt_pk_bf16_f32 v{r+1}, v22, v23
            ds_write_b64 v17, v[{r}:{r+1}] offset:{2048*T + 16*q}
            """)
    a("s_waitcnt lgkmcnt(0)")
    for i in range(4):
        a(f"ds_read_b128 v[{32+4*i}:{35+4*i}], v3 offset:{1024*i}")
    for i in range(4):
        a(f"s_waitcnt lgkmcnt({3-i})")
        a(f"buffer_store_dwordx4 v[{32+4*i}:{35+4*i}], v16, s[20:23], 0 offen offset:{1024*i}" + (" sc1" if FUSE_FINAL else ""))
    if G2_STAMP:
        a("""
        s_waitcnt vmcnt(0)
        s_memtime s[54:55]
        s_waitcnt lgkmcnt(0)
        s_sub_u32 s54, s54, s48
        s_sub_u32 s50, s50, s48
        s_sub_u32 s52, s52, s48
        v_mov_b32 v20, s54
        v_mov_b32 v21, s50
        v_mov_b32 v22, s52
        v_mov_b32 v23, 0
        s_lshl_b32 s36, s25, 4
        s_add_u32 s36, s36, 0x2FC0000
        v_mov_b32 v24, s36
        s_add_u32 s56, s4, 0
        s_addc_u32 s57, s5, 0
        s_mov_b32 s58, 0x3000000
        s_mov_b32 s59, 0x00020000
        s_mov_b64 exec, 1
        buffer_store_dwordx4 v[20:23], v24, s[56:59], 0 offen
        """)
    if FUSE_FINAL:
        srd(a, 76, 4, 5, 0x3000, WS_FLAG)
        a("""
        s_lshl_b32 s35, s25, 2
        s_add_u32 s35, s35, 0x2000
        v_mov_b32 v30, s35
        v_mov_b32 v31, 1
        s_waitcnt vmcnt(0)
        s_mov_b64 exec, 1
        buffer_store_dword v31, v30, s[76:79], 0 offen sc1
        """)
    a.label("g2_done")
    a("s_endpgm")

def gen_k4(a, G):
    srd = G["srd"]
    WS_XN = G["WS_XN"]; WS_PART = G["WS_PART"]; WS_Y2T = G["WS_Y2T"]
    SZ_ACT = G["SZ_ACT"]; SZ_PART = G["SZ_PART"]
    G["kernel_header"](a, "final_kernel")
    a(f"""
    s_load_dwordx2 s[4:5], s[0:1], 96        ; ws
    s_load_dwordx2 s[6:7], s[0:1], 0         ; q (x)
    s_load_dwordx2 s[8:9], s[0:1], 80        ; out
    s_cmp_ge_u32 s2, 288
    s_cbranch_scc1 k4_done
    s_mov_b32 s34, 0x1c71c71d
    s_mul_hi_u32 s35, s2, s34                ; sgrp = b/9
    s_mul_i32 s36, s35, 9
    s_sub_u32 s36, s2, s36                   ; dgrp
    v_lshrrev_b32 v1, 6, v0
    s_nop 0
    v_readfirstlane_b32 s24, v1              ; wave
    v_and_b32 v1, 63, v0
    s_waitcnt lgkmcnt(0)
    """)
    srd(a, 12, 4, 5, SZ_ACT, WS_Y2T)
    srd(a, 16, 4, 5, SZ_PART, WS_PART)
    srd(a, 20, 4, 5, SZ_ACT, WS_XN)
    srd(a, 40, 6, 7, SZ_ACT)
    srd(a, 44, 8, 9, SZ_ACT)
    a(f"""
    v_lshrrev_b32 v2, 2, v0
    v_and_b32 v3, 3, v0
    s_lshl_b32 s37, s36, 6                   ; 64*dgrp
    v_add_u32 v4, s37, v2
    v_lshlrev_b32 v4, 12, v4
    v_lshl_add_u32 v4, v3, 5, v4
    s_lshl_b32 s38, s35, 7                   ; 128*sgrp
    v_add_u32 v4, s38, v4
    buffer_load_dwordx4 v[8:11], v4, s[12:15], 0 offen
    buffer_load_dwordx4 v[12:15], v4, s[12:15], 0 offen offset:16
    v_mul_u32_u24 v5, 160, v2
    v_lshl_add_u32 v5, v3, 5, v5
    s_lshl_b32 s25, s35, 2
    s_add_u32 s25, s25, s24
    ; partial offset: (stile*36 + 4*dgrp)*1024 + lane*16   (+ks*128*36*1024, +dt*1024)
    s_mul_i32 s26, s25, 36
    s_lshl_b32 s27, s36, 2
    s_add_u32 s26, s26, s27
    s_lshl_b32 s26, s26, {9 if BF16_PART else 10}
    v_lshlrev_b32 v6, {3 if BF16_PART else 4}, v1
    v_add_u32 v6, s26, v6
    v_and_b32 v7, 15, v1
    s_lshl_b32 s27, s25, 4
    v_add_u32 v7, s27, v7
    v_mul_u32_u24 v7, 1152, v7
    v_lshrrev_b32 v16, 4, v1
    v_lshl_add_u32 v7, v16, 3, v7
    s_lshl_b32 s27, s36, 7
    v_add_u32 v7, s27, v7
    ; xn offset: ((stile*18 + 2*dgrp)*64 + lane)*16  (+ (dt>>1)*1024 + (dt&1)*8)
    s_mul_i32 s27, s25, 18
    s_lshl_b32 s28, s36, 1
    s_add_u32 s27, s27, s28
    s_lshl_b32 s27, s27, 10
    v_lshlrev_b32 v17, 4, v1
    v_add_u32 v17, s27, v17
    v_lshrrev_b32 v18, 2, v1
    v_mul_u32_u24 v18, 160, v18
    v_and_b32 v19, 3, v1
    v_lshl_add_u32 v18, v19, 3, v18
    s_lshl_b32 s27, s24, 5
    v_add_u32 v18, s27, v18
    """)
    for dt in range(4):
        for ks in range(4):
            if BF16_PART:
                a(f"s_mov_b32 s27, {ks*128*36*512 + dt*512}")
                a(f"buffer_load_dwordx2 v[{24+16*dt+4*ks}:{25+16*dt+4*ks}], v6, s[16:19], s27 offen")
            else:
                a(f"s_mov_b32 s27, {ks*128*36*1024 + dt*1024}")
                a(f"buffer_load_dwordx4 v[{24+16*dt+4*ks}:{27+16*dt+4*ks}], v6, s[16:19], s27 offen")
        a(f"buffer_load_dwordx2 v[{88+4*dt}:{89+4*dt}], v7, s[40:43], 0 offen offset:{dt*32}")
        a(f"buffer_load_dwordx2 v[{90+4*dt}:{91+4*dt}], v17, s[20:23], 0 offen offset:{(dt>>1)*1024 + (dt&1)*8}")
    a("""
    s_waitcnt vmcnt(24)
    ds_write_b128 v5, v[8:11]
    ds_write_b128 v5, v[12:15] offset:16
    s_waitcnt lgkmcnt(0)
    s_barrier
    """)
    for dt in range(4):
        a(f"ds_read_b64_tr_b16 v[{104+2*dt}:{105+2*dt}], v18 offset:{dt*2560}")
    for dt in range(4):
        P = 24 + 16*dt; X = 88 + 4*dt; XN = 90 + 4*dt; Y = 104 + 2*dt
        a(f"s_waitcnt vmcnt({18 - 6*dt}) lgkmcnt({3-dt})")
        if BF16_PART:
            for ks in range(4):
                q = P + 4*ks
                a(f"v_and_b32 v{q+3}, 0xffff0000, v{q+1}")
                a(f"v_lshlrev_b32 v{q+2}, 16, v{q+1}")
                a(f"v_and_b32 v{q+1}, 0xffff0000, v{q}")
                a(f"v_lshlrev_b32 v{q}, 16, v{q}")
        for i in range(4):
            a(f"v_add_f32 v{P+i}, v{P+i}, v{P+4+i}")
            a(f"v_add_f32 v{P+8+i}, v{P+8+i}, v{P+12+i}")
            a(f"v_add_f32 v{P+i}, v{P+i}, v{P+8+i}")
        a(f"""
        v_cvt_pk_bf16_f32 v112, v{P}, v{P+1}
        v_cvt_pk_bf16_f32 v113, v{P+2}, v{P+3}
        v_lshlrev_b32 v116, 16, v{XN}
        v_and_b32 v117, 0xffff0000, v{XN}
        v_lshlrev_b32 v118, 16, v{XN+1}
        v_and_b32 v119, 0xffff0000, v{XN+1}
        v_lshlrev_b32 v120, 16, v{Y}
        v_and_b32 v121, 0xffff0000, v{Y}
        v_lshlrev_b32 v122, 16, v{Y+1}
        v_and_b32 v123, 0xffff0000, v{Y+1}
        v_mul_f32 v116, v116, v120
        v_mul_f32 v117, v117, v121
        v_mul_f32 v118, v118, v122
        v_mul_f32 v119, v119, v123
        v_cvt_pk_bf16_f32 v114, v116, v117
        v_cvt_pk_bf16_f32 v115, v118, v119
        v_lshlrev_b32 v116, 16, v{X}
        v_and_b32 v117, 0xffff0000, v{X}
        v_lshlrev_b32 v118, 16, v{X+1}
        v_and_b32 v119, 0xffff0000, v{X+1}
        v_lshlrev_b32 v120, 16, v114
        v_and_b32 v121, 0xffff0000, v114
        v_lshlrev_b32 v122, 16, v115
        v_and_b32 v123, 0xffff0000, v115
        v_add_f32 v116, v116, v120
        v_add_f32 v117, v117, v121
        v_add_f32 v118, v118, v122
        v_add_f32 v119, v119, v123
        v_cvt_pk_bf16_f32 v114, v116, v117
        v_cvt_pk_bf16_f32 v115, v118, v119
        v_lshlrev_b32 v116, 16, v114
        v_and_b32 v117, 0xffff0000, v114
        v_lshlrev_b32 v118, 16, v115
        v_and_b32 v119, 0xffff0000, v115
        v_lshlrev_b32 v120, 16, v112
        v_and_b32 v121, 0xffff0000, v112
        v_lshlrev_b32 v122, 16, v113
        v_and_b32 v123, 0xffff0000, v113
        v_add_f32 v116, v116, v120
        v_add_f32 v117, v117, v121
        v_add_f32 v118, v118, v122
        v_add_f32 v119, v119, v123
        v_cvt_pk_bf16_f32 v{P}, v116, v117
        v_cvt_pk_bf16_f32 v{P+1}, v118, v119
        """)
    a("""
    ; stage through LDS for full-line stores: region 10240 + w*2304, pitch 144
    s_mul_i32 s27, s24, 2304
    s_add_u32 s27, s27, 10240
    v_and_b32 v112, 15, v1
    v_mul_u32_u24 v112, 144, v112
    v_lshrrev_b32 v113, 4, v1
    v_lshl_add_u32 v112, v113, 3, v112
    v_add_u32 v112, s27, v112
    v_lshrrev_b32 v113, 3, v1
    v_mul_u32_u24 v114, 144, v113
    v_and_b32 v115, 7, v1
    v_lshl_add_u32 v114, v115, 4, v114
    v_add_u32 v114, s27, v114
    s_lshl_b32 s27, s25, 4
    v_add_u32 v113, s27, v113
    v_mul_u32_u24 v113, 1152, v113
    v_lshl_add_u32 v113, v115, 4, v113
    s_lshl_b32 s27, s36, 7
    v_add_u32 v113, s27, v113
    """)
    for dt in range(4):
        P = 24 + 16*dt
        a(f"ds_write_b64 v112, v[{P}:{P+1}] offset:{dt*32}")
    a("""
    s_waitcnt lgkmcnt(0)
    ds_read_b128 v[116:119], v114
    ds_read_b128 v[120:123], v114 offset:1152
    s_movk_i32 s27, 9216
    s_waitcnt lgkmcnt(1)
    buffer_store_dwordx4 v[116:119], v113, s[44:47], 0 offen
    s_waitcnt lgkmcnt(0)
    buffer_store_dwordx4 v[120:123], v113, s[44:47], s27 offen
    """)
    a.label("k4_done")
    a("s_endpgm")
```

```python
def add(a, launches, kds, G):
    gen_gemm1(a, G); launches.append(("gemm1_kernel", 256, 512, 4*G1_STG)); kds.append(G["kd"]("gemm1_kernel", 256, 102))
    try:
        import gen3
        gen3.add(a, launches, kds, G)
    except ImportError:
        pass

G1_STG = 16384 + 18432

import os
G1_NODMA = os.environ.get('G1_NODMA')
G1_NOMFMA = os.environ.get('G1_NOMFMA')
G1_NOBAR = os.environ.get('G1_NOBAR')
G1_STAMP = os.environ.get('G1_STAMP')
FUSE_PREP = bool(os.environ.get('FUSE_PREP'))
PREFETCH = not os.environ.get('NO_PREFETCH')
KV_IN_G1 = bool(os.environ.get('KV_IN_G1'))
CONV_IN_G1 = bool(os.environ.get('CONV_IN_G1'))
G1_BAR2 = bool(os.environ.get('G1_BAR2'))
G1_LA = 1 if os.environ.get('G1_LA1') else 0
G1_NOREAD = os.environ.get('G1_NOREAD')
def gen_gemm1(a, G):
    srd = G["srd"]; WS_XN = G["WS_XN"]; WS_H = G["WS_H"]; SZ_ACT = G["SZ_ACT"]; SZ_H = G["SZ_H"]; SZ_W = G["SZ_W"]
    G["kernel_header"](a, "gemm1_kernel")
    STG = G1_STG
    NST = 18
    a(f"""
    s_load_dwordx2 s[4:5], s[0:1], 96
    s_load_dwordx2 s[6:7], s[0:1], 56
    s_load_dwordx2 s[8:9], s[0:1], 64
    s_load_dwordx2 s[60:61], s[0:1], 0       ; x
    s_load_dwordx2 s[62:63], s[0:1], 8       ; k
    s_load_dwordx2 s[64:65], s[0:1], 16      ; v
    s_load_dwordx2 s[66:67], s[0:1], 24      ; shift_k
    s_load_dwordx2 s[68:69], s[0:1], 88
    s_load_dwordx2 s[96:97], s[0:1], 72
    s_load_dwordx2 s[98:99], s[0:1], 32      ; ssm_k
    s_load_dwordx2 s[100:101], s[0:1], 40    ; ssm_D
    s_cmp_ge_u32 s2, 256
    s_cbranch_scc1 g1_done
    {"s_memtime s[48:49]" if G1_STAMP else "s_nop 0"}
    v_lshrrev_b32 v1, 6, v0
    s_nop 0
    v_readfirstlane_b32 s24, v1              ; wave
    v_and_b32 v1, 63, v0                     ; lane
    s_and_b32 s25, s24, 3                    ; mw
    s_lshr_b32 s26, s24, 2                   ; gu
    s_and_b32 s28, s2, 7
    s_lshl_b32 s28, s28, 2
    s_lshr_b32 s27, s2, 3                    ; idx
    s_and_b32 s29, s27, 3
    s_add_u32 s28, s28, s29                  ; nblk
    s_lshr_b32 s27, s27, 2                   ; mblk
    s_waitcnt lgkmcnt(0)
    s_cmp_eq_u32 s26, 0
    s_cselect_b32 s6, s6, s8
    s_cselect_b32 s7, s7, s9
    """)
    srd(a, 12, 4, 5, SZ_ACT, WS_XN)
    srd(a, 16, 6, 7, SZ_W)
    srd(a, 20, 4, 5, SZ_H, WS_H)
    a(f"""
    s_lshl_b32 s32, s27, 4                   ; mblk*16
    s_lshl_b32 s33, s24, 1                   ; 2w
    s_add_u32 s32, s32, s33
    s_mul_i32 s32, s32, {18*1024}
    v_lshlrev_b32 v2, 4, v1
    v_add_u32 v2, s32, v2                    ; voffA0
    v_add_u32 v3, {18*1024}, v2              ; voffA1
    s_lshl_b32 s33, s25, 3                   ; 8*mw
    s_mul_i32 s33, s33, 9216
    s_mul_i32 s34, s28, 288
    s_add_u32 s33, s33, s34
    """)
    for i in range(3):
        a(f"""
        v_add_u32 v20, {64*i}, v1            ; q
        v_mul_u32_u24 v21, 3641, v20
        v_lshrrev_b32 v21, 16, v21           ; row = q/18
        v_mul_u32_u24 v22, 18, v21
        v_sub_u32 v22, v20, v22              ; c
        v_mul_u32_u24 v21, 9216, v21
        v_lshl_add_u32 v21, v22, 4, v21
        v_add_u32 v{4+i}, s33, v21
        """)
    a(f"""
    s_lshl_b32 s30, s24, 11                  ; w*2048
    s_mul_i32 s31, s26, 9216
    s_mul_i32 s34, s25, 2304
    s_add_u32 s31, s31, s34
    s_add_u32 s31, s31, 16384
    s_lshl_b32 s34, s25, 12                  ; mw*4096
    v_lshlrev_b32 v8, 4, v1
    v_add_u32 v8, s34, v8                    ; vA[0]
    v_lshrrev_b32 v12, 2, v1
    v_mul_u32_u24 v12, 288, v12
    v_and_b32 v13, 3, v1
    v_lshl_add_u32 v12, v13, 3, v12
    s_mul_i32 s34, s26, 9216
    s_add_u32 s34, s34, 16384
    v_add_u32 v12, s34, v12                  ; vB[0]
    """)
    for b in range(1, 4):
        a(f"v_add_u32 v{8+b}, {b*STG}, v8")
        a(f"v_add_u32 v{12+b}, {b*STG}, v12")
    a(f"""
    s_lshl_b32 s34, s27, 4
    s_lshl_b32 s35, s25, 2
    s_add_u32 s34, s34, s35                  ; mblk*16+4mw
    s_mul_i32 s34, s34, 144
    s_mul_i32 s35, s28, 9
    s_lshr_b32 s35, s35, 1
    s_add_u32 s34, s34, s35
    s_lshl_b32 s34, s34, 10
    v_lshlrev_b32 v16, 4, v1
    v_add_u32 v16, s34, v16                  ; voffH
    s_mul_i32 s34, s24, 9216
    v_lshlrev_b32 v17, 3, v1
    v_add_u32 v17, s34, v17
    s_xor_b32 s35, s24, 4
    s_mul_i32 s35, s35, 9216
    v_lshlrev_b32 v18, 3, v1
    v_add_u32 v18, s35, v18
    """)
    AF = [44, 60]
    BF = 76
    ACC = 112
    def acc(mt, ft): return ACC + 4*(mt*9 + ft)

    def dma_piece(t, i):
        b = t % 4
        if i == 0:
            a(f"s_mov_b32 s36, {t*1024}")
            a(f"s_add_u32 m0, s30, {b*STG}")
            a(f"s_mov_b32 s37, {t*294912}")
            a("buffer_load_dwordx4 v2, s[12:15], s36 offen lds")
        elif i == 1:
            a(f"s_add_u32 m0, s30, {b*STG + 1024}")
            a("s_nop 0")
            a("buffer_load_dwordx4 v3, s[12:15], s36 offen lds")
        elif i == 2:
            a(f"s_add_u32 m0, s31, {b*STG}")
            a("s_nop 0")
            a("buffer_load_dwordx4 v4, s[16:19], s37 offen lds")
        elif i == 3:
            a(f"s_add_u32 m0, s31, {b*STG + 1024}")
            a("s_nop 0")
            a("buffer_load_dwordx4 v5, s[16:19], s37 offen lds")
        else:
            a(f"s_add_u32 m0, s31, {b*STG + 2048}")
            a("s_mov_b64 exec, 0xffff")
            a("buffer_load_dwordx4 v6, s[16:19], s37 offen lds")
            a("s_mov_b64 exec, -1")
    def dma(t):
        for i in range(5): dma_piece(t, i)

    def readA(t):
        b = t % 4; r = AF[t % 2]
        for mt in range(4):
            a(f"ds_read_b128 v[{r+4*mt}:{r+4*mt+3}], v{8+b} offset:{mt*1024}")
    def readB(t, ft):
        b = t % 4; r = BF + 4*ft
        a(f"ds_read_b64_tr_b16 v[{r}:{r+1}], v{12+b} offset:{ft*32}")
        a(f"ds_read_b64_tr_b16 v[{r+2}:{r+3}], v{12+b} offset:{4608 + ft*32}")

    if not FUSE_PREP:
        dma(0); dma(1); dma(2)
        if G1_LA: dma(3)
        a(f"s_waitcnt vmcnt({15 if G1_LA else 10})")
        a("s_barrier")
    else:
        def bdma():
            for t in range(3):
                a(f"s_mov_b32 s37, {t*294912}")
                for i in (2, 3, 4): dma_piece(t, i)
        gen_ln_kv(a, G, bdma)
        for t in range(3):
            for i in (0, 1): dma_piece(t, i)
        a("s_waitcnt vmcnt(4)")
        a("s_barrier")
    if G1_STAMP: a("s_memtime s[50:51]"); a("s_waitcnt lgkmcnt(0)")
    readA(0)
    for ft in range(9): readB(0, ft)
    for t in range(NST):
        last = (t == NST-1)
        if t == 0: a("s_waitcnt lgkmcnt(0)")
        for ft in range(9):
            if t > 0:
                a(f"s_waitcnt lgkmcnt({12 if not last else min(15, 2*(8-ft))})")
            for mt in range(4):
                c = f"v[{acc(mt,ft)}:{acc(mt,ft)+3}]"
                src_c = c if t > 0 else "0"
                a(f"v_mfma_f32_16x16x32_bf16 {c}, v[{BF+4*ft}:{BF+4*ft+3}], v[{AF[t%2]+4*mt}:{AF[t%2]+4*mt+3}], {src_c}")
            if not last:
                if ft == 0:
                    if not G1_BAR2:
                        if G1_LA:
                            nyoung = 5*len([x for x in (t+2, t+3) if x < NST])
                            a(f"s_waitcnt vmcnt({nyoung}) lgkmcnt(0)")
                        else:
                            a(f"s_waitcnt vmcnt({2 if (t == 0 and FUSE_PREP) else (5 if t+2 < NST else 0)})")
                        a("s_barrier")
                    elif t % 2 == 0:
                        a("s_waitcnt vmcnt(0)")
                        a("s_barrier")
                    readA(t+1)
                    if t == NST-2 and PREFETCH:
                        srd(a, 76, 96, 97, SZ_W)
                        srd(a, 80, 98, 99, SZ_ACT)
                        a("""
                        s_and_b32 s84, s2, 3
                        s_mul_i32 s84, s84, 1327104
                        s_lshr_b32 s85, s2, 3
                        s_mul_i32 s85, s85, 41472
                        s_add_u32 s84, s84, s85
                        s_mul_i32 s85, s24, 5184
                        s_add_u32 s84, s84, s85
                        v_lshlrev_b32 v20, 4, v1
                        v_add_u32 v20, s84, v20
                        s_mul_i32 s84, s2, 9216
                        s_lshl_b32 s85, s24, 11
                        s_add_u32 s84, s84, s85
                        v_lshlrev_b32 v21, 4, v1
                        v_add_u32 v21, s84, v21
                        """)
                        for i in range(4):
                            a(f"buffer_load_dwordx4 v[28:31], v20, s[76:79], 0 offen offset:{i*1024}")
                        a("v_add_u32 v20, 4096, v20")
                        for i in range(2):
                            a(f"buffer_load_dwordx4 v[28:31], v20, s[76:79], 0 offen offset:{i*1024}")
                        for i in range(2):
                            a(f"buffer_load_dwordx4 v[28:31], v21, s[80:83], 0 offen offset:{i*1024}")
                readB(t+1, ft)
                if 1 <= ft <= 5 and t + 3 + G1_LA < NST: dma_piece(t+3+G1_LA, ft-1)
    if KV_IN_G1: gen_kv_issue(a, G, "g1_kvskip")
    if CONV_IN_G1:
        import gen3
        gen3.gen_conv(a, G, True, 1)
    a("s_nop 7")
    a("s_nop 7")
    if G1_STAMP: a("s_memtime s[52:53]"); a("s_waitcnt lgkmcnt(0)")
    a("s_barrier")
    for mt in range(4):
        for ft in range(9):
            c = acc(mt, ft)
            a(f"v_cvt_pk_bf16_f32 v{c}, v{c}, v{c+1}")
            a(f"v_cvt_pk_bf16_f32 v{c+1}, v{c+2}, v{c+3}")
    a("s_and_b32 s36, s28, 1")
    a("s_lshl_b32 s36, s36, 1")
    a("s_add_u32 s36, s36, s26")
    a("s_cmp_eq_u32 s36, 1")
    a("s_cbranch_scc1 g1_ep1")
    a("s_cmp_eq_u32 s36, 2")
    a("s_cbranch_scc1 g1_ep2")
    a("s_cmp_eq_u32 s36, 3")
    a("s_cbranch_scc1 g1_ep3")
    for var in range(4):
        gu = var & 1; odd = var >> 1
        if var > 0: a.label(f"g1_ep{var}")
        send = [2, 3] if gu == 0 else [0, 1]
        keep = [0, 1] if gu == 0 else [2, 3]
        for i, mt in enumerate(send):
            for ft in range(9):
                c = acc(mt, ft)
                a(f"ds_write_b64 v17, v[{c}:{c+1}] offset:{(i*9+ft)*512}")
        a("s_waitcnt lgkmcnt(0)")
        a("s_barrier")
        for i, mt in enumerate(keep):
            for ft in range(9):
                c = acc(mt, ft)
                a(f"ds_read_b64 v[{c+2}:{c+3}], v18 offset:{(i*9+ft)*512}")
        n = 0
        def prod(c, dst):
            a(f"""
            v_lshlrev_b32 v20, 16, v{c}
            v_and_b32 v21, 0xffff0000, v{c}
            v_lshlrev_b32 v22, 16, v{c+1}
            v_and_b32 v23, 0xffff0000, v{c+1}
            v_lshlrev_b32 v24, 16, v{c+2}
            v_and_b32 v25, 0xffff0000, v{c+2}
            v_lshlrev_b32 v26, 16, v{c+3}
            v_and_b32 v27, 0xffff0000, v{c+3}
            v_mul_f32 v20, v20, v24
            v_mul_f32 v21, v21, v25
            v_mul_f32 v22, v22, v26
            v_mul_f32 v23, v23, v27
            v_cvt_pk_bf16_f32 v{dst}, v20, v21
            v_cvt_pk_bf16_f32 v{dst+1}, v22, v23
            """)
        for i, mt in enumerate(keep):
            groups = [[0,1],[2,3],[4,5],[6,7],[8]] if not odd else [[0],[1,2],[3,4],[5,6],[7,8]]
            for gi, g in enumerate(groups):
                c0 = acc(mt, g[0])
                n += len(g)
                a(f"s_waitcnt lgkmcnt({min(15, 18-n)})")
                prod(c0, c0)
                if len(g) == 2:
                    prod(acc(mt, g[1]), c0+2)
                    a(f"s_mov_b32 s36, {mt*147456 + gi*1024}")
                    a(f"buffer_store_dwordx4 v[{c0}:{c0+3}], v16, s[20:23], s36 offen sc1")
                else:
                    a(f"s_mov_b32 s36, {mt*147456 + gi*1024 + (8 if odd else 0)}")
                    a(f"buffer_store_dwordx2 v[{c0}:{c0+1}], v16, s[20:23], s36 offen sc1")
        if G1_STAMP:
            a("s_waitcnt vmcnt(0)")
            a("s_memtime s[54:55]")
            a("s_waitcnt lgkmcnt(0)")
            a("s_sub_u32 s50, s50, s48")
            a("s_sub_u32 s52, s52, s48")
            a("s_sub_u32 s54, s54, s48")
            a("v_mov_b32 v20, s50")
            a("v_mov_b32 v21, s52")
            a("v_mov_b32 v22, s54")
            a("v_mov_b32 v23, 0")
            a("s_lshl_b32 s36, s2, 3")
            a("s_add_u32 s36, s36, s24")
            a("s_lshl_b32 s36, s36, 4")
            a("s_add_u32 s36, s36, 0x2F00000")
            a("v_mov_b32 v24, s36")
            a("s_add_u32 s56, s4, 0")
            a("s_addc_u32 s57, s5, 0")
            a("s_mov_b32 s58, 0x3000000")
            a("s_mov_b32 s59, 0x00020000")
            a("s_mov_b64 exec, 1")
            a("buffer_store_dwordx4 v[20:23], v24, s[56:59], 0 offen")
        a("s_branch g1_kvtail" if KV_IN_G1 else ("s_branch g1_conv" if CONV_IN_G1 else "s_endpgm"))
    if KV_IN_G1:
        a.label("g1_kvtail")
        gen_kv_compute(a, G, "g1_done")
    else:
        if CONV_IN_G1:
            import gen3
            a.label("g1_conv")
            a("s_waitcnt lgkmcnt(0)")
            a("s_barrier")
            a("v_and_b32 v1, 63, v0")
            gen3.gen_conv(a, G, True, 2)
        a.label("g1_done")
    a("s_endpgm")


def gen_ln_kv(a, G, dma_cb):
    srd = G["srd"]; SZ_ACT = G["SZ_ACT"]; WS_KVT = G["WS_KVT"]
    srd(a, 72, 60, 61, SZ_ACT)
    srd(a, 76, 68, 69, 256)
    a(f"""
    s_lshl_b32 s70, s2, 3
    s_add_u32 s70, s70, s24                  ; row
    s_mul_i32 s71, s70, 1152
    v_lshlrev_b32 v112, 3, v1
    v_add_u32 v112, s71, v112
    v_mov_b32 v118, 0
    v_mov_b32 v119, 0
    buffer_load_dwordx2 v[114:115], v112, s[72:75], 0 offen
    buffer_load_dwordx2 v[116:117], v112, s[72:75], 0 offen offset:512
    s_mov_b64 exec, 0xffff
    buffer_load_dwordx2 v[118:119], v112, s[72:75], 0 offen offset:1024
    s_mov_b64 exec, -1
    s_lshr_b32 s71, s70, 4
    s_mul_i32 s71, s71, {18*1024}
    s_and_b32 s80, s70, 15
    s_lshl_b32 s80, s80, 4
    s_add_u32 s71, s71, s80
    v_lshrrev_b32 v113, 3, v1
    v_lshlrev_b32 v113, 10, v113
    v_and_b32 v120, 3, v1
    v_lshl_add_u32 v113, v120, 8, v113
    v_bfe_u32 v120, v1, 2, 1
    v_lshl_add_u32 v113, v120, 3, v113
    v_add_u32 v113, s71, v113
    """)
    dma_cb()
    a("s_waitcnt vmcnt(9)")
    srd(a, 40, 62, 63, SZ_ACT)
    srd(a, 84, 64, 65, SZ_ACT)
    srd(a, 88, 66, 67, 576*4*2)
    srd(a, 92, 4, 5, SZ_ACT, WS_KVT)
    a(f"""
    s_lshl_b32 s44, s24, 8
    s_add_u32 s44, s44, s2                   ; u
    s_cmp_ge_u32 s44, 1152
    s_cbranch_scc1 g1_nokv0
    s_mov_b32 s45, 0x1c71c71d
    s_mul_hi_u32 s46, s44, s45               ; sgroup = u/9
    s_mul_i32 s47, s46, 9
    s_sub_u32 s47, s44, s47                  ; dgroup
    v_and_b32 v144, 7, v1                    ; dchunk
    v_lshrrev_b32 v145, 3, v1                ; sblk
    s_lshl_b32 s38, s46, 4
    v_lshl_add_u32 v145, v145, 1, s38        ; s0
    s_lshl_b32 s38, s47, 7
    v_lshl_add_u32 v146, v144, 4, s38        ; d0*2
    s_movk_i32 s39, 1152
    v_mul_lo_u32 v147, v145, s39
    v_add_u32 v147, v147, v146
    v_subrev_u32 v148, {3*1152}, v147
    v_subrev_u32 v149, {2*1152}, v147
    v_subrev_u32 v150, {1*1152}, v147
    buffer_load_dwordx4 v[152:155], v148, s[40:43], 0 offen
    buffer_load_dwordx4 v[156:159], v149, s[40:43], 0 offen
    buffer_load_dwordx4 v[160:163], v150, s[40:43], 0 offen
    buffer_load_dwordx4 v[164:167], v147, s[40:43], 0 offen
    buffer_load_dwordx4 v[168:171], v147, s[40:43], 0 offen offset:1152
    buffer_load_dwordx4 v[172:175], v147, s[84:87], 0 offen
    buffer_load_dwordx4 v[176:179], v147, s[84:87], 0 offen offset:1152
    v_lshlrev_b32 v149, 2, v146
    buffer_load_dwordx4 v[180:183], v149, s[88:91], 0 offen
    buffer_load_dwordx4 v[184:187], v149, s[88:91], 0 offen offset:16
    buffer_load_dwordx4 v[188:191], v149, s[88:91], 0 offen offset:32
    buffer_load_dwordx4 v[192:195], v149, s[88:91], 0 offen offset:48
    v_lshlrev_b32 v150, 11, v146
    v_and_b32 v151, 0xfffffff8, v145
    v_lshl_add_u32 v150, v151, 1, v150
    v_and_b32 v151, 7, v145
    v_sub_u32 v151, 6, v151
    v_lshl_add_u32 v150, v151, 1, v150
    """)
    a.label("g1_nokv0")
    F = 120
    for i in range(6):
        a(f"v_lshlrev_b32 v{F+2*i}, 16, v{114+i}")
        a(f"v_and_b32 v{F+2*i+1}, 0xffff0000, v{114+i}")
    def wave_sum(r, t):
        a(f"""
        s_nop 1
        v_add_f32_dpp v{t}, v{r}, v{r} quad_perm:[1,0,3,2] row_mask:0xf bank_mask:0xf
        s_nop 1
        v_add_f32_dpp v{r}, v{t}, v{t} quad_perm:[2,3,0,1] row_mask:0xf bank_mask:0xf
        s_nop 1
        v_add_f32_dpp v{t}, v{r}, v{r} row_half_mirror row_mask:0xf bank_mask:0xf
        s_nop 1
        v_add_f32_dpp v{r}, v{t}, v{t} row_mirror row_mask:0xf bank_mask:0xf
        s_nop 0
        v_readlane_b32 s80, v{r}, 0
        v_readlane_b32 s81, v{r}, 16
        v_readlane_b32 s82, v{r}, 32
        v_readlane_b32 s83, v{r}, 48
        s_nop 1
        v_mov_b32 v{r}, s80
        v_add_f32 v{r}, s81, v{r}
        v_add_f32 v{r}, s82, v{r}
        v_add_f32 v{r}, s83, v{r}
        """)
    a(f"v_add_f32 v134, v{F}, v{F+1}")
    for i in range(2, 12): a(f"v_add_f32 v134, v134, v{F+i}")
    wave_sum(134, 135)
    a(f"""
    s_mov_b32 s84, 0x3ae38e39
    v_mul_f32 v136, s84, v134                ; mean
    v_sub_f32 v137, v{F}, v136
    v_mul_f32 v134, v137, v137
    """)
    for i in range(1, 8):
        a(f"v_sub_f32 v137, v{F+i}, v136")
        a(f"v_fmac_f32 v134, v137, v137")
    a("s_mov_b64 exec, 0xffff")
    for i in range(8, 12):
        a(f"v_sub_f32 v137, v{F+i}, v136")
        a(f"v_fmac_f32 v134, v137, v137")
    a("s_mov_b64 exec, -1")
    wave_sum(134, 135)
    a(f"""
    v_mul_f32 v137, s84, v134                ; var
    v_cvt_pk_bf16_f32 v138, v136, v137
    v_lshlrev_b32 v136, 16, v138             ; m
    v_and_b32 v137, 0xffff0000, v138
    s_mov_b32 s85, 0x3727c5ac
    v_add_f32 v137, s85, v137
    v_cvt_pk_bf16_f32 v137, v137, v137
    v_lshlrev_b32 v137, 16, v137
    v_sqrt_f32 v137, v137
    s_nop 0
    v_cvt_pk_bf16_f32 v137, v137, v137
    v_lshlrev_b32 v137, 16, v137             ; den
    v_rcp_f32 v138, v137
    s_nop 0
    """)
    for i in range(6):
        x0, x1 = F + 2*i, F + 2*i + 1
        a(f"""
        v_sub_f32 v{x0}, v{x0}, v136
        v_sub_f32 v{x1}, v{x1}, v136
        v_cvt_pk_bf16_f32 v139, v{x0}, v{x1}
        v_lshlrev_b32 v{x0}, 16, v139
        v_and_b32 v{x1}, 0xffff0000, v139
        v_mul_f32 v140, v{x0}, v138
        v_mul_f32 v141, v{x1}, v138
        v_fma_f32 v142, -v140, v137, v{x0}
        v_fma_f32 v143, -v141, v137, v{x1}
        v_fmac_f32 v140, v142, v138
        v_fmac_f32 v141, v143, v138
        v_cvt_pk_bf16_f32 v{114+i}, v140, v141
        """)
    a(f"""
    s_movk_i32 s80, 8192
    s_movk_i32 s81, 16384
    buffer_store_dwordx2 v[114:115], v113, s[12:15], 0 offen sc1
    buffer_store_dwordx2 v[116:117], v113, s[12:15], s80 offen sc1
    s_mov_b64 exec, 0xffff
    buffer_store_dwordx2 v[118:119], v113, s[12:15], s81 offen sc1
    s_mov_b64 exec, -1
    s_waitcnt vmcnt(0)
    s_barrier
    s_cmp_lg_u32 s24, 0
    s_cbranch_scc1 g1_noflag
    v_mov_b32 v112, s2
    v_mov_b32 v113, 1
    s_mov_b64 exec, 1
    buffer_store_byte v113, v112, s[76:79], 0 offen sc1
    s_mov_b64 exec, -1
    """)
    a.label("g1_noflag")
    a("s_cmp_ge_u32 s44, 1152")
    a("s_cbranch_scc1 g1_nokv")
    KF = 200; WF = 210; VF = 218; AC = 222; PR = 226; T = 228; OUT = 230
    for p in range(4):
        for r in range(5):
            a(f"v_lshlrev_b32 v{KF+2*r}, 16, v{152+4*r+p}")
            a(f"v_and_b32 v{KF+2*r+1}, 0xffff0000, v{152+4*r+p}")
        for r in range(2):
            a(f"v_lshlrev_b32 v{VF+2*r}, 16, v{172+4*r+p}")
            a(f"v_and_b32 v{VF+2*r+1}, 0xffff0000, v{172+4*r+p}")
        for c in range(2):
            ch = 2*p + c
            a(f"v_lshlrev_b32 v{WF+4*c+0}, 16, v{180+2*ch}")
            a(f"v_and_b32 v{WF+4*c+1}, 0xffff0000, v{180+2*ch}")
            a(f"v_lshlrev_b32 v{WF+4*c+2}, 16, v{181+2*ch}")
            a(f"v_and_b32 v{WF+4*c+3}, 0xffff0000, v{181+2*ch}")
        for r in range(2):
            for t in range(4):
                a(f"v_mul_f32 v{PR}, v{KF+2*(r+t)}, v{WF+3-t}")
                a(f"v_mul_f32 v{PR+1}, v{KF+2*(r+t)+1}, v{WF+4+3-t}")
                a(f"v_cvt_pk_bf16_f32 v{T}, v{PR}, v{PR+1}")
                if t == 0:
                    a(f"v_lshlrev_b32 v{AC+2*r}, 16, v{T}")
                    a(f"v_and_b32 v{AC+2*r+1}, 0xffff0000, v{T}")
                else:
                    a(f"v_lshlrev_b32 v{PR}, 16, v{T}")
                    a(f"v_and_b32 v{PR+1}, 0xffff0000, v{T}")
                    a(f"v_add_f32 v{PR}, v{AC+2*r}, v{PR}")
                    a(f"v_add_f32 v{PR+1}, v{AC+2*r+1}, v{PR+1}")
                    a(f"v_cvt_pk_bf16_f32 v{T}, v{PR}, v{PR+1}")
                    a(f"v_lshlrev_b32 v{AC+2*r}, 16, v{T}")
                    a(f"v_and_b32 v{AC+2*r+1}, 0xffff0000, v{T}")
            a(f"v_mul_f32 v{AC+2*r}, v{AC+2*r}, v{VF+2*r}")
            a(f"v_mul_f32 v{AC+2*r+1}, v{AC+2*r+1}, v{VF+2*r+1}")
        for c in range(2):
            ch = 2*p + c
            a(f"v_cvt_pk_bf16_f32 v{OUT+2*p+c}, v{AC+2+c}, v{AC+0+c}")
            a(f"s_mov_b32 s38, {ch*4096}")
            a(f"buffer_store_dword v{OUT+2*p+c}, v150, s[92:95], s38 offen")
    a.label("g1_nokv")
    a(f"""
    s_cmp_lg_u32 s24, 0
    s_cbranch_scc1 g1_nopoll
    s_lshl_b32 s70, s27, 5
    v_mov_b32 v112, s70
    s_mov_b64 exec, 1
    s_mov_b32 s71, 0
    s_mov_b32 s86, 0x01010101
    """)
    a.label("g1_poll")
    a(f"""
    buffer_load_dwordx4 v[116:119], v112, s[76:79], 0 offen sc1
    buffer_load_dwordx4 v[120:123], v112, s[76:79], 0 offen offset:16 sc1
    s_waitcnt vmcnt(0)
    v_and_b32 v116, v116, v117
    v_and_b32 v118, v118, v119
    v_and_b32 v120, v120, v121
    v_and_b32 v122, v122, v123
    v_and_b32 v116, v116, v118
    v_and_b32 v120, v120, v122
    v_and_b32 v116, v116, v120
    s_nop 0
    v_readfirstlane_b32 s80, v116
    s_add_u32 s71, s71, 1
    s_cmp_ge_u32 s71, 0x400000
    s_cbranch_scc1 g1_polldone
    s_cmp_eq_u32 s80, s86
    s_cbranch_scc1 g1_polldone
    s_sleep 12
    s_branch g1_poll
    """)
    a.label("g1_polldone")
    a("s_mov_b64 exec, -1")
    a("buffer_inv sc1")
    a("s_waitcnt vmcnt(0)")
    a.label("g1_nopoll")
    a("s_barrier")


def gen_kv_issue(a, G, skip_label):
    srd = G["srd"]; SZ_ACT = G["SZ_ACT"]; WS_KVT = G["WS_KVT"]
    srd(a, 72, 62, 63, SZ_ACT)
    srd(a, 84, 64, 65, SZ_ACT)
    srd(a, 88, 66, 67, 576*4*2)
    srd(a, 92, 4, 5, SZ_ACT, WS_KVT)
    D = 44
    a(f"""
    s_lshl_b32 s40, s24, 8
    s_add_u32 s40, s40, s2                   ; u
    s_mov_b32 s41, 0x1c71c71d
    s_mul_hi_u32 s42, s40, s41               ; sgroup
    s_mul_i32 s43, s42, 9
    s_sub_u32 s43, s40, s43                  ; dgroup
    v_and_b32 v28, 7, v1
    v_lshrrev_b32 v29, 3, v1
    s_lshl_b32 s44, s42, 4
    v_lshl_add_u32 v29, v29, 1, s44          ; s0
    s_lshl_b32 s44, s43, 7
    v_lshl_add_u32 v30, v28, 4, s44          ; d0*2
    s_movk_i32 s45, 1152
    v_mul_lo_u32 v31, v29, s45
    v_add_u32 v31, v31, v30
    v_subrev_u32 v40, {3*1152}, v31
    v_subrev_u32 v41, {2*1152}, v31
    v_subrev_u32 v42, {1*1152}, v31
    v_lshlrev_b32 v43, 2, v30
    v_lshlrev_b32 v19, 11, v30
    v_and_b32 v28, 0xfffffff8, v29
    v_lshl_add_u32 v19, v28, 1, v19
    v_and_b32 v28, 7, v29
    v_sub_u32 v28, 6, v28
    v_lshl_add_u32 v19, v28, 1, v19
    s_cmp_ge_u32 s40, 1152
    s_cbranch_scc1 {skip_label}
    buffer_load_dwordx4 v[{D}:{D+3}], v40, s[72:75], 0 offen
    buffer_load_dwordx4 v[{D+4}:{D+7}], v41, s[72:75], 0 offen
    buffer_load_dwordx4 v[{D+8}:{D+11}], v42, s[72:75], 0 offen
    buffer_load_dwordx4 v[{D+12}:{D+15}], v31, s[72:75], 0 offen
    buffer_load_dwordx4 v[{D+16}:{D+19}], v31, s[72:75], 0 offen offset:1152
    buffer_load_dwordx4 v[{D+20}:{D+23}], v31, s[84:87], 0 offen
    buffer_load_dwordx4 v[{D+24}:{D+27}], v31, s[84:87], 0 offen offset:1152
    buffer_load_dwordx4 v[{D+28}:{D+31}], v43, s[88:91], 0 offen
    buffer_load_dwordx4 v[{D+32}:{D+35}], v43, s[88:91], 0 offen offset:16
    buffer_load_dwordx4 v[{D+36}:{D+39}], v43, s[88:91], 0 offen offset:32
    buffer_load_dwordx4 v[{D+40}:{D+43}], v43, s[88:91], 0 offen offset:48
    """)
    a.label(skip_label)

def gen_kv_compute(a, G, skip_label):
    D = 44
    a("s_cmp_ge_u32 s40, 1152")
    a(f"s_cbranch_scc1 {skip_label}")
    a("s_waitcnt vmcnt(10)")
    B = 88
    KF = B; WF = B+10; VF = B+18; AC = B+22; PR = B+26; T = B+28; OUT = B+30
    for p in range(4):
        for r in range(5):
            a(f"v_lshlrev_b32 v{KF+2*r}, 16, v{D+4*r+p}")
            a(f"v_and_b32 v{KF+2*r+1}, 0xffff0000, v{D+4*r+p}")
        for r in range(2):
            a(f"v_lshlrev_b32 v{VF+2*r}, 16, v{D+20+4*r+p}")
            a(f"v_and_b32 v{VF+2*r+1}, 0xffff0000, v{D+20+4*r+p}")
        for c in range(2):
            ch = 2*p + c
            a(f"v_lshlrev_b32 v{WF+4*c+0}, 16, v{D+28+2*ch}")
            a(f"v_and_b32 v{WF+4*c+1}, 0xffff0000, v{D+28+2*ch}")
            a(f"v_lshlrev_b32 v{WF+4*c+2}, 16, v{D+29+2*ch}")
            a(f"v_and_b32 v{WF+4*c+3}, 0xffff0000, v{D+29+2*ch}")
        for r in range(2):
            for t in range(4):
                a(f"v_mul_f32 v{PR}, v{KF+2*(r+t)}, v{WF+3-t}")
                a(f"v_mul_f32 v{PR+1}, v{KF+2*(r+t)+1}, v{WF+4+3-t}")
                a(f"v_cvt_pk_bf16_f32 v{T}, v{PR}, v{PR+1}")
                if t == 0:
                    a(f"v_lshlrev_b32 v{AC+2*r}, 16, v{T}")
                    a(f"v_and_b32 v{AC+2*r+1}, 0xffff0000, v{T}")
                else:
                    a(f"v_lshlrev_b32 v{PR}, 16, v{T}")
                    a(f"v_and_b32 v{PR+1}, 0xffff0000, v{T}")
                    a(f"v_add_f32 v{PR}, v{AC+2*r}, v{PR}")
                    a(f"v_add_f32 v{PR+1}, v{AC+2*r+1}, v{PR+1}")
                    a(f"v_cvt_pk_bf16_f32 v{T}, v{PR}, v{PR+1}")
                    a(f"v_lshlrev_b32 v{AC+2*r}, 16, v{T}")
                    a(f"v_and_b32 v{AC+2*r+1}, 0xffff0000, v{T}")
            a(f"v_mul_f32 v{AC+2*r}, v{AC+2*r}, v{VF+2*r}")
            a(f"v_mul_f32 v{AC+2*r+1}, v{AC+2*r+1}, v{VF+2*r+1}")
        for c in range(2):
            ch = 2*p + c
            a(f"v_cvt_pk_bf16_f32 v{OUT+2*p+c}, v{AC+2+c}, v{AC+0+c}")
            a(f"s_mov_b32 s46, {ch*4096}")
            a(f"buffer_store_dword v{OUT+2*p+c}, v19, s[92:95], s46 offen")
    a.label(skip_label)
```

```python
import os
G2_STAMP = os.environ.get('G2_STAMP')
FUSE_FINAL = bool(os.environ.get('FUSE_FINAL'))
BF16_PART = bool(os.environ.get('BF16_PART'))
G2_LA = bool(os.environ.get('G2_LA'))
CONV_IN_G1 = bool(os.environ.get('CONV_IN_G1'))
G2_STG = 18432
WS_FLAG = 0x2B00000
CONV_REG = 24512
CONV_PER_WG = int(os.environ.get("CPW", "3"))
K3_LDS = 73728
N_CONV = 0 if os.environ.get('CONV_IN_G1') else 576 // CONV_PER_WG
def add(a, launches, kds, G):
    gen_k3(a, G); launches.append(("gemm2_kernel", 256 + N_CONV, 512, K3_LDS)); kds.append(G["kd"]("gemm2_kernel", 128, 96))
    if not FUSE_FINAL:
        gen_k4(a, G); launches.append(("final_kernel", 288, 256, 19456)); kds.append(G["kd"]("final_kernel", 128, 64))

def gen_k3(a, G):
    srd = G["srd"]
    WS_H = G["WS_H"]; WS_PART = G["WS_PART"]; WS_KVT = G["WS_KVT"]; WS_Y2T = G["WS_Y2T"]
    SZ_ACT = G["SZ_ACT"]; SZ_H = G["SZ_H"]; SZ_W = G["SZ_W"]; SZ_PART = G["SZ_PART"]
    G["kernel_header"](a, "gemm2_kernel")
    STG = G2_STG
    NST = 18
    a(f"""
    s_load_dwordx2 s[4:5], s[0:1], 96        ; ws
    s_load_dwordx2 s[6:7], s[0:1], 72        ; w_down
    s_load_dwordx2 s[8:9], s[0:1], 32        ; ssm_k
    s_load_dwordx2 s[10:11], s[0:1], 40      ; ssm_D
    s_load_dwordx2 s[60:61], s[0:1], 0       ; x
    s_load_dwordx2 s[62:63], s[0:1], 80      ; out
    s_load_dwordx2 s[64:65], s[0:1], 88
    s_cmp_ge_u32 s2, {256+N_CONV}
    s_cbranch_scc1 g2_done
    {"s_memtime s[48:49]" if G2_STAMP else "s_nop 0"}
    v_lshrrev_b32 v1, 6, v0
    s_nop 0
    v_readfirstlane_b32 s24, v1              ; wave
    v_and_b32 v1, 63, v0                     ; lane
    s_waitcnt lgkmcnt(0)
    {"s_cmp_ge_u32 s2, 256" if not CONV_IN_G1 else "s_nop 0"}
    {"s_cbranch_scc1 conv_start" if not CONV_IN_G1 else "s_nop 0"}
    s_and_b32 s25, s24, 3                    ; mw
    s_lshr_b32 s26, s24, 2                   ; kg
    s_and_b32 s29, s2, 7                     ; xcd
    s_and_b32 s38, s29, 3                    ; ks
    s_lshr_b32 s29, s29, 2                   ; mhalf
    s_lshr_b32 s27, s2, 3                    ; idx
    s_and_b32 s28, s27, 3                    ; nblk
    s_lshr_b32 s27, s27, 2
    s_lshl_b32 s29, s29, 3
    s_add_u32 s27, s27, s29                  ; mblk (0..15)
    """)
    srd(a, 12, 4, 5, SZ_H, WS_H)
    srd(a, 16, 6, 7, SZ_W)
    srd(a, 20, 4, 5, SZ_PART, WS_PART)
    a(f"""
    ; A (h) offsets: (st*144 + ks*36 + kg)*1024 + lane*16
    s_lshl_b32 s32, s27, 3
    s_lshl_b32 s33, s25, 1
    s_add_u32 s32, s32, s33
    s_mul_i32 s33, s32, {144*1024}
    s_mul_i32 s34, s38, {36*1024}
    s_add_u32 s33, s33, s34
    s_lshl_b32 s34, s26, 10
    s_add_u32 s33, s33, s34
    v_lshlrev_b32 v2, 4, v1
    v_add_u32 v2, s33, v2
    v_add_u32 v3, {144*1024}, v2
    s_mul_i32 s33, s38, 1152
    s_lshl_b32 s34, s24, 3
    s_add_u32 s33, s33, s34
    s_mul_i32 s33, s33, 1152
    s_mul_i32 s34, s28, 288
    s_add_u32 s33, s33, s34
    """)
    for i in range(3):
        a(f"""
        v_add_u32 v20, {64*i}, v1
        v_mul_u32_u24 v21, 3641, v20
        v_lshrrev_b32 v21, 16, v21
        v_mul_u32_u24 v22, 18, v21
        v_sub_u32 v22, v20, v22
        v_mul_u32_u24 v21, 1152, v21
        v_lshl_add_u32 v21, v22, 4, v21
        v_add_u32 v{4+i}, s33, v21
        """)
    a(f"""
    s_mul_i32 s31, s24, 2304
    v_lshrrev_b32 v8, 2, v1
    v_mul_u32_u24 v8, 288, v8
    v_and_b32 v9, 3, v1
    v_lshl_add_u32 v8, v9, 3, v8
    s_mul_i32 s34, s26, 9216
    v_add_u32 v8, s34, v8                    ; vB[0]
    """)
    for b in range(1, 4):
        a(f"v_add_u32 v{8+b}, {b*STG}, v8")
    a(f"""
    """)
    NA = 4
    AS = [12, 20, 28, 36]
    RB = 3
    BR = 44
    ACC = 56
    def acc(mt, dt): return ACC + 4*(mt*9 + dt)
    def dma_piece(t, i):
        b = t % 4
        if i == 0:
            a(f"s_mov_b32 s37, {t*64*1152}")
            a(f"s_add_u32 m0, s31, {b*STG}")
            a("s_nop 0")
            a("buffer_load_dwordx4 v4, s[16:19], s37 offen lds")
        elif i == 1:
            a(f"s_add_u32 m0, s31, {b*STG + 1024}")
            a("s_nop 0")
            a("buffer_load_dwordx4 v5, s[16:19], s37 offen lds")
        else:
            a(f"s_add_u32 m0, s31, {b*STG + 2048}")
            a("s_mov_b64 exec, 0xffff")
            a("buffer_load_dwordx4 v6, s[16:19], s37 offen lds")
            a("s_mov_b64 exec, -1")
    def dma(t):
        for i in range(3): dma_piece(t, i)
    def loadA_piece(t, i):
        r = AS[t % NA]
        if i == 0:
            a(f"s_mov_b32 s36, {t*2048}")
            a(f"buffer_load_dwordx4 v[{r}:{r+3}], v2, s[12:15], s36 offen")
        else:
            a(f"buffer_load_dwordx4 v[{r+4}:{r+7}], v3, s[12:15], s36 offen")
    def loadA(t):
        loadA_piece(t, 0); loadA_piece(t, 1)
    def readB(n):
        t = n // 9; dt = n % 9; b = t % 4; r = BR + 4*(n % RB)
        a(f"ds_read_b64_tr_b16 v[{r}:{r+1}], v{8+b} offset:{dt*32}")
        a(f"ds_read_b64_tr_b16 v[{r+2}:{r+3}], v{8+b} offset:{4608 + dt*32}")
    if G2_LA:
        loadA(0); dma(0); loadA(1); dma(1); loadA(2); dma(2); dma(3)
        a("s_waitcnt vmcnt(13)")
        a("s_barrier")
        if G2_STAMP: a("s_memtime s[50:51]"); a("s_waitcnt lgkmcnt(0)")
        for n in range(RB): readB(n)
        NT = 9*NST
        seq = [("A",0),("D",0),("A",1),("D",1),("A",2),("D",2),("D",3)]
        size = {"A": 2, "D": 3}
        def younger_than(item, upto):
            idx = upto.index(item)
            return sum(size[k] for k, _ in upto[idx+1:])
        for t in range(NST):
            a(f"s_waitcnt vmcnt({younger_than(('A', t), seq)})")
            for dt in range(9):
                n = 9*t + dt
                younger = min(RB-1, NT-1-n)
                a(f"s_waitcnt lgkmcnt({2*younger})")
                br = BR + 4*(n % RB)
                for mt in range(2):
                    c = f"v[{acc(mt,dt)}:{acc(mt,dt)+3}]"
                    src_c = c if t > 0 else "0"
                    ar = AS[t % NA] + 4*mt
                    a(f"v_mfma_f32_16x16x32_bf16 {c}, v[{br}:{br+3}], v[{ar}:{ar+3}], {src_c}")
                if dt == 6 and t < NST-1:
                    a(f"s_waitcnt vmcnt({younger_than(('D', t+1), seq)}) lgkmcnt(0)")
                    a("s_barrier")
                if n + RB < NT: readB(n + RB)
                if dt in (0, 1) and t + 3 < NST:
                    loadA_piece(t+3, dt)
                    if dt == 1: seq.append(("A", t+3))
                if dt in (6, 7, 8) and t + 4 < NST:
                    dma_piece(t+4, dt-6)
                    if dt == 8: seq.append(("D", t+4))
    else:
        loadA(0); dma(0); loadA(1); dma(1); loadA(2); dma(2)
        a("s_waitcnt vmcnt(10)")
        a("s_barrier")
        if G2_STAMP: a("s_memtime s[50:51]"); a("s_waitcnt lgkmcnt(0)")
        for n in range(RB): readB(n)
        NT = 9*NST
        for t in range(NST):
            def cnt(lo):
                return sum(5 for x in range(lo, t+3) if x <= NST-1)
            if t <= 2:
                nA = 3 + cnt(t+1) if t < 3 else 0
                a(f"s_waitcnt vmcnt({min(nA, 63)})")
            else:
                a(f"s_waitcnt vmcnt({cnt(t+1)})")
            for dt in range(9):
                n = 9*t + dt
                younger = min(RB-1, NT-1-n)
                a(f"s_waitcnt lgkmcnt({2*younger})")
                br = BR + 4*(n % RB)
                for mt in range(2):
                    c = f"v[{acc(mt,dt)}:{acc(mt,dt)+3}]"
                    src_c = c if t > 0 else "0"
                    ar = AS[t % NA] + 4*mt
                    a(f"v_mfma_f32_16x16x32_bf16 {c}, v[{br}:{br+3}], v[{ar}:{ar+3}], {src_c}")
                if dt == 1 and t < NST-1:
                    if t + 1 <= 2: nD = cnt(t+2)
                    else: nD = 2 + cnt(t+2)
                    a(f"s_waitcnt vmcnt({nD})")
                    a("s_barrier")
                if n + RB < NT: readB(n + RB)
                if t + 3 < NST:
                    if 2 <= dt <= 4: dma_piece(t+3, dt-2)
                    if 5 <= dt <= 6: loadA_piece(t+3, dt-5)
    a(("""
    v_and_b32 v1, 63, v0
    ; partial store offset: ((ks*128 + st0 + kg)*36 + nblk*9)*1024 + lane*16   (keep mt = kg)
    s_lshl_b32 s34, s38, 7
    s_add_u32 s34, s34, s32
    s_add_u32 s34, s34, s26
    s_mul_i32 s34, s34, 36
    s_mul_i32 s35, s28, 9
    s_add_u32 s34, s34, s35
    s_lshl_b32 s34, s34, PSH
    v_lshlrev_b32 v12, PLS, v1
    v_add_u32 v12, s34, v12
    s_mul_i32 s34, s24, 9216
    v_lshlrev_b32 v13, 4, v1
    v_add_u32 v13, s34, v13                  ; own exchange region
    s_xor_b32 s35, s24, 4
    s_mul_i32 s35, s35, 9216
    v_lshlrev_b32 v14, 4, v1
    v_add_u32 v14, s35, v14                  ; partner region
    """).replace("PSH", "9" if BF16_PART else "10").replace("PLS", "3" if BF16_PART else "4"))
    a("s_nop 7")
    if G2_STAMP: a("s_memtime s[52:53]"); a("s_waitcnt lgkmcnt(0)")
    a("s_barrier")
    a("s_cmp_eq_u32 s26, 0")
    a("s_cbranch_scc0 g2_ep1")
    FREG = 0
    YREG = 18432
    for kg in range(2):
        if kg == 1: a.label("g2_ep1")
        send = 1 - kg; keep = kg
        for dt in range(9):
            c = acc(send, dt)
            a(f"ds_write_b128 v13, v[{c}:{c+3}] offset:{dt*1024}")
        a("s_waitcnt lgkmcnt(0)")
        a("s_barrier")
        for dt in range(9):
            c = acc(send, dt)
            a(f"ds_read_b128 v[{c}:{c+3}], v14 offset:{dt*1024}")
        for dt in range(9):
            c = acc(send, dt); k = acc(keep, dt)
            a(f"s_waitcnt lgkmcnt({8-dt})")
            for i in range(4):
                a(f"v_add_f32 v{k+i}, v{k+i}, v{c+i}")
            if not FUSE_FINAL and not BF16_PART:
                a(f"s_mov_b32 s36, {dt*1024}")
                a(f"buffer_store_dwordx4 v[{k}:{k+3}], v12, s[20:23], s36 offen sc1")
            if not FUSE_FINAL and BF16_PART:
                a(f"v_cvt_pk_bf16_f32 v{k}, v{k}, v{k+1}")
                a(f"v_cvt_pk_bf16_f32 v{k+1}, v{k+2}, v{k+3}")
                a(f"s_mov_b32 s36, {dt*512}")
                a(f"buffer_store_dwordx2 v[{k}:{k+1}], v12, s[20:23], s36 offen sc1")
        if not FUSE_FINAL:
            if G2_STAMP:
                a("""
                s_waitcnt vmcnt(0)
                s_memtime s[54:55]
                s_waitcnt lgkmcnt(0)
                s_sub_u32 s50, s50, s48
                s_sub_u32 s52, s52, s48
                s_sub_u32 s54, s54, s48
                v_mov_b32 v20, s50
                v_mov_b32 v21, s52
                v_mov_b32 v22, s54
                v_mov_b32 v23, 0
                s_lshl_b32 s36, s2, 3
                s_add_u32 s36, s36, s24
                s_lshl_b32 s36, s36, 4
                s_add_u32 s36, s36, 0x2F80000
                v_mov_b32 v24, s36
                s_add_u32 s56, s4, 0
                s_addc_u32 s57, s5, 0
                s_mov_b32 s58, 0x3000000
                s_mov_b32 s59, 0x00020000
                s_mov_b64 exec, 1
                buffer_store_dwordx4 v[20:23], v24, s[56:59], 0 offen
                """)
            a("s_endpgm")
            continue
        a("s_barrier")
        a("s_cmp_eq_u32 s25, s38")
        a(f"s_cbranch_scc1 g2_own{kg}")
        for dt in range(9):
            k = acc(keep, dt)
            a(f"s_mov_b32 s36, {dt*1024}")
            a(f"buffer_store_dwordx4 v[{k}:{k+3}], v12, s[20:23], s36 offen sc1")
        a("s_branch g2_fin")
        a.label(f"g2_own{kg}")
        a("v_lshlrev_b32 v15, 4, v1")
        for dt in range(9):
            k = acc(keep, dt)
            a(f"ds_write_b128 v15, v[{k}:{k+3}] offset:{FREG + (kg*9+dt)*1024}")
        if kg == 0: a("s_branch g2_fin")
    if FUSE_FINAL:
        a.label("g2_fin")
        srd(a, 40, 60, 61, SZ_ACT)
        srd(a, 44, 62, 63, SZ_ACT)
        srd(a, 68, 4, 5, SZ_ACT, G["WS_XN"])
        srd(a, 72, 4, 5, SZ_ACT, WS_Y2T)
        srd(a, 76, 4, 5, 0x3000, WS_FLAG)
        a(f"""
        ; quarter rows: stile base sq = mblk*8 + 2*ks ; wave w handles q = 3w..3w+2 (w<6): sr = q/9, dt = q%9
        s_lshl_b32 s32, s27, 3
        s_lshl_b32 s33, s38, 1
        s_add_u32 s32, s32, s33                  ; sq
        s_mul_i32 s33, s24, 3                    ; q0 = 3w
        s_cmp_ge_u32 s33, 9
        s_cselect_b32 s34, 1, 0                  ; sr
        s_mul_i32 s35, s34, 9
        s_sub_u32 s35, s33, s35                  ; dt0 (0,3,6)
        s_add_u32 s39, s32, s34
        s_mul_i32 s66, s28, 9
        s_add_u32 s66, s66, s35
        v_and_b32 v20, 15, v1
        s_lshl_b32 s36, s39, 4
        v_add_u32 v20, s36, v20
        v_mul_u32_u24 v20, 1152, v20
        v_lshrrev_b32 v21, 4, v1
        v_lshl_add_u32 v20, v21, 3, v20
        s_lshl_b32 s36, s66, 5
        v_add_u32 v20, s36, v20
        ; partial offset (split 0): (stile*36 + dtile_g0)*1024 + lane*16
        s_mul_i32 s36, s39, 36
        s_add_u32 s36, s36, s66
        s_lshl_b32 s36, s36, 10
        v_lshlrev_b32 v21, 4, v1
        v_add_u32 v21, s36, v21                  ; v21
        ; own tile LDS addr: FREG + q0*1024 + lane*16
        s_lshl_b32 s36, s33, 10
        v_lshlrev_b32 v22, 4, v1
        v_add_u32 v22, s36, v22                  ; v22
        v_lshrrev_b32 v23, 1, v0
        v_and_b32 v24, 1, v0
        s_mul_i32 s36, s28, 144
        v_add_u32 v25, s36, v23
        v_lshlrev_b32 v25, 12, v25
        v_lshl_add_u32 v25, v24, 5, v25
        s_lshl_b32 s36, s32, 5
        v_add_u32 v25, s36, v25                  ; v25 global
        v_mul_u32_u24 v26, 96, v23
        v_lshl_add_u32 v26, v24, 5, v26
        v_add_u32 v26, {YREG}, v26
        v_lshrrev_b32 v27, 2, v1
        s_lshl_b32 s36, s35, 4
        v_add_u32 v27, s36, v27
        v_mul_u32_u24 v27, 96, v27
        v_and_b32 v28, 3, v1
        v_lshl_add_u32 v27, v28, 3, v27
        s_lshl_b32 s36, s34, 5
        s_add_u32 s36, s36, {YREG}
        v_add_u32 v27, s36, v27                  ; v27
        s_waitcnt vmcnt(0) lgkmcnt(0)
        s_barrier                                ; B3
        s_cmp_lg_u32 s24, 0
        s_cbranch_scc1 g2_nopoll
        s_lshl_b32 s36, s27, 2
        s_add_u32 s36, s36, s28
        s_lshl_b32 s36, s36, 6                   ; *64 B
        v_mov_b32 v31, s36
        s_lshl_b32 s37, s38, 2
        s_add_u32 s37, s37, s36
        v_mov_b32 v32, s37
        v_mov_b32 v33, 1
        s_mov_b64 exec, 1
        buffer_store_dword v33, v32, s[76:79], 0 offen sc1
        s_mov_b32 s36, 0xffffffff
        s_mov_b32 s37, 0xf
        s_mov_b64 exec, s[36:37]                 ; 36 lanes
        s_mul_i32 s36, s28, 576
        s_add_u32 s36, s36, 0x2000
        v_lshlrev_b32 v30, 4, v1
        v_add_u32 v30, s36, v30
        s_mov_b32 s67, 0
        """)
        a.label("g2_poll")
        a(f"""
        buffer_load_dwordx4 v[48:51], v30, s[76:79], 0 offen sc1
        buffer_load_dwordx4 v[52:55], v31, s[76:79], 0 offen sc1
        s_waitcnt vmcnt(0)
        v_min_u32 v48, v48, v49
        v_min_u32 v50, v50, v51
        v_min_u32 v52, v52, v53
        v_min_u32 v54, v54, v55
        v_min_u32 v48, v48, v50
        v_min_u32 v52, v52, v54
        v_min_u32 v48, v48, v52
        v_cmp_eq_u32 vcc, 0, v48
        s_add_u32 s67, s67, 1
        s_cmp_ge_u32 s67, 0x400000
        s_cbranch_scc1 g2_polldone
        s_cmp_eq_u64 vcc, 0
        s_cbranch_scc1 g2_polldone
        s_sleep 2
        s_branch g2_poll
        """)
        a.label("g2_polldone")
        a("s_mov_b64 exec, -1")
        a.label("g2_nopoll")
        a("""
        s_mul_i32 s36, s39, 18
        s_lshl_b32 s36, s36, 10
        v_lshlrev_b32 v29, 4, v1
        v_add_u32 v29, s36, v29
        """)
        for j in range(3):
            a(f"""
            s_add_u32 s36, s66, {j}
            s_lshr_b32 s37, s36, 1
            s_lshl_b32 s37, s37, 10
            s_and_b32 s36, s36, 1
            s_lshl_b32 s36, s36, 3
            s_add_u32 s36, s36, s37
            buffer_load_dwordx2 v[{36+4*j}:{37+4*j}], v20, s[40:43], 0 offen offset:{32*j}
            buffer_load_dwordx2 v[{38+4*j}:{39+4*j}], v29, s[68:71], s36 offen
            """)
        a("""
        s_barrier                                ; B4
        v_cmp_gt_u32 vcc, 288, v0
        s_and_saveexec_b64 s[82:83], vcc
        s_cbranch_execz g2_noy
        buffer_load_dwordx4 v[48:51], v25, s[72:75], 0 offen sc1
        buffer_load_dwordx4 v[52:55], v25, s[72:75], 0 offen offset:16 sc1
        s_waitcnt vmcnt(0)
        ds_write_b128 v26, v[48:51]
        ds_write_b128 v26, v[52:55] offset:16
        """)
        a.label("g2_noy")
        a("s_mov_b64 exec, s[82:83]")
        a("s_cmp_ge_u32 s24, 6")
        a("s_cbranch_scc1 g2_skipld")
        for i in range(1, 4):
            a(f"""
            s_add_u32 s36, s38, {i}
            s_and_b32 s36, s36, 3
            s_mul_i32 s36, s36, {128*36*1024}
            """)
            for j in range(3):
                r = 56 + 12*(i-1) + 4*j
                a(f"buffer_load_dwordx4 v[{r}:{r+3}], v21, s[20:23], s36 offen offset:{1024*j} sc1")
        for j in range(3):
            a(f"ds_read_b128 v[{92+4*j}:{95+4*j}], v22 offset:{1024*j}")
        a.label("g2_skipld")
        a("s_waitcnt lgkmcnt(0)")
        a("s_barrier                                ; B5")
        a("s_cmp_ge_u32 s24, 6")
        a("s_cbranch_scc1 g2_done")
        for j in range(3):
            a(f"ds_read_b64_tr_b16 v[{104+2*j}:{105+2*j}], v27 offset:{16*96*j}")
        a("s_waitcnt vmcnt(0) lgkmcnt(0)")
        for j in range(3):
            P = 92 + 4*j; X = 36 + 4*j; XN = 38 + 4*j; Y = 104 + 2*j
            for i in range(3):
                o = 56 + 12*i + 4*j
                for e in range(4):
                    a(f"v_add_f32 v{P+e}, v{P+e}, v{o+e}")
            a(f"""
            v_cvt_pk_bf16_f32 v112, v{P}, v{P+1}
            v_cvt_pk_bf16_f32 v113, v{P+2}, v{P+3}
            v_lshlrev_b32 v116, 16, v{XN}
            v_and_b32 v117, 0xffff0000, v{XN}
            v_lshlrev_b32 v118, 16, v{XN+1}
            v_and_b32 v119, 0xffff0000, v{XN+1}
            v_lshlrev_b32 v120, 16, v{Y}
            v_and_b32 v121, 0xffff0000, v{Y}
            v_lshlrev_b32 v122, 16, v{Y+1}
            v_and_b32 v123, 0xffff0000, v{Y+1}
            v_mul_f32 v116, v116, v120
            v_mul_f32 v117, v117, v121
            v_mul_f32 v118, v118, v122
            v_mul_f32 v119, v119, v123
            v_cvt_pk_bf16_f32 v114, v116, v117
            v_cvt_pk_bf16_f32 v115, v118, v119
            v_lshlrev_b32 v116, 16, v{X}
            v_and_b32 v117, 0xffff0000, v{X}
            v_lshlrev_b32 v118, 16, v{X+1}
            v_and_b32 v119, 0xffff0000, v{X+1}
            v_lshlrev_b32 v120, 16, v114
            v_and_b32 v121, 0xffff0000, v114
            v_lshlrev_b32 v122, 16, v115
            v_and_b32 v123, 0xffff0000, v115
            v_add_f32 v116, v116, v120
            v_add_f32 v117, v117, v121
            v_add_f32 v118, v118, v122
            v_add_f32 v119, v119, v123
            v_cvt_pk_bf16_f32 v114, v116, v117
            v_cvt_pk_bf16_f32 v115, v118, v119
            v_lshlrev_b32 v116, 16, v114
            v_and_b32 v117, 0xffff0000, v114
            v_lshlrev_b32 v118, 16, v115
            v_and_b32 v119, 0xffff0000, v115
            v_lshlrev_b32 v120, 16, v112
            v_and_b32 v121, 0xffff0000, v112
            v_lshlrev_b32 v122, 16, v113
            v_and_b32 v123, 0xffff0000, v113
            v_add_f32 v116, v116, v120
            v_add_f32 v117, v117, v121
            v_add_f32 v118, v118, v122
            v_add_f32 v119, v119, v123
            v_cvt_pk_bf16_f32 v{P}, v116, v117
            v_cvt_pk_bf16_f32 v{P+1}, v118, v119
            buffer_store_dwordx2 v[{P}:{P+1}], v20, s[44:47], 0 offen offset:{32*j}
            """)
        a("s_endpgm")

    if not CONV_IN_G1:
        gen_conv(a, G, False)
    a.label("g2_done")
    a("s_endpgm")

def gen_conv(a0, G, in_g1, part=0):
    import re as _re
    SM = {12:72,13:73,14:74,15:75,16:76,17:77,18:78,19:79,20:80,21:81,22:82,23:83,40:84,41:85,42:86,43:87,
          25:88,26:89,27:90,28:91,30:92,31:93,32:94,33:95,34:60}
    class _R:
        def __init__(self): self.on = True
        def _m(self, t):
            if not in_g1: return t
            t = _re.sub(r"s\[(\d+):(\d+)\]", lambda m: "s[%d:%d]" % (SM.get(int(m.group(1)), int(m.group(1))), SM.get(int(m.group(2)), int(m.group(2)))), t)
            return _re.sub(r"\bs(\d+)\b", lambda m: "s%d" % SM.get(int(m.group(1)), int(m.group(1))), t)
        def __call__(self, t):
            if self.on: a0(self._m(t))
        def label(self, t):
            if self.on: a0.label(t)
        def raw(self, t):
            if self.on: a0.raw(t)
    a = _R()
    if part == 2: a.on = False
    srd = G["srd"]
    WS_KVT = G["WS_KVT"]; WS_Y2T = G["WS_Y2T"]; SZ_ACT = G["SZ_ACT"]
    DONE = ("g1_cskip" if part == 1 else "g1_done") if in_g1 else "g2_done"
    CB = [12728, 0, 4160, 8320]
    UOFF = 16896
    UZ = 31
    CREG = CONV_REG
    a.label("conv_start")
    a(f"s_cmp_ge_u32 s24, {2*CONV_PER_WG}")
    a(f"s_cbranch_scc1 {DONE}")
    srd(a, 12, 4, 5, SZ_ACT, WS_KVT)
    srd(a, 16, *((98, 99) if in_g1 else (8, 9)), SZ_ACT)
    srd(a, 20, 4, 5, SZ_ACT, WS_Y2T)
    srd(a, 40, *((100, 101) if in_g1 else (10, 11)), 576*2)
    CHAN = ("s_lshl_b32 s25, s26, 8\n    s_add_u32 s25, s25, s2\n    s_cmp_ge_u32 s25, 576\n    s_cbranch_scc1 " + DONE) if in_g1 else f"s_sub_u32 s25, s2, 256\n    s_mul_i32 s25, s25, {CONV_PER_WG}\n    s_add_u32 s25, s25, s26"
    a(f"""
    s_lshr_b32 s26, s24, 1
    s_and_b32 s27, s24, 1                    ; parity
    {CHAN}
    s_mul_i32 s30, s26, {CREG}
    s_lshl_b32 s31, s25, 12                  ; d*4096
    s_lshl_b32 s28, s27, 11
    v_lshlrev_b32 v2, 4, v1                  ; lane*16
    v_add_u32 v3, s30, v2
    v_add_u32 v4, s28, v3
    s_lshl_b32 s32, s25, 1
    v_mov_b32 v8, s32
    buffer_load_ushort v9, v8, s[40:43], 0 offen
    s_add_u32 s34, s31, s28
    """)
    for i in range(2):
        a(f"s_add_u32 s33, s34, {i*1024}")
        a(f"buffer_load_dwordx4 v[{32+4*i}:{35+4*i}], v2, s[12:15], s33 offen")
        a(f"buffer_load_dwordx4 v[{48+6*i}:{51+6*i}], v2, s[16:19], s33 offen")
        a(f"buffer_load_dwordx2 v[{52+6*i}:{53+6*i}], v2, s[16:19], s33 offen offset:16")
    if part == 1:
        a.label("g1_cskip")
        return
    if part == 2:
        a.on = True
        DONE = "g1_done"
        a(f"s_cmp_ge_u32 s24, {2*CONV_PER_WG}")
        a("s_cbranch_scc1 g1_done")
        a("s_cmp_ge_u32 s25, 576")
        a("s_cbranch_scc1 g1_done")
    a(f"""
    v_mov_b32 v60, 0
    v_mov_b32 v61, 0
    v_mov_b32 v62, 0
    v_mov_b32 v63, 0
    s_cmp_lg_u32 s27, 0
    s_cbranch_scc1 conv_nozero
    ds_write_b128 v3, v[60:63] offset:{UOFF}
    ds_write_b128 v3, v[60:63] offset:{UOFF+1024}
    ds_write_b128 v3, v[60:63] offset:{UOFF+2048}
    s_mov_b64 exec, 0xf
    ds_write_b128 v3, v[60:63] offset:{CB[1]}
    ds_write_b128 v3, v[60:63] offset:{CB[2]}
    ds_write_b128 v3, v[60:63] offset:{CB[3]}
    ds_write_b64 v3, v[60:61] offset:{CB[0]}
    ds_write_b64 v3, v[60:61] offset:{CB[0]+8}
    s_mov_b64 exec, -1
    """)
    a.label("conv_nozero")
    a(f"""
    v_lshrrev_b32 v20, 2, v1
    v_mul_u32_u24 v20, 80, v20
    v_and_b32 v21, 3, v1
    v_lshl_add_u32 v20, v21, 4, v20
    v_add_u32 v20, s30, v20
    s_mul_i32 s33, s27, {32*80}
    v_add_u32 v20, s33, v20
    v_and_b32 v10, 31, v1                    ; r / n
    v_lshrrev_b32 v11, 5, v1                 ; kh
    v_lshlrev_b32 v12, 3, v11
    v_sub_u32 v12, v10, v12
    v_add_u32 v12, 9, v12
    v_and_b32 v13, 3, v12                    ; t
    v_sub_u32 v12, v12, v13
    v_lshlrev_b32 v12, 1, v12
    v_add_u32 v14, -1, v13
    v_mul_u32_u24 v15, 4160, v14
    v_cmp_eq_u32 vcc, 0, v13
    v_mov_b32 v16, {CB[0]}
    s_nop 1
    v_cndmask_b32 v15, v15, v16, vcc
    v_add_u32 v12, v12, v15
    v_add_u32 v12, s30, v12
    v_mul_u32_u24 v13, 80, v10
    v_lshl_add_u32 v13, v11, 4, v13
    v_add_u32 v13, {UOFF}, v13
    v_add_u32 v13, s30, v13
    v_add_u32 v14, {32*80}, v13
    s_waitcnt vmcnt({10 if in_g1 else 0}) lgkmcnt(0)
    v_lshlrev_b32 v9, 16, v9                 ; D as f32
    """)
    for i in range(2):
        a(f"ds_write_b128 v20, v[{32+4*i}:{35+4*i}] offset:{UOFF + (UZ + 16*i)*80}")
    a(f"""
    s_cmp_lg_u32 s27, 0
    s_cbranch_scc1 conv_nospec
    s_mov_b64 exec, 1
    v_lshlrev_b32 v22, 16, v48               ; K0<<16
    v_alignbit_b32 v23, v49, v48, 16
    ds_write_b32 v3, v22 offset:{CB[1]+60}
    ds_write_b32 v3, v48 offset:{CB[2]+60}
    ds_write_b32 v3, v22 offset:{CB[3]+56}
    ds_write_b32 v3, v23 offset:{CB[3]+60}
    s_mov_b64 exec, -1
    """)
    a.label("conv_nospec")
    for i in range(2):
        d = 48 + 6*i
        a(f"""
        v_alignbit_b32 v72, v{d+1}, v{d}, 16
        v_alignbit_b32 v73, v{d+2}, v{d+1}, 16
        v_alignbit_b32 v74, v{d+3}, v{d+2}, 16
        v_alignbit_b32 v75, v{d+4}, v{d+3}, 16
        v_mov_b32 v76, v73
        v_mov_b32 v77, v74
        v_mov_b32 v78, v75
        v_alignbit_b32 v79, v{d+5}, v{d+4}, 16
        v_mov_b32 v80, v{d+1}
        v_mov_b32 v81, v{d+2}
        v_mov_b32 v82, v{d+3}
        v_mov_b32 v83, v{d+4}
        ds_write_b64 v4, v[{d}:{d+1}] offset:{CB[0] + 64 + 1024*i}
        ds_write_b64 v4, v[{d+2}:{d+3}] offset:{CB[0] + 72 + 1024*i}
        ds_write_b128 v4, v[72:75] offset:{CB[1] + 64 + 1024*i}
        ds_write_b128 v4, v[80:83] offset:{CB[2] + 64 + 1024*i}
        ds_write_b128 v4, v[76:79] offset:{CB[3] + 64 + 1024*i}
        s_waitcnt lgkmcnt(0)
        """)
    a("s_barrier")
    if G2_STAMP: a("s_memtime s[50:51]"); a("s_waitcnt lgkmcnt(0)")
    P = 3
    CA = 16; CB0 = 32; CB1 = 48; C0 = 64; C1 = 80
    def nreads(i): return 4 if i <= 63 else 3
    def boff(o):
        if o % 2 == 0:
            p = o // 2; return (UZ - p)*80
        else:
            p = (o - 1)//2; return (UZ - p - 1)*80 + 32
    def cread(i, sl):
        o = i - 1
        a(f"ds_read_b64 v[{CA+4*sl}:{CA+4*sl+1}], v12 offset:{32*i}")
        a(f"ds_read_b64 v[{CA+4*sl+2}:{CA+4*sl+3}], v12 offset:{32*i+8}")
        if boff(o) >= 0: a(f"ds_read_b128 v[{CB1+4*sl}:{CB1+4*sl+3}], v14 offset:{boff(o)}")
        else: a(f"ds_read_b128 v[{CB1+4*sl}:{CB1+4*sl+3}], v13 offset:{boff(o) + 32*80}")
        if i <= 63:
            a(f"ds_read_b128 v[{CB0+4*sl}:{CB0+4*sl+3}], v13 offset:{boff(o)}")
    a("s_cmp_lg_u32 s27, 0")
    a("s_cbranch_scc1 conv_odd")
    for par in range(2):
        if par == 1: a.label("conv_odd")
        steps = list(range(par, 128, 2))
        for j in range(P): cread(steps[j], j)
        for j, i in enumerate(steps):
            sl = j % P
            younger = sum(nreads(x) for x in steps[j+1:j+P])
            a(f"s_waitcnt lgkmcnt({younger})")
            c1 = f"v[{C1}:{C1+15}]"; c0 = f"v[{C0}:{C0+15}]"
            a(f"v_mfma_f32_32x32x16_bf16 {c1}, v[{CA+4*sl}:{CA+4*sl+3}], v[{CB1+4*sl}:{CB1+4*sl+3}], {c1 if j>0 else '0'}")
            if i <= 63:
                a(f"v_mfma_f32_32x32x16_bf16 {c0}, v[{CA+4*sl}:{CA+4*sl+3}], v[{CB0+4*sl}:{CB0+4*sl+3}], {c0 if j>0 else '0'}")
            if j + P < len(steps): cread(steps[j+P], (j+P) % P)
        a("s_nop 7")
        a("s_nop 7")
        if G2_STAMP: a("s_memtime s[52:53]"); a("s_waitcnt lgkmcnt(0)")
        a("s_barrier")
        if par == 1:
            for q in range(8):
                a(f"ds_write_b128 v3, v[{C0+4*q}:{C0+4*q+3}] offset:{q*1024}")
            a("s_waitcnt lgkmcnt(0)")
            a("s_barrier")
            a("s_endpgm")
        else:
            a("s_barrier")
            for q in range(8):
                a(f"ds_read_b128 v[{16+4*q}:{19+4*q}], v3 offset:{q*1024}")
            for q in range(8):
                a(f"s_waitcnt lgkmcnt({7-q})")
                for e in range(4):
                    a(f"v_add_f32 v{C0+4*q+e}, v{C0+4*q+e}, v{16+4*q+e}")
            a("s_branch conv_epi")
    a.label("conv_epi")
    a(f"""
    v_mul_u32_u24 v15, 80, v10
    v_lshlrev_b32 v16, 3, v11
    v_sub_u32 v16, 8, v16
    v_add_u32 v15, v15, v16
    v_add_u32 v15, {UOFF + UZ*80}, v15
    v_add_u32 v15, s30, v15
    v_lshlrev_b32 v16, 6, v10
    v_lshl_add_u32 v16, v11, 3, v16
    v_add_u32 v17, s30, v16
    v_add_u32 v16, s31, v2
    """)
    for T in range(2):
        for q in range(4):
            r = 100 + 2*(T*4+q)
            a(f"ds_read_b64 v[{r}:{r+1}], v15 offset:{2560*T + 16*q}")
    a("s_nop 7")
    a("s_nop 3")
    a("s_waitcnt lgkmcnt(0)")
    for T in range(2):
        C = C0 if T == 0 else C1
        for q in range(4):
            r = 100 + 2*(T*4+q); c = C + 4*q
            a(f"""
            v_and_b32 v20, 0xffff0000, v{r+1}
            v_lshlrev_b32 v21, 16, v{r+1}
            v_and_b32 v22, 0xffff0000, v{r}
            v_lshlrev_b32 v23, 16, v{r}
            v_mul_f32 v20, v20, v9
            v_mul_f32 v21, v21, v9
            v_mul_f32 v22, v22, v9
            v_mul_f32 v23, v23, v9
            v_cvt_pk_bf16_f32 v24, v20, v21
            v_cvt_pk_bf16_f32 v25, v22, v23
            v_cvt_pk_bf16_f32 v26, v{c}, v{c+1}
            v_cvt_pk_bf16_f32 v27, v{c+2}, v{c+3}
            v_lshlrev_b32 v20, 16, v24
            v_and_b32 v21, 0xffff0000, v24
            v_lshlrev_b32 v22, 16, v25
            v_and_b32 v23, 0xffff0000, v25
            v_lshlrev_b32 v28, 16, v26
            v_and_b32 v29, 0xffff0000, v26
            v_lshlrev_b32 v30, 16, v27
            v_and_b32 v31, 0xffff0000, v27
            v_add_f32 v20, v20, v28
            v_add_f32 v21, v21, v29
            v_add_f32 v22, v22, v30
            v_add_f32 v23, v23, v31
            v_cvt_pk_bf16_f32 v{r}, v20, v21
            v_cvt_pk_bf16_f32 v{r+1}, v22, v23
            ds_write_b64 v17, v[{r}:{r+1}] offset:{2048*T + 16*q}
            """)
    a("s_waitcnt lgkmcnt(0)")
    for i in range(4):
        a(f"ds_read_b128 v[{32+4*i}:{35+4*i}], v3 offset:{1024*i}")
    for i in range(4):
        a(f"s_waitcnt lgkmcnt({3-i})")
        a(f"buffer_store_dwordx4 v[{32+4*i}:{35+4*i}], v16, s[20:23], 0 offen offset:{1024*i}" + (" sc1" if FUSE_FINAL else ""))
    if G2_STAMP:
        a("""
        s_waitcnt vmcnt(0)
        s_memtime s[54:55]
        s_waitcnt lgkmcnt(0)
        s_sub_u32 s54, s54, s48
        s_sub_u32 s50, s50, s48
        s_sub_u32 s52, s52, s48
        v_mov_b32 v20, s54
        v_mov_b32 v21, s50
        v_mov_b32 v22, s52
        v_mov_b32 v23, 0
        s_lshl_b32 s36, s25, 4
        s_add_u32 s36, s36, 0x2FC0000
        v_mov_b32 v24, s36
        s_add_u32 s56, s4, 0
        s_addc_u32 s57, s5, 0
        s_mov_b32 s58, 0x3000000
        s_mov_b32 s59, 0x00020000
        s_mov_b64 exec, 1
        buffer_store_dwordx4 v[20:23], v24, s[56:59], 0 offen
        """)
    if FUSE_FINAL:
        srd(a, 76, 4, 5, 0x3000, WS_FLAG)
        a("""
        s_lshl_b32 s35, s25, 2
        s_add_u32 s35, s35, 0x2000
        v_mov_b32 v30, s35
        v_mov_b32 v31, 1
        s_waitcnt vmcnt(0)
        s_mov_b64 exec, 1
        buffer_store_dword v31, v30, s[76:79], 0 offen sc1
        """)


def gen_k4(a, G):
    srd = G["srd"]
    WS_XN = G["WS_XN"]; WS_PART = G["WS_PART"]; WS_Y2T = G["WS_Y2T"]
    SZ_ACT = G["SZ_ACT"]; SZ_PART = G["SZ_PART"]
    G["kernel_header"](a, "final_kernel")
    a(f"""
    s_load_dwordx2 s[4:5], s[0:1], 96        ; ws
    s_load_dwordx2 s[6:7], s[0:1], 0         ; q (x)
    s_load_dwordx2 s[8:9], s[0:1], 80        ; out
    s_cmp_ge_u32 s2, 288
    s_cbranch_scc1 k4_done
    s_mov_b32 s34, 0x1c71c71d
    s_mul_hi_u32 s35, s2, s34                ; sgrp = b/9
    s_mul_i32 s36, s35, 9
    s_sub_u32 s36, s2, s36                   ; dgrp
    v_lshrrev_b32 v1, 6, v0
    s_nop 0
    v_readfirstlane_b32 s24, v1              ; wave
    v_and_b32 v1, 63, v0
    s_waitcnt lgkmcnt(0)
    """)
    srd(a, 12, 4, 5, SZ_ACT, WS_Y2T)
    srd(a, 16, 4, 5, SZ_PART, WS_PART)
    srd(a, 20, 4, 5, SZ_ACT, WS_XN)
    srd(a, 40, 6, 7, SZ_ACT)
    srd(a, 44, 8, 9, SZ_ACT)
    a(f"""
    v_lshrrev_b32 v2, 2, v0
    v_and_b32 v3, 3, v0
    s_lshl_b32 s37, s36, 6                   ; 64*dgrp
    v_add_u32 v4, s37, v2
    v_lshlrev_b32 v4, 12, v4
    v_lshl_add_u32 v4, v3, 5, v4
    s_lshl_b32 s38, s35, 7                   ; 128*sgrp
    v_add_u32 v4, s38, v4
    buffer_load_dwordx4 v[8:11], v4, s[12:15], 0 offen
    buffer_load_dwordx4 v[12:15], v4, s[12:15], 0 offen offset:16
    v_mul_u32_u24 v5, 160, v2
    v_lshl_add_u32 v5, v3, 5, v5
    s_lshl_b32 s25, s35, 2
    s_add_u32 s25, s25, s24
    ; partial offset: (stile*36 + 4*dgrp)*1024 + lane*16   (+ks*128*36*1024, +dt*1024)
    s_mul_i32 s26, s25, 36
    s_lshl_b32 s27, s36, 2
    s_add_u32 s26, s26, s27
    s_lshl_b32 s26, s26, {9 if BF16_PART else 10}
    v_lshlrev_b32 v6, {3 if BF16_PART else 4}, v1
    v_add_u32 v6, s26, v6
    v_and_b32 v7, 15, v1
    s_lshl_b32 s27, s25, 4
    v_add_u32 v7, s27, v7
    v_mul_u32_u24 v7, 1152, v7
    v_lshrrev_b32 v16, 4, v1
    v_lshl_add_u32 v7, v16, 3, v7
    s_lshl_b32 s27, s36, 7
    v_add_u32 v7, s27, v7
    ; xn offset: ((stile*18 + 2*dgrp)*64 + lane)*16  (+ (dt>>1)*1024 + (dt&1)*8)
    s_mul_i32 s27, s25, 18
    s_lshl_b32 s28, s36, 1
    s_add_u32 s27, s27, s28
    s_lshl_b32 s27, s27, 10
    v_lshlrev_b32 v17, 4, v1
    v_add_u32 v17, s27, v17
    v_lshrrev_b32 v18, 2, v1
    v_mul_u32_u24 v18, 160, v18
    v_and_b32 v19, 3, v1
    v_lshl_add_u32 v18, v19, 3, v18
    s_lshl_b32 s27, s24, 5
    v_add_u32 v18, s27, v18
    """)
    for dt in range(4):
        for ks in range(4):
            if BF16_PART:
                a(f"s_mov_b32 s27, {ks*128*36*512 + dt*512}")
                a(f"buffer_load_dwordx2 v[{24+16*dt+4*ks}:{25+16*dt+4*ks}], v6, s[16:19], s27 offen")
            else:
                a(f"s_mov_b32 s27, {ks*128*36*1024 + dt*1024}")
                a(f"buffer_load_dwordx4 v[{24+16*dt+4*ks}:{27+16*dt+4*ks}], v6, s[16:19], s27 offen")
        a(f"buffer_load_dwordx2 v[{88+4*dt}:{89+4*dt}], v7, s[40:43], 0 offen offset:{dt*32}")
        a(f"buffer_load_dwordx2 v[{90+4*dt}:{91+4*dt}], v17, s[20:23], 0 offen offset:{(dt>>1)*1024 + (dt&1)*8}")
    a("""
    s_waitcnt vmcnt(24)
    ds_write_b128 v5, v[8:11]
    ds_write_b128 v5, v[12:15] offset:16
    s_waitcnt lgkmcnt(0)
    s_barrier
    """)
    for dt in range(4):
        a(f"ds_read_b64_tr_b16 v[{104+2*dt}:{105+2*dt}], v18 offset:{dt*2560}")
    for dt in range(4):
        P = 24 + 16*dt; X = 88 + 4*dt; XN = 90 + 4*dt; Y = 104 + 2*dt
        a(f"s_waitcnt vmcnt({18 - 6*dt}) lgkmcnt({3-dt})")
        if BF16_PART:
            for ks in range(4):
                q = P + 4*ks
                a(f"v_and_b32 v{q+3}, 0xffff0000, v{q+1}")
                a(f"v_lshlrev_b32 v{q+2}, 16, v{q+1}")
                a(f"v_and_b32 v{q+1}, 0xffff0000, v{q}")
                a(f"v_lshlrev_b32 v{q}, 16, v{q}")
        for i in range(4):
            a(f"v_add_f32 v{P+i}, v{P+i}, v{P+4+i}")
            a(f"v_add_f32 v{P+8+i}, v{P+8+i}, v{P+12+i}")
            a(f"v_add_f32 v{P+i}, v{P+i}, v{P+8+i}")
        a(f"""
        v_cvt_pk_bf16_f32 v112, v{P}, v{P+1}
        v_cvt_pk_bf16_f32 v113, v{P+2}, v{P+3}
        v_lshlrev_b32 v116, 16, v{XN}
        v_and_b32 v117, 0xffff0000, v{XN}
        v_lshlrev_b32 v118, 16, v{XN+1}
        v_and_b32 v119, 0xffff0000, v{XN+1}
        v_lshlrev_b32 v120, 16, v{Y}
        v_and_b32 v121, 0xffff0000, v{Y}
        v_lshlrev_b32 v122, 16, v{Y+1}
        v_and_b32 v123, 0xffff0000, v{Y+1}
        v_mul_f32 v116, v116, v120
        v_mul_f32 v117, v117, v121
        v_mul_f32 v118, v118, v122
        v_mul_f32 v119, v119, v123
        v_cvt_pk_bf16_f32 v114, v116, v117
        v_cvt_pk_bf16_f32 v115, v118, v119
        v_lshlrev_b32 v116, 16, v{X}
        v_and_b32 v117, 0xffff0000, v{X}
        v_lshlrev_b32 v118, 16, v{X+1}
        v_and_b32 v119, 0xffff0000, v{X+1}
        v_lshlrev_b32 v120, 16, v114
        v_and_b32 v121, 0xffff0000, v114
        v_lshlrev_b32 v122, 16, v115
        v_and_b32 v123, 0xffff0000, v115
        v_add_f32 v116, v116, v120
        v_add_f32 v117, v117, v121
        v_add_f32 v118, v118, v122
        v_add_f32 v119, v119, v123
        v_cvt_pk_bf16_f32 v114, v116, v117
        v_cvt_pk_bf16_f32 v115, v118, v119
        v_lshlrev_b32 v116, 16, v114
        v_and_b32 v117, 0xffff0000, v114
        v_lshlrev_b32 v118, 16, v115
        v_and_b32 v119, 0xffff0000, v115
        v_lshlrev_b32 v120, 16, v112
        v_and_b32 v121, 0xffff0000, v112
        v_lshlrev_b32 v122, 16, v113
        v_and_b32 v123, 0xffff0000, v113
        v_add_f32 v116, v116, v120
        v_add_f32 v117, v117, v121
        v_add_f32 v118, v118, v122
        v_add_f32 v119, v119, v123
        v_cvt_pk_bf16_f32 v{P}, v116, v117
        v_cvt_pk_bf16_f32 v{P+1}, v118, v119
        """)
    a("""
    ; stage through LDS for full-line stores: region 10240 + w*2304, pitch 144
    s_mul_i32 s27, s24, 2304
    s_add_u32 s27, s27, 10240
    v_and_b32 v112, 15, v1
    v_mul_u32_u24 v112, 144, v112
    v_lshrrev_b32 v113, 4, v1
    v_lshl_add_u32 v112, v113, 3, v112
    v_add_u32 v112, s27, v112
    v_lshrrev_b32 v113, 3, v1
    v_mul_u32_u24 v114, 144, v113
    v_and_b32 v115, 7, v1
    v_lshl_add_u32 v114, v115, 4, v114
    v_add_u32 v114, s27, v114
    s_lshl_b32 s27, s25, 4
    v_add_u32 v113, s27, v113
    v_mul_u32_u24 v113, 1152, v113
    v_lshl_add_u32 v113, v115, 4, v113
    s_lshl_b32 s27, s36, 7
    v_add_u32 v113, s27, v113
    """)
    for dt in range(4):
        P = 24 + 16*dt
        a(f"ds_write_b64 v112, v[{P}:{P+1}] offset:{dt*32}")
    a("""
    s_waitcnt lgkmcnt(0)
    ds_read_b128 v[116:119], v114
    ds_read_b128 v[120:123], v114 offset:1152
    s_movk_i32 s27, 9216
    s_waitcnt lgkmcnt(1)
    buffer_store_dwordx4 v[116:119], v113, s[44:47], 0 offen
    s_waitcnt lgkmcnt(0)
    buffer_store_dwordx4 v[120:123], v113, s[44:47], s27 offen
    """)
    a.label("k4_done")
    a("s_endpgm")
```

```python
import sys

NAME = "parallel_sum__ssm_conv_h3__glu_gated_bilinear__prompt"
S, D, F = 2048, 576, 4608
WS_XN   = 0
WS_KVT  = 0x240000
WS_H    = 0x480000
WS_Y2T  = 0x1680000
WS_PART = 0x18C0000
SZ_ACT  = S * D * 2
SZ_H    = S * F * 2
SZ_PART = 4 * S * D * 4
SZ_W    = D * F * 2

class A:
    def __init__(self):
        self.l = []
    def __call__(self, s):
        for line in s.strip("\n").split("\n"):
            self.l.append("    " + line.strip())
    def label(self, s):
        self.l.append(s + ":")
    def raw(self, s):
        self.l.append(s)
    def text(self):
        return "\n".join(self.l) + "\n"

def srd(a, dst, lo, hi, size, off=0):
    if off:
        a(f"s_add_u32 s{dst}, s{lo}, {off}")
        a(f"s_addc_u32 s{dst+1}, s{hi}, 0")
    else:
        a(f"s_mov_b32 s{dst}, s{lo}")
        a(f"s_mov_b32 s{dst+1}, s{hi}")
    a(f"s_mov_b32 s{dst+2}, {size}")
    a(f"s_mov_b32 s{dst+3}, 0x00020000")

def kernel_header(a, name):
    a.raw(f".globl {name}")
    a.raw(".p2align 8")
    a.raw(f".type {name},@function")
    a.label(name)

def kd(name, vgpr, sgpr):
    acc = (vgpr + 3) // 4 * 4
    return f""".amdhsa_kernel {name}
  .amdhsa_next_free_vgpr {vgpr}
  .amdhsa_next_free_sgpr {sgpr}
  .amdhsa_accum_offset {acc}
  .amdhsa_group_segment_fixed_size 0
  .amdhsa_kernarg_size 104
  .amdhsa_user_sgpr_count 2
  .amdhsa_user_sgpr_kernarg_segment_ptr 1
  .amdhsa_system_sgpr_workgroup_id_x 1
.end_amdhsa_kernel
"""

N_LN_WG = 64
N_KV_WG = 144
def gen_prep(a):
    kernel_header(a, "prep_kernel")
    a(f"""
    s_load_dwordx2 s[4:5], s[0:1], 0
    s_load_dwordx2 s[6:7], s[0:1], 8
    s_load_dwordx2 s[8:9], s[0:1], 16
    s_load_dwordx2 s[10:11], s[0:1], 24
    s_load_dwordx2 s[12:13], s[0:1], 96
    s_cmp_ge_u32 s2, {N_LN_WG + N_KV_WG}
    s_cbranch_scc1 prep_done
    s_waitcnt lgkmcnt(0)
    s_cmp_ge_u32 s2, {N_LN_WG}
    s_cbranch_scc1 prep_kv
    """)
    srd(a, 16, 4, 5, SZ_ACT)
    srd(a, 20, 12, 13, SZ_ACT, WS_XN)
    a(f"""
    s_lshl_b32 s3, s2, 5
    v_lshrrev_b32 v1, 3, v0
    v_add_u32 v1, s3, v1                     ; row
    v_and_b32 v2, 7, v0                      ; j
    s_movk_i32 s24, 1152
    v_mul_lo_u32 v3, v1, s24
    v_lshl_add_u32 v3, v2, 4, v3
    """)
    for i in range(9):
        a(f"buffer_load_dwordx4 v[{8+4*i}:{11+4*i}], v3, s[16:19], 0 offen offset:{i*128}")
    a(f"""
    v_lshrrev_b32 v4, 4, v1                  ; stile
    v_mul_u32_u24 v4, 18, v4
    v_lshrrev_b32 v5, 2, v2                  ; j>>2
    v_add_u32 v4, v4, v5
    v_lshlrev_b32 v4, 10, v4                 ; *(1024)
    v_and_b32 v5, 1, v2                      ; j&1
    v_lshlrev_b32 v5, 5, v5                  ; 2*(j&1)*16
    v_and_b32 v6, 15, v1                     ; srow
    v_add_u32 v5, v5, v6
    v_lshl_add_u32 v4, v5, 4, v4
    v_bfe_u32 v5, v2, 1, 1                   ; (j>>1)&1
    v_lshl_add_u32 v4, v5, 3, v4
    s_waitcnt vmcnt(0)
    """)
    X = 48
    for i in range(36):
        a(f"v_lshlrev_b32 v{X+2*i}, 16, v{8+i}")
        a(f"v_and_b32 v{X+2*i+1}, 0xffff0000, v{8+i}")
    for c in range(4):
        a(f"v_add_f32 v{120+c}, v{X+c}, v{X+4+c}")
    for i in range(2, 18):
        for c in range(4):
            a(f"v_add_f32 v{120+c}, v{120+c}, v{X+4*i+c}")
    a("""
    v_add_f32 v120, v120, v121
    v_add_f32 v122, v122, v123
    v_add_f32 v120, v120, v122
    s_nop 1
    v_add_f32_dpp v121, v120, v120 quad_perm:[1,0,3,2] row_mask:0xf bank_mask:0xf
    s_nop 1
    v_add_f32_dpp v120, v121, v121 quad_perm:[2,3,0,1] row_mask:0xf bank_mask:0xf
    s_nop 1
    v_add_f32_dpp v121, v120, v120 row_half_mirror row_mask:0xf bank_mask:0xf
    s_mov_b32 s25, 0x3ae38e39               ; 1/576
    v_mul_f32 v124, s25, v121
    """)
    for c in range(4):
        a(f"v_sub_f32 v125, v{X+c}, v124")
        a(f"v_mul_f32 v{120+c}, v125, v125")
    for i in range(1, 18):
        for c in range(4):
            a(f"v_sub_f32 v125, v{X+4*i+c}, v124")
            a(f"v_fmac_f32 v{120+c}, v125, v125")
    a("""
    v_add_f32 v120, v120, v121
    v_add_f32 v122, v122, v123
    v_add_f32 v120, v120, v122
    s_nop 1
    v_add_f32_dpp v121, v120, v120 quad_perm:[1,0,3,2] row_mask:0xf bank_mask:0xf
    s_nop 1
    v_add_f32_dpp v120, v121, v121 quad_perm:[2,3,0,1] row_mask:0xf bank_mask:0xf
    s_nop 1
    v_add_f32_dpp v121, v120, v120 row_half_mirror row_mask:0xf bank_mask:0xf
    v_mul_f32 v125, s25, v121
    v_cvt_pk_bf16_f32 v126, v124, v125
    v_lshlrev_b32 v124, 16, v126            ; m
    v_and_b32 v125, 0xffff0000, v126        ; v
    s_mov_b32 s26, 0x3727c5ac               ; 1e-5
    v_add_f32 v125, s26, v125
    v_cvt_pk_bf16_f32 v125, v125, v125
    v_lshlrev_b32 v125, 16, v125
    v_sqrt_f32 v125, v125
    s_nop 0
    v_cvt_pk_bf16_f32 v125, v125, v125
    v_lshlrev_b32 v125, 16, v125            ; den
    v_rcp_f32 v126, v125                    ; r
    s_nop 0
    """)
    for i in range(36):
        x0, x1 = X + 2*i, X + 2*i + 1
        a(f"""
        v_sub_f32 v{x0}, v{x0}, v124
        v_sub_f32 v{x1}, v{x1}, v124
        v_cvt_pk_bf16_f32 v127, v{x0}, v{x1}
        v_lshlrev_b32 v{x0}, 16, v127
        v_and_b32 v{x1}, 0xffff0000, v127
        v_mul_f32 v120, v{x0}, v126
        v_mul_f32 v121, v{x1}, v126
        v_fma_f32 v122, -v120, v125, v{x0}
        v_fma_f32 v123, -v121, v125, v{x1}
        v_fmac_f32 v120, v122, v126
        v_fmac_f32 v121, v123, v126
        v_cvt_pk_bf16_f32 v{8+i}, v120, v121
        """)
    for i in range(9):
        a(f"s_movk_i32 s27, {i*2048}")
        a(f"buffer_store_dwordx2 v[{8+4*i}:{9+4*i}], v4, s[20:23], s27 offen")
        a(f"buffer_store_dwordx2 v[{10+4*i}:{11+4*i}], v4, s[20:23], s27 offen offset:256")
    a("s_endpgm")

    a.label("prep_kv")
    srd(a, 16, 6, 7, SZ_ACT)
    srd(a, 20, 8, 9, SZ_ACT)
    srd(a, 24, 10, 11, D*4*2)
    srd(a, 28, 12, 13, SZ_ACT, WS_KVT)
    a(f"""
    v_lshrrev_b32 v1, 6, v0
    s_nop 0
    v_readfirstlane_b32 s32, v1
    s_sub_u32 s33, s2, {N_LN_WG}
    s_lshl_b32 s33, s33, 2
    s_add_u32 s33, s33, s32                  ; W 0..575
    s_mov_b32 s34, 0x1c71c71d                ; ceil(2^32/9)
    s_mul_hi_u32 s35, s33, s34               ; sgroup = W/9
    s_mul_i32 s36, s35, 9
    s_sub_u32 s36, s33, s36                  ; dgroup = W%9
    v_and_b32 v1, 63, v0                     ; lane
    v_and_b32 v2, 7, v1                      ; dchunk
    v_lshrrev_b32 v3, 3, v1                  ; sblk
    s_lshl_b32 s37, s35, 5                   ; sgroup*32
    v_lshl_add_u32 v3, v3, 2, s37            ; s0
    s_lshl_b32 s38, s36, 7
    v_lshl_add_u32 v4, v2, 4, s38
    s_movk_i32 s39, 1152
    v_mul_lo_u32 v5, v3, s39
    v_add_u32 v5, v5, v4                     ; s0*1152 + d0*2
    v_subrev_u32 v6, {3*1152}, v5
    """)
    a("buffer_load_dwordx4 v[16:19], v6, s[16:19], 0 offen")
    a("buffer_load_dwordx4 v[20:23], v6, s[16:19], 0 offen offset:1152")
    a("buffer_load_dwordx4 v[24:27], v6, s[16:19], 0 offen offset:2304")
    for r in range(4):
        a(f"buffer_load_dwordx4 v[{28+4*r}:{31+4*r}], v5, s[16:19], 0 offen offset:{r*1152}")
    for r in range(4):
        a(f"buffer_load_dwordx4 v[{44+4*r}:{47+4*r}], v5, s[20:23], 0 offen offset:{r*1152}")
    a("v_lshlrev_b32 v7, 2, v4")
    for r in range(4):
        a(f"buffer_load_dwordx4 v[{60+4*r}:{63+4*r}], v7, s[24:27], 0 offen offset:{r*16}")
    a("""
    v_lshlrev_b32 v8, 11, v4                 ; d0*2*2048
    v_and_b32 v9, 0xfffffff8, v3
    v_lshl_add_u32 v8, v9, 1, v8
    v_and_b32 v9, 4, v3
    v_lshlrev_b32 v9, 1, v9                  ; 8 if s0&4
    v_sub_u32 v9, 8, v9                      ; 8 - that
    v_add_u32 v8, v8, v9
    s_waitcnt vmcnt(0)
    """)
    KF = 80
    WF = 96
    VF = 104
    AC = 112
    PR = 120
    T  = 122
    OUT = 124
    for p in range(4):
        for r in range(7):
            a(f"v_lshlrev_b32 v{KF+2*r}, 16, v{16+4*r+p}")
            a(f"v_and_b32 v{KF+2*r+1}, 0xffff0000, v{16+4*r+p}")
        for r in range(4):
            a(f"v_lshlrev_b32 v{VF+2*r}, 16, v{44+4*r+p}")
            a(f"v_and_b32 v{VF+2*r+1}, 0xffff0000, v{44+4*r+p}")
        for c in range(2):
            ch = 2*p + c
            a(f"v_lshlrev_b32 v{WF+4*c+0}, 16, v{60+2*ch}")
            a(f"v_and_b32 v{WF+4*c+1}, 0xffff0000, v{60+2*ch}")
            a(f"v_lshlrev_b32 v{WF+4*c+2}, 16, v{61+2*ch}")
            a(f"v_and_b32 v{WF+4*c+3}, 0xffff0000, v{61+2*ch}")
        for r in range(4):
            for t in range(4):
                a(f"v_mul_f32 v{PR}, v{KF+2*(r+t)}, v{WF+3-t}")
                a(f"v_mul_f32 v{PR+1}, v{KF+2*(r+t)+1}, v{WF+4+3-t}")
                a(f"v_cvt_pk_bf16_f32 v{T}, v{PR}, v{PR+1}")
                if t == 0:
                    a(f"v_lshlrev_b32 v{AC+2*r}, 16, v{T}")
                    a(f"v_and_b32 v{AC+2*r+1}, 0xffff0000, v{T}")
                else:
                    a(f"v_lshlrev_b32 v{PR}, 16, v{T}")
                    a(f"v_and_b32 v{PR+1}, 0xffff0000, v{T}")
                    a(f"v_add_f32 v{PR}, v{AC+2*r}, v{PR}")
                    a(f"v_add_f32 v{PR+1}, v{AC+2*r+1}, v{PR+1}")
                    a(f"v_cvt_pk_bf16_f32 v{T}, v{PR}, v{PR+1}")
                    a(f"v_lshlrev_b32 v{AC+2*r}, 16, v{T}")
                    a(f"v_and_b32 v{AC+2*r+1}, 0xffff0000, v{T}")
            a(f"v_mul_f32 v{AC+2*r}, v{AC+2*r}, v{VF+2*r}")
            a(f"v_mul_f32 v{AC+2*r+1}, v{AC+2*r+1}, v{VF+2*r+1}")
        for c in range(2):
            a(f"v_cvt_pk_bf16_f32 v{OUT+2*c}, v{AC+6+c}, v{AC+4+c}")
            a(f"v_cvt_pk_bf16_f32 v{OUT+2*c+1}, v{AC+2+c}, v{AC+0+c}")
        for c in range(2):
            ch = 2*p + c
            a(f"s_movk_i32 s40, {ch*4096 & 0xffff}" if ch*4096 < 32768 else f"s_mov_b32 s40, {ch*4096}")
            a(f"buffer_store_dwordx2 v[{OUT+2*c}:{OUT+2*c+1}], v8, s[28:31], s40 offen")
        a("s_nop 1")
    a.label("prep_done")
    a("s_endpgm")

P2_LN = 512
import os as _os
P2_KV = 0 if _os.environ.get('KV_IN_G1') else 288
P2_PF = 0
def gen_prep2(a):
    kernel_header(a, "prep_kernel")
    a(f"""
    s_load_dwordx2 s[4:5], s[0:1], 0
    s_load_dwordx2 s[6:7], s[0:1], 8
    s_load_dwordx2 s[8:9], s[0:1], 16
    s_load_dwordx2 s[10:11], s[0:1], 24
    s_load_dwordx2 s[12:13], s[0:1], 96
    s_load_dwordx2 s[48:49], s[0:1], 56
    s_load_dwordx2 s[50:51], s[0:1], 64
    s_cmp_ge_u32 s2, {P2_LN + P2_KV + P2_PF}
    s_cbranch_scc1 prep_done
    v_lshrrev_b32 v1, 6, v0
    s_nop 0
    v_readfirstlane_b32 s24, v1              ; wave
    v_and_b32 v1, 63, v0                     ; lane
    s_waitcnt lgkmcnt(0)
    s_cmp_ge_u32 s2, {P2_LN + P2_KV}
    s_cbranch_scc1 prep_pf
    s_cmp_ge_u32 s2, {P2_KV}
    s_cbranch_scc0 prep_kv
    """)
    srd(a, 16, 4, 5, SZ_ACT)
    srd(a, 20, 12, 13, SZ_ACT, WS_XN)
    a(f"""
    s_sub_u32 s30, s2, {P2_KV}
    s_lshl_b32 s30, s30, 2
    s_add_u32 s30, s30, s24                  ; row
    s_mul_i32 s31, s30, 1152
    v_lshlrev_b32 v12, 3, v1
    v_add_u32 v12, s31, v12
    v_mov_b32 v18, 0
    v_mov_b32 v19, 0
    buffer_load_dwordx2 v[14:15], v12, s[16:19], 0 offen
    buffer_load_dwordx2 v[16:17], v12, s[16:19], 0 offen offset:512
    s_mov_b64 exec, 0xffff
    buffer_load_dwordx2 v[18:19], v12, s[16:19], 0 offen offset:1024
    s_mov_b64 exec, -1
    s_lshr_b32 s31, s30, 4
    s_mul_i32 s31, s31, {18*1024}
    s_and_b32 s32, s30, 15
    s_lshl_b32 s32, s32, 4
    s_add_u32 s31, s31, s32
    v_lshrrev_b32 v13, 3, v1
    v_lshlrev_b32 v13, 10, v13
    v_and_b32 v20, 3, v1
    v_lshl_add_u32 v13, v20, 8, v13
    v_bfe_u32 v20, v1, 2, 1
    v_lshl_add_u32 v13, v20, 3, v13
    v_add_u32 v13, s31, v13
    s_waitcnt vmcnt(0)
    """)
    F = 20
    for i in range(6):
        a(f"v_lshlrev_b32 v{F+2*i}, 16, v{14+i}")
        a(f"v_and_b32 v{F+2*i+1}, 0xffff0000, v{14+i}")
    def wave_sum(r, t):
        a(f"""
        s_nop 1
        v_add_f32_dpp v{t}, v{r}, v{r} quad_perm:[1,0,3,2] row_mask:0xf bank_mask:0xf
        s_nop 1
        v_add_f32_dpp v{r}, v{t}, v{t} quad_perm:[2,3,0,1] row_mask:0xf bank_mask:0xf
        s_nop 1
        v_add_f32_dpp v{t}, v{r}, v{r} row_half_mirror row_mask:0xf bank_mask:0xf
        s_nop 1
        v_add_f32_dpp v{r}, v{t}, v{t} row_mirror row_mask:0xf bank_mask:0xf
        s_nop 0
        v_readlane_b32 s40, v{r}, 0
        v_readlane_b32 s41, v{r}, 16
        v_readlane_b32 s42, v{r}, 32
        v_readlane_b32 s43, v{r}, 48
        s_nop 1
        v_mov_b32 v{r}, s40
        v_add_f32 v{r}, s41, v{r}
        v_add_f32 v{r}, s42, v{r}
        v_add_f32 v{r}, s43, v{r}
        """)
    a(f"v_add_f32 v34, v{F}, v{F+1}")
    for i in range(2, 12): a(f"v_add_f32 v34, v34, v{F+i}")
    wave_sum(34, 35)
    a(f"""
    s_mov_b32 s44, 0x3ae38e39
    v_mul_f32 v36, s44, v34
    v_sub_f32 v37, v{F}, v36
    v_mul_f32 v34, v37, v37
    """)
    for i in range(1, 8):
        a(f"v_sub_f32 v37, v{F+i}, v36")
        a(f"v_fmac_f32 v34, v37, v37")
    a("s_mov_b64 exec, 0xffff")
    for i in range(8, 12):
        a(f"v_sub_f32 v37, v{F+i}, v36")
        a(f"v_fmac_f32 v34, v37, v37")
    a("s_mov_b64 exec, -1")
    wave_sum(34, 35)
    a(f"""
    v_mul_f32 v37, s44, v34
    v_cvt_pk_bf16_f32 v38, v36, v37
    v_lshlrev_b32 v36, 16, v38
    v_and_b32 v37, 0xffff0000, v38
    s_mov_b32 s45, 0x3727c5ac
    v_add_f32 v37, s45, v37
    v_cvt_pk_bf16_f32 v37, v37, v37
    v_lshlrev_b32 v37, 16, v37
    v_sqrt_f32 v37, v37
    s_nop 0
    v_cvt_pk_bf16_f32 v37, v37, v37
    v_lshlrev_b32 v37, 16, v37
    v_rcp_f32 v38, v37
    s_nop 0
    """)
    for i in range(6):
        x0, x1 = F + 2*i, F + 2*i + 1
        a(f"""
        v_sub_f32 v{x0}, v{x0}, v36
        v_sub_f32 v{x1}, v{x1}, v36
        v_cvt_pk_bf16_f32 v39, v{x0}, v{x1}
        v_lshlrev_b32 v{x0}, 16, v39
        v_and_b32 v{x1}, 0xffff0000, v39
        v_mul_f32 v40, v{x0}, v38
        v_mul_f32 v41, v{x1}, v38
        v_fma_f32 v42, -v40, v37, v{x0}
        v_fma_f32 v43, -v41, v37, v{x1}
        v_fmac_f32 v40, v42, v38
        v_fmac_f32 v41, v43, v38
        v_cvt_pk_bf16_f32 v{14+i}, v40, v41
        """)
    a(f"""
    s_movk_i32 s40, 8192
    s_movk_i32 s41, 16384
    buffer_store_dwordx2 v[14:15], v13, s[20:23], 0 offen
    buffer_store_dwordx2 v[16:17], v13, s[20:23], s40 offen
    s_mov_b64 exec, 0xffff
    buffer_store_dwordx2 v[18:19], v13, s[20:23], s41 offen
    s_endpgm
    """)
    a.label("prep_kv")
    srd(a, 16, 6, 7, SZ_ACT)
    srd(a, 20, 8, 9, SZ_ACT)
    srd(a, 28, 10, 11, D*4*2)
    srd(a, 32, 12, 13, SZ_ACT, WS_KVT)
    a(f"""
    s_lshl_b32 s40, s2, 2
    s_add_u32 s40, s40, s24                  ; u (0..1151)
    s_mov_b32 s41, 0x1c71c71d
    s_mul_hi_u32 s42, s40, s41               ; sgroup
    s_mul_i32 s43, s42, 9
    s_sub_u32 s43, s40, s43                  ; dgroup
    v_and_b32 v2, 7, v1
    v_lshrrev_b32 v3, 3, v1
    s_lshl_b32 s44, s42, 4
    v_lshl_add_u32 v3, v3, 1, s44            ; s0
    s_lshl_b32 s44, s43, 7
    v_lshl_add_u32 v4, v2, 4, s44            ; d0*2
    s_movk_i32 s45, 1152
    v_mul_lo_u32 v5, v3, s45
    v_add_u32 v5, v5, v4
    v_subrev_u32 v6, {3*1152}, v5
    v_subrev_u32 v7, {2*1152}, v5
    v_subrev_u32 v8, {1*1152}, v5
    buffer_load_dwordx4 v[12:15], v6, s[16:19], 0 offen
    buffer_load_dwordx4 v[16:19], v7, s[16:19], 0 offen
    buffer_load_dwordx4 v[20:23], v8, s[16:19], 0 offen
    buffer_load_dwordx4 v[24:27], v5, s[16:19], 0 offen
    buffer_load_dwordx4 v[28:31], v5, s[16:19], 0 offen offset:1152
    buffer_load_dwordx4 v[32:35], v5, s[20:23], 0 offen
    buffer_load_dwordx4 v[36:39], v5, s[20:23], 0 offen offset:1152
    v_lshlrev_b32 v9, 2, v4
    buffer_load_dwordx4 v[40:43], v9, s[28:31], 0 offen
    buffer_load_dwordx4 v[44:47], v9, s[28:31], 0 offen offset:16
    buffer_load_dwordx4 v[48:51], v9, s[28:31], 0 offen offset:32
    buffer_load_dwordx4 v[52:55], v9, s[28:31], 0 offen offset:48
    v_lshlrev_b32 v10, 11, v4
    v_and_b32 v11, 0xfffffff8, v3
    v_lshl_add_u32 v10, v11, 1, v10
    v_and_b32 v11, 7, v3
    v_sub_u32 v11, 6, v11
    v_lshl_add_u32 v10, v11, 1, v10
    s_waitcnt vmcnt(0)
    """)
    KF = 56; WF = 66; VF = 74; AC = 78; PR = 82; T = 84; OUT = 86
    for p in range(4):
        for r in range(5):
            a(f"v_lshlrev_b32 v{KF+2*r}, 16, v{12+4*r+p}")
            a(f"v_and_b32 v{KF+2*r+1}, 0xffff0000, v{12+4*r+p}")
        for r in range(2):
            a(f"v_lshlrev_b32 v{VF+2*r}, 16, v{32+4*r+p}")
            a(f"v_and_b32 v{VF+2*r+1}, 0xffff0000, v{32+4*r+p}")
        for c in range(2):
            ch = 2*p + c
            a(f"v_lshlrev_b32 v{WF+4*c+0}, 16, v{40+2*ch}")
            a(f"v_and_b32 v{WF+4*c+1}, 0xffff0000, v{40+2*ch}")
            a(f"v_lshlrev_b32 v{WF+4*c+2}, 16, v{41+2*ch}")
            a(f"v_and_b32 v{WF+4*c+3}, 0xffff0000, v{41+2*ch}")
        for r in range(2):
            for t in range(4):
                a(f"v_mul_f32 v{PR}, v{KF+2*(r+t)}, v{WF+3-t}")
                a(f"v_mul_f32 v{PR+1}, v{KF+2*(r+t)+1}, v{WF+4+3-t}")
                a(f"v_cvt_pk_bf16_f32 v{T}, v{PR}, v{PR+1}")
                if t == 0:
                    a(f"v_lshlrev_b32 v{AC+2*r}, 16, v{T}")
                    a(f"v_and_b32 v{AC+2*r+1}, 0xffff0000, v{T}")
                else:
                    a(f"v_lshlrev_b32 v{PR}, 16, v{T}")
                    a(f"v_and_b32 v{PR+1}, 0xffff0000, v{T}")
                    a(f"v_add_f32 v{PR}, v{AC+2*r}, v{PR}")
                    a(f"v_add_f32 v{PR+1}, v{AC+2*r+1}, v{PR+1}")
                    a(f"v_cvt_pk_bf16_f32 v{T}, v{PR}, v{PR+1}")
                    a(f"v_lshlrev_b32 v{AC+2*r}, 16, v{T}")
                    a(f"v_and_b32 v{AC+2*r+1}, 0xffff0000, v{T}")
            a(f"v_mul_f32 v{AC+2*r}, v{AC+2*r}, v{VF+2*r}")
            a(f"v_mul_f32 v{AC+2*r+1}, v{AC+2*r+1}, v{VF+2*r+1}")
        for c in range(2):
            ch = 2*p + c
            a(f"v_cvt_pk_bf16_f32 v{OUT+2*p+c}, v{AC+2+c}, v{AC+0+c}")
            a(f"s_mov_b32 s46, {ch*4096}")
            a(f"buffer_store_dword v{OUT+2*p+c}, v10, s[32:35], s46 offen")
    a("s_endpgm")
    a.label("prep_pf")
    a(f"""
    s_sub_u32 s30, s2, {P2_LN + P2_KV}
    s_cmp_ge_u32 s30, 128
    s_cselect_b32 s48, s50, s48
    s_cselect_b32 s49, s51, s49
    s_and_b32 s30, s30, 127
    s_mul_i32 s30, s30, 41472
    s_mul_i32 s31, s24, 10368
    s_add_u32 s30, s30, s31
    v_lshlrev_b32 v2, 4, v1
    v_add_u32 v2, s30, v2
    """)
    srd(a, 16, 48, 49, SZ_W)
    for j in range(3):
        for i in range(4 if j < 2 else 3):
            a(f"buffer_load_dwordx4 v[{8+4*i}:{11+4*i}], v2, s[16:19], 0 offen offset:{i*1024}")
        a("v_add_u32 v2, 4096, v2")
    a.label("prep_done")
    a("s_endpgm")

HEADER = open("cdna_kernels/%s.s.ref" % NAME).read().split("; Override launch geometry")[0]

def main():
    a = A()
    launches = []
    kds = []
    import os
    if not os.environ.get("FUSE_PREP"):
        gen_prep(a); launches.append(("prep_kernel", N_LN_WG + N_KV_WG, 256, 0)); kds.append(kd("prep_kernel", 128, 48))
    import gen2
    gen2.add(a, launches, kds, globals())
    out = HEADER
    for (k, g, b, l) in launches:
        out += f"; @launch kernel={k} grid=({g},1,1) block=({b},1,1) lds={l}\n"
    out += '.amdgcn_target "amdgcn-amd-amdhsa--gfx950"\n.text\n'
    out += a.text()
    out += '.section .rodata,"a"\n'
    for k in kds:
        out += ".p2align 6\n" + k
    open(sys.argv[1] if len(sys.argv) > 1 else "cdna_kernels/%s.s" % NAME, "w").write(out)

if __name__ == "__main__":
    main()
```
